```python
import torch

def _softmax(x, axis=-1):
    return torch.softmax(x, dim=axis)
def _gelu(x):
    return torch.nn.functional.gelu(x, approximate="tanh")
def _silu(x):
    return torch.nn.functional.silu(x)
def _sigmoid(x):
    return torch.sigmoid(x)
def _layernorm(x, axis=-1, eps=1e-5):
    m = x.mean(dim=axis, keepdim=True)
    v = x.var(dim=axis, keepdim=True, unbiased=False)
    return (x - m) / torch.sqrt(v + eps)
def _scatter_add(tgt, idx, src, axis=0):
    return tgt.clone().index_add_(axis, idx, src)
def _segment_sum(src, seg, n):
    out = torch.zeros((n,) + src.shape[1:], dtype=src.dtype)
    return out.index_add_(0, seg, src)
def _pad(x, pw):
    flat = tuple(v for pair in reversed(pw) for v in pair)
    return torch.nn.functional.pad(x, flat)

kernel_name = 'parallel_sum__linear_kernel_hedgehog__dense_activation_silu__prompt'

def setup_inputs():

    _w = (lambda a: (lambda t: t.to(torch.bfloat16) if t.is_floating_point() else t)(torch.as_tensor(a)))
    def _A_setup():
        B, S, D, H = 1, 2048, 512, 32
        Dh = D // H
        return {
            "x": _w((lambda *s: torch.randn(*s, dtype=torch.bfloat16) * 0.05)(B, S, D)),
            "wqkv": _w((lambda *s: torch.randn(*s, dtype=torch.bfloat16) * 0.2)(D, 3 * D)),
            "w_phi": _w((lambda *s: torch.randn(*s, dtype=torch.bfloat16) * 0.2)(H, Dh, Dh) * (Dh ** -0.5)),
            "wo": _w((lambda *s: torch.randn(*s, dtype=torch.bfloat16) * 0.05)(D, D)),
        }
    _A_in = _A_setup()

    def _B_setup():
        B, S, D, F = 1, 2048, 512, 1792
        return {
            "x": _w((lambda *s: torch.randn(*s, dtype=torch.bfloat16) * 0.05)(B, S, D)),
            "w1": _w((lambda *s: torch.randn(*s, dtype=torch.bfloat16) * 0.8)(D, F) * (D ** -0.5)),
            "w2": _w((lambda *s: torch.randn(*s, dtype=torch.bfloat16) * 0.1)(F, D) * (F ** -0.5)),
        }
    _B_in = _B_setup()

    return {
        "A_x": _A_in["x"],
        "A_wqkv": _A_in["wqkv"],
        "A_w_phi": _A_in["w_phi"],
        "A_wo": _A_in["wo"],
        "B_x": _B_in["x"],
        "B_w1": _B_in["w1"],
        "B_w2": _B_in["w2"],
    }

def reference(A_x, A_wqkv, A_w_phi, A_wo, B_x, B_w1, B_w2):
    def _A_ref(x, wqkv, w_phi, wo):
        B, S, D = x.shape
        H = 32; Dh = D // H
        qkv = (lambda x, *d: x.permute(*d))((x @ wqkv).reshape(B, S, 3, H, Dh), 2, 0, 3, 1, 4)
        q, k, v = qkv[0], qkv[1], qkv[2]
        pq = torch.einsum("bhsd,hdf->bhsf", q, w_phi)
        pk = torch.einsum("bhsd,hdf->bhsf", k, w_phi)
        phi_q = torch.concatenate([_softmax(pq, axis=-1), _softmax(-pq, axis=-1)], axis=-1)
        phi_k = torch.concatenate([_softmax(pk, axis=-1), _softmax(-pk, axis=-1)], axis=-1)
        kv = torch.einsum("bhsf,bhsd->bhfd", phi_k, v)
        z  = torch.einsum("bhsf->bhf", phi_k)
        num = torch.einsum("bhqf,bhfd->bhqd", phi_q, kv)
        den = torch.einsum("bhqf,bhf->bhq", phi_q, z)[..., None] + 1e-6
        o = num / den
        return (lambda x, *d: x.permute(*d))(o, 0, 2, 1, 3).reshape(B, S, D) @ wo

    def _B_ref(x, w1, w2):
        h = torch.einsum("bsd,df->bsf", x, w1)
        h = _silu(h)
        out = torch.einsum("bsf,fd->bsd", h, w2)
        return out

    x = A_x
    xn = _layernorm(x, axis=-1)
    return x + _A_ref(xn, A_wqkv, A_w_phi, A_wo) + _B_ref(xn, B_w1, B_w2)
```

```python
import copy


class R:
    __slots__ = ("k", "i", "n")

    def __init__(self, k, i, n=1):
        self.k, self.i, self.n = k, i, n

    def __str__(self):
        if self.n == 1:
            return f"{self.k}{self.i}"
        return f"{self.k}[{self.i}:{self.i + self.n - 1}]"

    __repr__ = __str__

    def __getitem__(self, idx):
        if isinstance(idx, slice):
            a = idx.start or 0
            b = self.n if idx.stop is None else idx.stop
            assert 0 <= a < b <= self.n, (self, idx)
            return R(self.k, self.i + a, b - a)
        assert 0 <= idx < self.n, (self, idx)
        return R(self.k, self.i + idx, 1)

    def regs(self):
        return [(self.k, self.i + j) for j in range(self.n)]


def V(i, n=1):
    return R("v", i, n)


def S(i, n=1):
    return R("s", i, n)


VCC = R("s", 106, 2)
M0 = R("s", 124, 1)
EXEC = R("s", 126, 2)


def opstr(o):
    if isinstance(o, R):
        if o.k == "s" and o.i == 106:
            return "vcc"
        if o.k == "s" and o.i == 124:
            return "m0"
        if o.k == "s" and o.i == 126:
            return "exec" if o.n == 2 else "exec_lo"
        if o.k == "s" and o.i == 127:
            return "exec_hi"
        return str(o)
    if isinstance(o, Neg):
        return "-" + opstr(o.r)
    if isinstance(o, float):
        import struct
        return hex(struct.unpack("<I", struct.pack("<f", o))[0])
    if isinstance(o, int):
        if -16 <= o <= 64:
            return str(o)
        return hex(o & 0xFFFFFFFF)
    return str(o)


class Neg:
    def __init__(self, r):
        self.r = r


def regs_of(ops):
    out = []
    for o in ops:
        if isinstance(o, Neg):
            o = o.r
        if isinstance(o, R):
            out += o.regs()
    return out


TRANS = ("v_exp_f32", "v_log_f32", "v_rcp_f32", "v_rsq_f32", "v_sqrt_f32")


class VAlloc:
    def __init__(self, start=0, limit=256):
        self.next = start
        self.limit = limit
        self.hi = start

    def get(self, n=1, align=1):
        if n > 1 and align == 1:
            align = 2
        self.next = (self.next + align - 1) // align * align
        r = V(self.next, n)
        self.next += n
        assert self.next <= self.limit, "out of VGPRs"
        self.hi = max(self.hi, self.next)
        return r


class Gen:
    def __init__(self):
        self.lines = []
        self.pos = 0
        self.valu_w = {}
        self.mfma_w = {}
        self.mfma_c = {}
        self.st_data = {}
        self.sgpr_vw = {}
        self.m0_w = -100
        self.lg = []
        self.vm = []

    def fork(self):
        g = copy.copy(self)
        g.lines = []
        for a in ("valu_w", "mfma_w", "mfma_c", "st_data", "sgpr_vw"):
            setattr(g, a, dict(getattr(self, a)))
        g.lg = [copy.copy(e) for e in self.lg]
        g.vm = [copy.copy(e) for e in self.vm]
        return g

    def raw(self, text, states=1):
        self.lines.append("    " + text)
        self.pos += states

    def comment(self, text):
        self.lines.append("    ; " + text)

    def label(self, name):
        self.lines.append(name + ":")

    def nop(self, n):
        while n > 0:
            k = min(n, 16)
            self.raw(f"s_nop {k - 1}", k)
            n -= k

    def _wait_for_regs(self, regs):
        regs = set(regs)
        need_lg = None
        for idx, e in enumerate(self.lg):
            if e["regs"] & regs:
                need_lg = len(self.lg) - 1 - idx
        need_vm = None
        for idx, e in enumerate(self.vm):
            if e["regs"] & regs:
                need_vm = len(self.vm) - 1 - idx
        self.waitcnt(vm=need_vm, lg=need_lg)

    def waitcnt(self, vm=None, lg=None):
        parts = []
        if vm is not None and vm < len(self.vm):
            vm = min(vm, 63)
            parts.append(f"vmcnt({vm})")
            self.vm = self.vm[len(self.vm) - vm:] if vm else []
        if lg is not None and lg < len(self.lg):
            lg = min(lg, 15)
            parts.append(f"lgkmcnt({lg})")
            self.lg = self.lg[len(self.lg) - lg:] if lg else []
        if parts:
            self.raw("s_waitcnt " + " ".join(parts))

    def wait_vm_tag(self, tag):
        last = None
        for idx, e in enumerate(self.vm):
            if e.get("tag") == tag:
                last = idx
        if last is not None:
            self.waitcnt(vm=len(self.vm) - 1 - last)

    def wait_lg_tag(self, tag):
        last = None
        for idx, e in enumerate(self.lg):
            if e.get("tag") == tag:
                last = idx
        if last is not None:
            self.waitcnt(lg=len(self.lg) - 1 - last)

    def _need(self, prod_pos, ws):
        return ws - (self.pos - prod_pos - 1)

    def _hazards(self, cls, op, wr, rd, srcc=None):
        n = 0
        for r in rd + wr:
            if r in self.mfma_w:
                p, need, df, dn, passes = self.mfma_w[r]
                if cls == "mfma":
                    if srcc is not None and r in srcc[0] and r not in srcc[2]:
                        if (srcc[1] == (df, dn, passes)):
                            continue
                        n = max(n, self._need(p, need - 2))
                        continue
                    if r in wr and r not in rd:
                        continue
                    n = max(n, self._need(p, need))
                elif cls in ("valu", "vmem", "ds", "readlane", "permlane"):
                    n = max(n, self._need(p, need))
        for r in rd:
            if r in self.valu_w:
                p, kind = self.valu_w[r]
                if cls == "mfma":
                    n = max(n, self._need(p, 3 if kind.startswith("dot") else 2))
                if cls == "readlane":
                    n = max(n, self._need(p, 1))
                if cls == "permlane":
                    n = max(n, self._need(p, 2))
                if kind == "trans" and cls in ("valu", "readlane", "permlane") and op not in TRANS:
                    n = max(n, self._need(p, 1))
                if kind.startswith("dot"):
                    if not (op == kind[4:] and srcc is not None and r in srcc[0] and r not in srcc[2]):
                        n = max(n, self._need(p, 3))
            if r in self.sgpr_vw:
                p = self.sgpr_vw[r]
                if cls in ("valu", "mfma", "permlane", "readlane"):
                    n = max(n, self._need(p, 2))
                if cls == "vmem":
                    n = max(n, self._need(p, 5))
                if cls == "salu":
                    n = max(n, self._need(p, 1))
        for r in wr:
            if r in self.valu_w:
                p, kind = self.valu_w[r]
                if kind.startswith("dot") and op != kind[4:]:
                    n = max(n, self._need(p, 3))
            if r in self.mfma_c and cls in ("valu", "readlane", "permlane"):
                p, need = self.mfma_c[r]
                n = max(n, self._need(p, need))
            if r in self.st_data:
                n = max(n, self._need(self.st_data[r], 2))
        if n > 0:
            self.nop(n)

    def _post_write(self, wr, kind):
        for r in wr:
            self.mfma_w.pop(r, None)
            self.valu_w.pop(r, None)
            if r[0] == "v" or r[0] == "a":
                if kind is not None:
                    self.valu_w[r] = (self.pos - 1, kind)
            else:
                if kind is not None:
                    self.sgpr_vw[r] = self.pos - 1
                else:
                    self.sgpr_vw.pop(r, None)

    def valu(self, op, dst, *src, mods="", extra_wr=(), extra_rd=(), dst_read=False):
        dsts = dst if isinstance(dst, (list, tuple)) else [dst]
        wr = regs_of(dsts) + regs_of(extra_wr)
        rd = regs_of(src) + regs_of(extra_rd)
        if dst_read:
            rd += regs_of(dsts)
        cls = "valu"
        if op.startswith("v_readfirstlane") or op.startswith("v_readlane"):
            cls = "readlane"
        if op.startswith("v_permlane"):
            cls = "permlane"
            rd = rd + wr
        srcc = None
        if op.startswith("v_dot2"):
            if op.startswith("v_dot2c"):
                c = regs_of(dsts)
                rd = rd + c
                srcc = (set(c), None, set(regs_of(src)))
            else:
                srcc = (set(regs_of([src[2]])), None, set(regs_of(src[:2])))
        self._wait_for_regs(rd + wr)
        self._hazards(cls, op, wr, rd, srcc)
        txt = op + " " + ", ".join(opstr(o) for o in list(dsts) + list(src))
        if mods:
            txt += " " + mods
        self.raw(txt)
        kind = "normal"
        if op in TRANS:
            kind = "trans"
        if op.startswith("v_dot2"):
            kind = "dot:" + op
        self._post_write(wr, kind)

    def mfma(self, d, a, b, c, op="v_mfma_f32_32x32x16_bf16"):
        passes = 8 if "32x32x16" in op else 4
        need = 12 if passes == 8 else 8
        wr = regs_of([d])
        ab = regs_of([a, b])
        cr = regs_of([c])
        rd = ab + cr
        self._wait_for_regs(rd + wr)
        srcc = (set(cr), (c.i, c.n, passes) if isinstance(c, R) else None, set(ab))
        self._hazards("mfma", op, wr, rd, srcc)
        self.raw(f"{op} {d}, {a}, {b}, {opstr(c)}")
        for r in wr:
            self.valu_w.pop(r, None)
            self.mfma_w[r] = (self.pos - 1, need, d.i, d.n, passes)
        for r in cr:
            self.mfma_c[r] = (self.pos - 1, 7 if passes == 8 else 3)

    def salu(self, op, dst, *src):
        wr = regs_of([dst]) if dst is not None else []
        rd = regs_of(src)
        self._hazards("salu", op, wr, rd)
        ops = ([dst] if dst is not None else []) + list(src)
        self.raw(op + " " + ", ".join(opstr(o) for o in ops))
        self._post_write(wr, None)
        if dst is M0 or (isinstance(dst, R) and dst.k == "s" and dst.i == 124):
            self.m0_w = self.pos - 1

    def sload(self, dst, base, off):
        n = dst.n
        op = {1: "s_load_dword", 2: "s_load_dwordx2", 4: "s_load_dwordx4", 8: "s_load_dwordx8"}[n]
        self.raw(f"{op} {dst}, {base}, {off}")
        self.lg.append({"regs": set(), "tag": "smem"})

    def ds_read(self, op, dst, addr, off=0, tag=None):
        wr = regs_of([dst])
        rd = regs_of([addr])
        self._wait_for_regs(rd + wr)
        self._hazards("ds", op, wr, rd)
        assert 0 <= off < 65536, off
        self.raw(f"{op} {dst}, {addr}" + (f" offset:{off}" if off else ""))
        self._post_write(wr, None)
        self.lg.append({"regs": set(wr), "tag": tag})

    def ds_write(self, op, addr, data, off=0, tag=None):
        rd = regs_of([addr, data])
        self._wait_for_regs(rd)
        self._hazards("ds", op, [], rd)
        assert 0 <= off < 65536, off
        self.raw(f"{op} {addr}, {data}" + (f" offset:{off}" if off else ""))
        self.lg.append({"regs": set(), "tag": tag})

    def bload(self, op, dst, voff, srd, soff=0, off=0, mods="", tag=None):
        wr = regs_of([dst])
        rd = regs_of([voff, srd, soff])
        self._wait_for_regs(rd + wr)
        self._hazards("vmem", op, wr, rd)
        assert 0 <= off < 4096, off
        self.raw(f"{op} {dst}, {voff}, {srd}, {opstr(soff)} offen" + (f" offset:{off}" if off else "") + (" " + mods if mods else ""))
        self._post_write(wr, None)
        self.vm.append({"regs": set(wr), "tag": tag})

    def bstore(self, op, data, voff, srd, soff=0, off=0, mods="", tag=None):
        rd = regs_of([data, voff, srd, soff])
        self._wait_for_regs(rd)
        self._hazards("vmem", op, [], rd)
        assert 0 <= off < 4096, off
        self.raw(f"{op} {data}, {voff}, {srd}, {opstr(soff)} offen" + (f" offset:{off}" if off else "") + (" " + mods if mods else ""))
        if data.n >= 3:
            for r in data.regs():
                self.st_data[r] = self.pos - 1
        self.vm.append({"regs": set(), "tag": tag})

    def dma(self, voff, srd, soff, tag=None, mods=""):
        rd = regs_of([voff, srd, soff])
        self._wait_for_regs(rd)
        self._hazards("vmem", "dma", [], rd)
        n = self._need(self.m0_w, 1)
        if n > 0:
            self.nop(n)
        self.raw(f"buffer_load_dwordx4 {voff}, {srd}, {opstr(soff)} offen lds" + (" " + mods if mods else ""))
        self.vm.append({"regs": set(), "tag": tag})

    def barrier(self):
        self.raw("s_barrier")

    def settle(self, n=12):
        self.nop(n)

    def text(self):
        return "\n".join(self.lines) + "\n"
```

```python
import sys
from asmlib import *

WS_HF = 0x0
WS_PQ = 0x700000
WS_WF = 0xB00000
WS_PART = 0xE00000
WS_KV = 0x1000000
WS_SIZE = 0x1100000

LOG2E = 1.4426950408889634
ONES_BF = 0x3F803F80

A_BUF = 16384
B_BASE = 49152
B_BUF = 28672
RS = 135168
CS = RS + 1024
K1_LDS = RS + 2048
PHK_IMG = 0
V_IMG = 32768


def make_srd(g, srd, base, nbytes, off=None):
    if off is None:
        g.salu("s_mov_b32", srd[0], base[0])
        g.salu("s_mov_b32", srd[1], base[1])
    else:
        g.salu("s_add_u32", srd[0], base[0], off)
        g.salu("s_addc_u32", srd[1], base[1], 0)
    g.salu("s_mov_b32", srd[2], nbytes)
    g.salu("s_mov_b32", srd[3], 0x20000)


def bf16_round(g, dst, src):
    g.valu("v_cvt_pk_bf16_f32", dst, src, src)
    g.valu("v_lshlrev_b32", dst, 16, dst)


def gen_k1():
    name = "hh_k1_kernel"
    g = Gen()
    out = []
    sKarg, sWG = S(0, 2), S(2)
    sX, sWqkv, sWphi, sWo, sW1, sW2, sWs = S(4, 2), S(6, 2), S(8, 2), S(10, 2), S(12, 2), S(14, 2), S(16, 2)
    srdX, srdW, srdWs, srdAux, srdAux2, srdPhi = S(20, 4), S(24, 4), S(28, 4), S(32, 4), S(36, 4), S(40, 4)
    sW, sI, sJ, sMt, sNt, sType, sXcd, sIdx = (S(44 + k) for k in range(8))
    sT0, sT1, sT2, sT3 = S(52), S(53), S(54), S(55)
    sKA, sKB, sAm0, sBm0, sOnes, sGw = S(56), S(57), S(58), S(59), S(60), S(61)
    sMask = S(62, 2)
    sF1, sF2, sF1d, sF2d = S(64), S(65), S(66), S(67)
    sOut = S(68)

    g.label(name)
    g.salu("s_cmp_ge_u32", None, sWG, 256)
    g.raw("s_cbranch_scc1 hh_k1_exit")
    g.sload(S(4, 4), sKarg, 0)
    g.sload(S(8, 4), sKarg, 16)
    g.sload(S(12, 4), sKarg, 40)
    g.sload(S(16, 2), sKarg, 72)
    vTid = V(0)
    vLane, vT = V(1), V(2)
    g.valu("v_lshrrev_b32", vT, 6, vTid)
    g.valu("v_and_b32", vLane, 63, vTid)
    g.valu("v_readfirstlane_b32", sW, vT)
    g.salu("s_and_b32", sXcd, sWG, 7)
    g.salu("s_lshr_b32", sIdx, sWG, 3)
    g.salu("s_and_b32", sT0, sXcd, 1)
    g.salu("s_lshl_b32", sT0, sT0, 3)
    g.salu("s_and_b32", sT1, sIdx, 7)
    g.salu("s_or_b32", sMt, sT0, sT1)
    g.salu("s_lshr_b32", sType, sIdx, 4)
    g.salu("s_lshr_b32", sT0, sXcd, 1)
    g.salu("s_lshl_b32", sT0, sT0, 1)
    g.salu("s_bfe_u32", sT1, sIdx, (1 << 16) | 3)
    g.salu("s_or_b32", sNt, sT0, sT1)
    g.salu("s_and_b32", sI, sW, 3)
    g.salu("s_lshr_b32", sJ, sW, 2)
    g.salu("s_lshl_b32", sT0, sWG, 3)
    g.salu("s_add_u32", sGw, sT0, sW)
    g.salu("s_mov_b32", sOnes, ONES_BF)
    vZ, vZa = V(3), V(4)
    g.valu("v_mov_b32", vZ, 0)
    g.valu("v_lshlrev_b32", vZa, 2, vTid)
    g.valu("v_add_u32", vZa, RS, vZa)
    g.ds_write("ds_write_b32", vZa, vZ)
    g.lg = []
    g.raw("s_waitcnt lgkmcnt(0)")
    g.salu("s_lshl_b32", sT0, sType, 1)
    g.salu("s_add_u32", sT0, sT0, sJ)
    g.salu("s_cmp_eq_u32", None, sT0, 1)
    g.raw("s_cbranch_scc1 hh_k1_r1")
    g.salu("s_cmp_eq_u32", None, sT0, 2)
    g.raw("s_cbranch_scc1 hh_k1_r2")
    g.salu("s_cmp_eq_u32", None, sT0, 3)
    g.raw("s_cbranch_scc1 hh_k1_r3")
    out.append(g.text())
    base_state = g
    maxv = 0

    for role in range(4):
        typ, j = role >> 1, role & 1
        g = base_state.fork()
        g.label(f"hh_k1_r{role}")
        va = VAlloc(5, 256)
        U = 4 if (typ == 1 and j == 0) else 3
        ldw = 3584 if typ else 3072
        nB = 4 if j == 1 else 3
        g.salu("s_lshl_b32", sT0, sMt, 17)
        make_srd(g, srdX, sX, 131072, sT0)
        if typ == 0:
            g.salu("s_lshl_b32", sT0, sNt, 7)
            make_srd(g, srdW, sWqkv, 512 * 3072 - 7 * 128, sT0)
        else:
            g.salu("s_mul_i32", sT0, sNt, 448)
            make_srd(g, srdW, sW1, 512 * 3584 - 7 * 448, sT0)
        make_srd(g, srdWs, sWs, WS_SIZE)
        vA = [va.get() for _ in range(2)]
        vB = [va.get() for _ in range(nB)]
        t0, t1, t2, t3 = va.get(), va.get(), va.get(), va.get()
        g.valu("v_lshrrev_b32", t0, 3, vLane)
        g.valu("v_lshrrev_b32", t1, 4, vLane)
        g.valu("v_and_b32", t2, 7, vLane)
        g.salu("s_lshl_b32", sT0, sW, 4)
        for e in range(2):
            g.valu("v_add_u32", t3, sT0, t0)
            if e:
                g.valu("v_add_u32", t3, 8, t3)
            g.valu("v_lshlrev_b32", vA[e], 10, t3)
            g.valu("v_xor_b32", t3, t2, t1)
            if e:
                g.valu("v_xor_b32", t3, 4, t3)
            g.valu("v_lshl_add_u32", vA[e], t3, 4, vA[e])
        g.salu("s_add_u32", sT1, sW, 4)
        g.salu("s_and_b32", sT1, sT1, 7)
        g.salu("s_lshl_b32", sBm0, sT1, 10)
        g.salu("s_add_u32", sBm0, sBm0, B_BASE)
        g.salu("s_lshl_b32", sAm0, sW, 11)
        g.salu("s_lshl_b32", sT1, sT1, 6)
        for e in range(nB):
            g.valu("v_add_u32", t0, sT1, vLane)
            if e:
                g.valu("v_add_u32", t0, 512 * e, t0)
            g.valu("v_mul_u32_u24", t1, 2341, t0)
            g.valu("v_lshrrev_b32", t1, 16, t1)
            g.valu("v_mul_u32_u24", t2, 28, t1)
            g.valu("v_sub_u32", t2, t0, t2)
            g.valu("v_mul_u32_u24", vB[e], ldw, t1)
            if typ == 1:
                g.valu("v_lshl_add_u32", vB[e], t2, 4, vB[e])
            else:
                g.valu("v_lshrrev_b32", t3, 3, t2)
                g.valu("v_lshl_add_u32", vB[e], t3, 10, vB[e])
                g.valu("v_and_b32", t3, 7, t2)
                g.valu("v_lshl_add_u32", vB[e], t3, 4, vB[e])
                g.valu("v_cmp_le_u32", VCC, 24, t2)
                g.valu("v_mov_b32", t3, 0x80000000)
                g.valu("v_cndmask_b32", vB[e], vB[e], t3, VCC)
        g.salu("s_mov_b32", sKA, 0)
        g.salu("s_mov_b32", sKB, 0)

        def issue_dma(stage, parts=None):
            b = stage % 3
            items = [("A", e) for e in range(2)] + [("B", e) for e in range(nB)]
            for kind, e in items:
                if kind == "A":
                    g.salu("s_add_u32", M0, sAm0, b * A_BUF + e * 1024)
                    g.dma(vA[e], srdX, sKA, tag=("dma", stage))
                else:
                    g.salu("s_add_u32", M0, sBm0, b * B_BUF + e * 8192)
                    g.dma(vB[e], srdW, sKB, tag=("dma", stage))
            g.salu("s_add_u32", sKA, sKA, 128)
            g.salu("s_add_u32", sKB, sKB, 64 * ldw)

        for st in range(3):
            issue_dma(st)

        vXa = [va.get() for _ in range(4)]
        vWa = [va.get() for _ in range(4)]
        vWb = [va.get() for _ in range(4)]
        g.valu("v_and_b32", t0, 31, vLane)
        g.salu("s_lshl_b32", sT0, sI, 5)
        g.valu("v_add_u32", t0, sT0, t0)
        g.valu("v_lshlrev_b32", t0, 7, t0)
        g.valu("v_lshrrev_b32", t1, 5, vLane)
        g.valu("v_bfe_u32", t2, vLane, 1, 3)
        g.valu("v_xor_b32", t1, t1, t2)
        g.valu("v_lshl_add_u32", t0, t1, 4, t0)
        g.valu("v_lshrrev_b32", t1, 5, vLane)
        g.valu("v_bfe_u32", t2, vLane, 2, 2)
        g.valu("v_lshl_add_u32", t1, t1, 3, t2)
        g.valu("v_mul_u32_u24", t1, 448, t1)
        g.valu("v_bfe_u32", t2, vLane, 4, 1)
        g.valu("v_lshl_add_u32", t1, t2, 5, t1)
        g.valu("v_and_b32", t2, 3, vLane)
        g.valu("v_lshl_add_u32", t1, t2, 3, t1)
        g.valu("v_add_u32", t1, B_BASE + j * 64, t1)
        for t in range(4):
            g.salu("s_add_u32", sT0, sI, t + 2 * j)
            g.salu("s_and_b32", sT0, sT0, 3)
            g.salu("s_lshl_b32", sT1, sT0, 5)
            g.valu("v_xor_b32", vXa[t], sT1, t0)
            g.salu("s_mul_i32", sT1, sT0, 16 * 448)
            g.valu("v_add_u32", vWa[t], sT1, t1)
            g.valu("v_add_u32", vWb[t], 2 * B_BUF, vWa[t])

        vRl = [va.get(), va.get()]
        g.valu("v_lshrrev_b32", t1, 5, vLane)
        g.valu("v_and_b32", t2, 31, vLane)
        g.valu("v_lshlrev_b32", t2, 1, t2)
        g.valu("v_lshl_add_u32", vRl[0], t1, 12, t2)
        g.valu("v_add_u32", vRl[1], 8192, vRl[0])
        vL16 = va.get()
        g.valu("v_lshlrev_b32", vL16, 4, vLane)
        g.salu("s_lshr_b32", sT0, sGw, 4)
        g.salu("s_and_b32", sT1, sGw, 15)
        g.salu("s_mul_i32", sF1d, sT1, 144)
        g.salu("s_add_u32", sF1d, sF1d, sT0)
        g.salu("s_lshl_b32", sF1d, sF1d, 10)
        g.salu("s_add_u32", sF1d, sF1d, WS_WF)
        g.salu("s_add_u32", sF2d, sF1d, 128 * 1024)
        g.salu("s_cmp_lt_u32", None, sGw, 256)
        g.salu("s_cselect_b32", sF2d, sF2d, 0x7FFF0000)
        g.salu("s_cmp_ge_u32", None, sT0, 112)
        g.salu("s_cselect_b32", srdAux[0], sWo[0], sW2[0])
        g.salu("s_cselect_b32", srdAux[1], sWo[1], sW2[1])
        g.salu("s_mov_b32", sT3, 1792 * 1024)
        g.salu("s_cselect_b32", srdAux[2], 512 * 1024, sT3)
        g.salu("s_mov_b32", srdAux[3], 0x20000)
        g.salu("s_cselect_b32", sT2, 112, 0)
        g.salu("s_sub_u32", sT2, sT0, sT2)
        g.salu("s_lshl_b32", sF1, sT2, 14)
        g.salu("s_lshl_b32", sT1, sT1, 6)
        g.salu("s_add_u32", sF1, sF1, sT1)
        g.salu("s_add_u32", sT2, sT0, 16)
        g.salu("s_lshl_b32", sF2, sT2, 14)
        g.salu("s_add_u32", sF2, sF2, sT1)
        make_srd(g, srdAux2, sWo, 512 * 1024)
        vR1 = [va.get() for _ in range(8)]
        vR2 = [va.get() for _ in range(8)]
        for jj in range(8):
            g.bload("buffer_load_ushort", vR1[jj], vRl[jj >> 2], srdAux, sF1, (jj & 3) * 1024)
        for jj in range(8):
            g.bload("buffer_load_ushort", vR2[jj], vRl[jj >> 2], srdAux2, sF2, (jj & 3) * 1024)
        if typ == 0:
            make_srd(g, srdPhi, sWphi, 32 * 512)
            vPh = [va.get() for _ in range(16)]
            vPa, vSign = va.get(), va.get()
            g.valu("v_bfe_u32", t1, vLane, 3, 2)
            g.valu("v_and_b32", t2, 3, vLane)
            g.valu("v_lshl_add_u32", t1, t1, 2, t2)
            g.valu("v_lshlrev_b32", t1, 1, t1)
            g.valu("v_lshrrev_b32", t2, 5, vLane)
            g.valu("v_lshl_add_u32", vPa, t2, 7, t1)
            g.valu("v_bfe_u32", t1, vLane, 2, 1)
            g.salu("s_mov_b32", sT0, 0x80008000)
            g.valu("v_mul_lo_u32", vSign, t1, sT0)
            g.salu("s_lshl_b32", sT0, sNt, 2)
            g.salu("s_add_u32", sT0, sT0, 2 * j)
            g.salu("s_lshl_b32", sT0, sT0, 9)
            for hl in range(2):
                for jj in range(8):
                    g.bload("buffer_load_ushort", vPh[hl * 8 + jj], vPa, srdPhi, sT0,
                            hl * 512 + (8 * (jj >> 2) + (jj & 3)) * 32)

        acc = [va.get(16, 4) for _ in range(U)]
        X = [va.get(4, 4) for _ in range(2)]
        Wf = [[va.get(4, 4) for _ in range(U)] for _ in range(2)]
        vSum, vSq = va.get(), va.get()
        vCs = [va.get() for _ in range(U)]
        g.valu("v_mov_b32", vSum, 0)
        g.valu("v_mov_b32", vSq, 0)
        for u in range(U):
            g.valu("v_mov_b32", vCs[u], 0)

        def rd_x(T):
            s, t = divmod(T, 4)
            g.ds_read("ds_read_b128", X[T & 1], vXa[t], (s % 3) * A_BUF)

        def rd_w(T, u):
            s, t = divmod(T, 4)
            b = s % 3
            base, off = (vWa[t], b * B_BUF) if b < 2 else (vWb[t], 0)
            for half in range(2):
                g.ds_read("ds_read_b64_tr_b16", Wf[T & 1][u][2 * half:2 * half + 2], base,
                          off + half * 4 * 448 + u * 128)

        def relayout_store():
            for n_, (vr, dsto) in enumerate(((vR1, sF1d), (vR2, sF2d))):
                pk = va_tmp[n_]
                for q in range(4):
                    g.valu("v_lshl_or_b32", pk[q], vr[2 * q + 1], 16, vr[2 * q])
                g.bstore("buffer_store_dwordx4", pk, vL16, srdWs, dsto)

        va_tmp = [va.get(4, 4), va.get(4, 4)]

        g.wait_vm_tag(("dma", 0))
        g.barrier()
        rd_x(0)
        for u in range(U):
            rd_w(0, u)

        for T in range(32):
            s, t = divmod(T, 4)
            cur = T & 1
            last = (T == 31)
            fill = [[] for _ in range(U)]
            if t in (0, 1):
                for r in range(4):
                    fill[r % U].append(lambda r=r: g.valu("v_dot2_f32_bf16", vSum, X[cur][r], sOnes, vSum))
                    fill[r % U].append(lambda r=r: g.valu("v_dot2_f32_bf16", vSq, X[cur][r], X[cur][r], vSq))
            if t == 2:
                for u in range(U):
                    for r in range(4):
                        fill[u].append(lambda u=u, r=r: g.valu("v_dot2_f32_bf16", vCs[u], Wf[cur][u][r], sOnes, vCs[u]))
            boundary = (t == 3 and not last)
            for u in range(U):
                g.mfma(acc[u], Wf[cur][u], X[cur], acc[u] if T else 0)
                if not boundary and not last:
                    if u == 0:
                        rd_x(T + 1)
                    rd_w(T + 1, u)
                if boundary and u == 1:
                    g.waitcnt(lg=0)
                    g.wait_vm_tag(("dma", s + 1))
                    g.barrier()
                    rd_x(T + 1)
                    for uu in range(U):
                        rd_w(T + 1, uu)
                if boundary and u == 2 and s + 3 <= 7:
                    issue_dma(s + 3)
                for f in fill[u]:
                    f()
            if T == 13:
                relayout_store()
        vRa, vCa = va.get(), va.get()
        g.valu("v_and_b32", t0, 31, vLane)
        g.salu("s_lshl_b32", sT0, sI, 5)
        g.valu("v_add_u32", t1, sT0, t0)
        g.valu("v_lshlrev_b32", vRa, 3, t1)
        g.valu("v_add_u32", vRa, RS, vRa)
        g.valu("v_lshlrev_b32", vCa, 2, t0)
        g.valu("v_add_u32", vCa, CS + j * 128, vCa)
        g.ds_write("ds_add_f32", vRa, vSum)
        g.ds_write("ds_add_f32", vRa, vSq, 4)
        for u in range(U):
            g.ds_write("ds_add_f32", vCa, vCs[u], u * 256)
        g.waitcnt(lg=0)
        g.barrier()
        vSt = va.get(2, 2)
        g.ds_read("ds_read_b64", vSt, vRa)
        vCr = va.get()
        g.valu("v_lshrrev_b32", t1, 5, vLane)
        g.valu("v_lshlrev_b32", vCr, 4, t1)
        g.valu("v_add_u32", vCr, CS + j * 128, vCr)
        csr = [va.get(16, 4) for _ in range(2)]
        vMean, vVar, vNegM, vRinv, vNr2 = va.get(), va.get(), va.get(), va.get(), va.get()

        def rd_cs(u):
            for q in range(4):
                g.ds_read("ds_read_b128", csr[u & 1][4 * q:4 * q + 4], vCr, u * 256 + q * 32)

        rd_cs(0)
        g.valu("v_mul_f32", vMean, 1.0 / 512, vSt[0])
        g.valu("v_mul_f32", vVar, 1.0 / 512, vSt[1])
        g.valu("v_fma_f32", vVar, Neg(vMean), vMean, vVar)
        bf16_round(g, vMean, vMean)
        bf16_round(g, vVar, vVar)
        g.valu("v_add_f32", vVar, 1e-5, vVar)
        bf16_round(g, vVar, vVar)
        g.valu("v_sqrt_f32", vVar, vVar)
        bf16_round(g, vVar, vVar)
        g.valu("v_rcp_f32", vRinv, vVar)
        g.valu("v_sub_f32", vNegM, 0, vMean)
        g.valu("v_mul_f32", vNr2, -LOG2E, vRinv)

        if typ == 1:
            g.salu("s_lshl_b32", sT0, sMt, 2)
            g.salu("s_add_u32", sT0, sT0, sI)
            g.salu("s_mul_i32", sT0, sT0, 112)
            g.salu("s_mul_i32", sT1, sNt, 14)
            g.salu("s_add_u32", sT0, sT0, sT1)
            g.salu("s_add_u32", sT0, sT0, 2 * j)
            g.salu("s_lshl_b32", sOut, sT0, 10)
            e = [va.get() for _ in range(8)]
            pk = [va.get(4, 4) for _ in range(2)]
            for u in range(U):
                if u + 1 < U:
                    rd_cs(u + 1)
                for m in range(2):
                    rr = range(8 * m, 8 * m + 8)
                    for r in rr:
                        g.valu("v_fma_f32", acc[u][r], vNegM, csr[u & 1][r], acc[u][r])
                    for r in rr:
                        g.valu("v_mul_f32", e[r & 7], vNr2, acc[u][r])
                    for r in rr:
                        g.valu("v_exp_f32", e[r & 7], e[r & 7])
                    for r in rr:
                        g.valu("v_mul_f32", acc[u][r], vRinv, acc[u][r])
                    for r in rr:
                        g.valu("v_add_f32", e[r & 7], 1.0, e[r & 7])
                    for r in rr:
                        g.valu("v_rcp_f32", e[r & 7], e[r & 7])
                    for r in rr:
                        g.valu("v_mul_f32", acc[u][r], acc[u][r], e[r & 7])
                    for q in range(4):
                        g.valu("v_cvt_pk_bf16_f32", pk[m][q], acc[u][8 * m + 2 * q], acc[u][8 * m + 2 * q + 1])
                    g.bstore("buffer_store_dwordx4", pk[m], vL16, srdWs, sOut, m * 1024)
                if u + 1 < U:
                    g.salu("s_add_u32", sOut, sOut, 4096)
        else:
            PH = [va.get(4, 4) for _ in range(2)]
            for hl in range(2):
                for q in range(4):
                    g.valu("v_lshl_or_b32", PH[hl][q], vPh[hl * 8 + 2 * q + 1], 16, vPh[hl * 8 + 2 * q])
                    g.valu("v_xor_b32", PH[hl][q], vSign, PH[hl][q])
            for u in range(3):
                if u + 1 < U:
                    rd_cs(u + 1)
                for r in range(16):
                    g.valu("v_fma_f32", acc[u][r], vNegM, csr[u & 1][r], acc[u][r])
                for r in range(16):
                    g.valu("v_mul_f32", acc[u][r], vRinv, acc[u][r])
            vIm = va.get()
            g.valu("v_and_b32", t0, 31, vLane)
            g.salu("s_lshl_b32", sT0, sI, 5)
            g.valu("v_add_u32", t0, sT0, t0)
            g.valu("v_lshlrev_b32", t0, 6, t0)
            g.valu("v_lshrrev_b32", t1, 5, vLane)
            g.valu("v_lshl_add_u32", vIm, t1, 3, t0)
            assert Wf[1][2].i == Wf[1][1].i + 4
            pk8 = V(Wf[1][1].i, 8)
            D2 = csr
            QF = X
            vMx, vSm = va.get(), va.get()
            for q in range(8):
                g.valu("v_cvt_pk_bf16_f32", pk8[q], acc[2][2 * q], acc[2][2 * q + 1])
            for q in range(4):
                g.ds_write("ds_write_b64", vIm, pk8[2 * q:2 * q + 2], V_IMG + j * 8192 + q * 16)

            def phi(u):
                for hl in range(2):
                    for q in range(4):
                        g.valu("v_cvt_pk_bf16_f32", QF[hl][q], acc[u][8 * hl + 2 * q], acc[u][8 * hl + 2 * q + 1])
                for hl in range(2):
                    g.mfma(D2[hl], PH[hl], QF[hl], 0)

            def softmax(hl):
                D = D2[hl]
                g.valu("v_max3_f32", vMx, D[0], D[1], D[2])
                for r in range(3, 15, 2):
                    g.valu("v_max3_f32", vMx, vMx, D[r], D[r + 1])
                g.valu("v_max_f32", vMx, vMx, D[15])
                g.valu("v_mul_f32", vMx, -LOG2E, vMx)
                for r in range(16):
                    g.valu("v_fma_f32", D[r], D[r], sLog2e, vMx)
                for r in range(16):
                    g.valu("v_exp_f32", D[r], D[r])
                g.valu("v_add_f32", vSm, D[0], D[1])
                for r in range(2, 16):
                    g.valu("v_add_f32", vSm, vSm, D[r])
                g.valu("v_rcp_f32", vSm, vSm)
                for r in range(16):
                    g.valu("v_mul_f32", D[r], vSm, D[r])
                for q in range(8):
                    g.valu("v_cvt_pk_bf16_f32", pk8[q], D[2 * q], D[2 * q + 1])

            sLog2e = sT3
            g.salu("s_mov_b32", sLog2e, LOG2E)
            phi(1)
            for hl in range(2):
                softmax(hl)
                for q in range(4):
                    g.ds_write("ds_write_b64", vIm, pk8[2 * q:2 * q + 2], PHK_IMG + (2 * j + hl) * 8192 + q * 16)
            g.waitcnt(lg=0)
            g.barrier()
            phi(0)
            g.salu("s_lshl_b32", sT0, sMt, 2)
            g.salu("s_add_u32", sT0, sT0, sI)
            g.salu("s_lshl_b32", sT0, sT0, 5)
            g.salu("s_lshl_b32", sT1, sNt, 2)
            g.salu("s_add_u32", sT0, sT0, sT1)
            g.salu("s_add_u32", sT0, sT0, 2 * j)
            g.salu("s_lshl_b32", sOut, sT0, 11)
            g.salu("s_add_u32", sOut, sOut, WS_PQ)
            for hl in range(2):
                softmax(hl)
                for m in range(2):
                    g.bstore("buffer_store_dwordx4", pk8[4 * m:4 * m + 4], vL16, srdWs, sOut, (hl * 2 + m) * 1024)
            if j == 0:
                vKa, vVa, vOne = va.get(), va.get(), va.get()
                g.valu("v_lshrrev_b32", t1, 5, vLane)
                g.valu("v_bfe_u32", t2, vLane, 2, 2)
                g.valu("v_lshl_add_u32", t1, t1, 3, t2)
                g.valu("v_lshlrev_b32", t1, 6, t1)
                g.valu("v_and_b32", t2, 3, vLane)
                g.valu("v_lshl_add_u32", t1, t2, 3, t1)
                g.valu("v_bfe_u32", t2, vLane, 4, 1)
                g.valu("v_lshl_add_u32", t2, t2, 5, t1)
                g.salu("s_lshl_b32", sT0, sI, 13)
                g.valu("v_add_u32", vKa, sT0, t2)
                g.salu("s_lshr_b32", sT0, sI, 1)
                g.salu("s_lshl_b32", sT0, sT0, 13)
                g.salu("s_and_b32", sT1, sI, 1)
                g.salu("s_lshl_b32", sT1, sT1, 5)
                g.salu("s_add_u32", sT0, sT0, sT1)
                g.salu("s_add_u32", sT0, sT0, V_IMG)
                g.valu("v_add_u32", vVa, sT0, t1)
                g.valu("v_mov_b32", vOne, ONES_BF)
                g.salu("s_mov_b32", sMask[0], 0xFFFF0000)
                g.salu("s_mov_b32", sMask[1], 0xFFFF0000)
                KA = [Wf[0][0], Wf[0][1]]
                KB = [Wf[0][2], Wf[1][0]]
                D3 = D2[0]

                def rd_kv(ks):
                    for half in range(2):
                        g.ds_read("ds_read_b64_tr_b16", KA[ks & 1][2 * half:2 * half + 2], vKa, ks * 1024 + half * 256)
                    for half in range(2):
                        g.ds_read("ds_read_b64_tr_b16", KB[ks & 1][2 * half:2 * half + 2], vVa, ks * 1024 + half * 256)

                rd_kv(0)
                for ks in range(8):
                    if ks + 1 < 8:
                        rd_kv(ks + 1)
                    for r in range(4):
                        g.valu("v_cndmask_b32_e64", KB[ks & 1][r], KB[ks & 1][r], vOne, sMask)
                    g.mfma(D3, KA[ks & 1], KB[ks & 1], D3 if ks else 0)
                g.salu("s_lshl_b32", sT0, sMt, 5)
                g.salu("s_lshl_b32", sT1, sNt, 2)
                g.salu("s_add_u32", sT0, sT0, sT1)
                g.salu("s_add_u32", sT0, sT0, sI)
                g.salu("s_lshl_b32", sOut, sT0, 12)
                g.salu("s_add_u32", sOut, sOut, WS_PART)
                for q in range(4):
                    g.bstore("buffer_store_dwordx4", D3[4 * q:4 * q + 4], vL16, srdWs, sOut, q * 1024)
        g.raw("s_endpgm")
        maxv = max(maxv, va.hi)
        out.append(g.text())
    out.append("hh_k1_exit:\n    s_endpgm\n")
    return name, "".join(out), maxv


def gen_kr():
    name = "hh_kr_kernel"
    g = Gen()
    sKarg, sWG = S(0, 2), S(2)
    sWs, srdWs = S(4, 2), S(8, 4)
    sW, sT0, sT1, sOff = S(12), S(13), S(14), S(15)
    g.label(name)
    g.salu("s_cmp_ge_u32", None, sWG, 32)
    g.raw("s_cbranch_scc1 hh_kr_exit")
    g.sload(sWs, sKarg, 72)
    vLane, vT, vL16, vL8 = V(1), V(2), V(3), V(4)
    g.valu("v_lshrrev_b32", vT, 6, V(0))
    g.valu("v_and_b32", vLane, 63, V(0))
    g.valu("v_readfirstlane_b32", sW, vT)
    g.valu("v_lshlrev_b32", vL16, 4, vLane)
    g.lg = []
    g.raw("s_waitcnt lgkmcnt(0)")
    make_srd(g, srdWs, sWs, WS_SIZE)
    g.salu("s_lshl_b32", sT0, sWG, 2)
    g.salu("s_add_u32", sT0, sT0, sW)
    g.salu("s_lshl_b32", sOff, sT0, 10)
    g.salu("s_add_u32", sOff, sOff, WS_PART)
    P = [V(8 + 4 * m, 4) for m in range(16)]
    for m in range(16):
        g.bload("buffer_load_dwordx4", P[m], vL16, srdWs, sOff)
        if m < 15:
            g.salu("s_add_u32", sOff, sOff, 32 * 4096)
    for m in range(1, 16):
        for r in range(4):
            g.valu("v_add_f32", P[0][r], P[0][r], P[m][r])
    pk = V(6, 2)
    g.valu("v_cvt_pk_bf16_f32", pk[0], P[0][0], P[0][1])
    g.valu("v_cvt_pk_bf16_f32", pk[1], P[0][2], P[0][3])
    g.salu("s_lshl_b32", sT0, sWG, 11)
    g.salu("s_lshr_b32", sT1, sW, 1)
    g.salu("s_lshl_b32", sT1, sT1, 10)
    g.salu("s_add_u32", sT0, sT0, sT1)
    g.salu("s_and_b32", sT1, sW, 1)
    g.salu("s_lshl_b32", sT1, sT1, 3)
    g.salu("s_add_u32", sT0, sT0, sT1)
    g.salu("s_add_u32", sOff, sT0, WS_KV)
    g.bstore("buffer_store_dwordx2", pk, vL16, srdWs, sOff)
    g.raw("s_endpgm")
    return name, g.text() + "hh_kr_exit:\n    s_endpgm\n", 72


K2_ROW = 272
K2_LDS = 4 * 64 * K2_ROW


def gen_k2(NS=28):
    name = "hh_k2_kernel"
    g = Gen()
    sKarg, sWG = S(0, 2), S(2)
    sX, sOutp, sWs = S(4, 2), S(6, 2), S(8, 2)
    srdX, srdO, srdWs = S(12, 4), S(16, 4), S(20, 4)
    sW, sMt, sNt, sT0, sT1, sT2 = (S(24 + k) for k in range(6))
    streams = {}
    g.label(name)
    g.salu("s_cmp_ge_u32", None, sWG, 256)
    g.raw("s_cbranch_scc1 hh_k2_exit")
    g.sload(sX, sKarg, 0)
    g.sload(sOutp, sKarg, 56)
    g.sload(sWs, sKarg, 72)
    va = VAlloc(1, 256)
    vLane, vT, vL16 = va.get(), va.get(), va.get()
    g.valu("v_lshrrev_b32", vT, 6, V(0))
    g.valu("v_and_b32", vLane, 63, V(0))
    g.valu("v_readfirstlane_b32", sW, vT)
    g.valu("v_lshlrev_b32", vL16, 4, vLane)
    g.salu("s_and_b32", sT0, sWG, 7)
    g.salu("s_lshl_b32", sT0, sT0, 2)
    g.salu("s_bfe_u32", sT1, sWG, (2 << 16) | 3)
    g.salu("s_or_b32", sMt, sT0, sT1)
    g.salu("s_lshr_b32", sNt, sWG, 5)
    g.lg = []
    g.raw("s_waitcnt lgkmcnt(0)")
    make_srd(g, srdWs, sWs, WS_SIZE)
    make_srd(g, srdX, sX, 2048 * 1024)
    make_srd(g, srdO, sOutp, 2048 * 1024)
    sH = [S(32), S(33)]
    sWn = [S(34), S(35)]
    sPQ = [S(36), S(37)]
    sWoN = [S(38), S(39)]
    sKV = S(40)
    for sb in range(2):
        g.salu("s_lshl_b32", sT0, sMt, 1)
        g.salu("s_add_u32", sT0, sT0, sb)
        g.salu("s_mul_i32", sT1, sT0, 112)
        g.salu("s_mul_i32", sT2, sW, 28)
        g.salu("s_add_u32", sT1, sT1, sT2)
        g.salu("s_lshl_b32", sH[sb], sT1, 10)
        g.salu("s_lshl_b32", sT1, sT0, 5)
        g.salu("s_lshl_b32", sT2, sW, 3)
        g.salu("s_add_u32", sT1, sT1, sT2)
        g.salu("s_lshl_b32", sT1, sT1, 11)
        g.salu("s_add_u32", sPQ[sb], sT1, WS_PQ)
    for nb in range(2):
        g.salu("s_lshl_b32", sT0, sNt, 1)
        g.salu("s_add_u32", sT0, sT0, nb)
        g.salu("s_mul_i32", sT0, sT0, 144)
        g.salu("s_mul_i32", sT2, sW, 28)
        g.salu("s_add_u32", sT1, sT0, sT2)
        g.salu("s_lshl_b32", sT1, sT1, 10)
        g.salu("s_add_u32", sWn[nb], sT1, WS_WF)
        g.salu("s_lshl_b32", sT2, sW, 3)
        g.salu("s_add_u32", sT1, sT0, sT2)
        g.salu("s_add_u32", sT1, sT1, 112)
        g.salu("s_lshl_b32", sT1, sT1, 10)
        g.salu("s_add_u32", sWoN[nb], sT1, WS_WF)
    g.salu("s_lshl_b32", sT1, sW, 14)
    g.salu("s_add_u32", sKV, sT1, WS_KV)
    win = {}

    def ld(dst, sreg, off):
        w0 = win.get(sreg.i, 0)
        if not (w0 <= off < w0 + 4096):
            g.salu("s_add_u32", sreg, sreg, off - w0)
            win[sreg.i] = w0 = off
        g.bload("buffer_load_dwordx4", dst, vL16, srdWs, sreg, off - w0)

    acc = [[va.get(16, 4) for sb in range(2)] for nb in range(2)]
    D = [va.get(16, 4) for _ in range(2)]
    O = [va.get(4, 4) for _ in range(2)]
    vRc = va.get()
    slots = [va.get(4, 4) for _ in range(NS)]
    reqs = []
    for k in range(28):
        reqs += [(sWn[0], k * 1024), (sH[0], k * 1024), (sH[1], k * 1024), (sWn[1], k * 1024)]
    for h in range(8):
        reqs += [(sKV, h * 2048), (sPQ[0], h * 2048), (sKV, h * 2048 + 1024), (sPQ[0], h * 2048 + 1024),
                 (sPQ[1], h * 2048), (sPQ[1], h * 2048 + 1024), (sWoN[0], h * 1024), (sWoN[1], h * 1024)]
    issued = [0]

    def slot(q):
        return slots[q % NS]

    def issue_upto(n):
        n = min(n, len(reqs))
        while issued[0] < n:
            q = issued[0]
            ld(slot(q), *reqs[q])
            issued[0] += 1

    issue_upto(NS)
    first = True
    for k in range(28):
        b = 4 * k
        Wn0, H0, H1, Wn1 = (slot(b + i) for i in range(4))
        g.mfma(acc[0][0], Wn0, H0, acc[0][0] if k else 0)
        g.mfma(acc[0][1], Wn0, H1, acc[0][1] if k else 0)
        issue_upto(b + 1 + NS)
        g.mfma(acc[1][0], Wn1, H0, acc[1][0] if k else 0)
        issue_upto(b + 2 + NS)
        g.mfma(acc[1][1], Wn1, H1, acc[1][1] if k else 0)
        issue_upto(b + 4 + NS)
    for h in range(8):
        b = 112 + 8 * h
        KV0, P00, KV1, P01, P10, P11, WO0, WO1 = (slot(b + i) for i in range(8))
        g.mfma(D[0], KV0, P00, 0)
        g.mfma(D[0], KV1, P01, D[0])
        g.mfma(D[1], KV0, P10, 0)
        g.mfma(D[1], KV1, P11, D[1])
        issue_upto(b + 6 + NS)
        for sb in range(2):
            g.valu("v_add_f32", vRc, 1e-6, D[sb][8])
            g.valu("v_rcp_f32", vRc, vRc)
            for r in range(8):
                g.valu("v_mul_f32", D[sb][r], vRc, D[sb][r])
            for q in range(4):
                g.valu("v_cvt_pk_bf16_f32", O[sb][q], D[sb][2 * q], D[sb][2 * q + 1])
            g.mfma(acc[0][sb], WO0, O[sb], acc[0][sb])
            g.mfma(acc[1][sb], WO1, O[sb], acc[1][sb])
        issue_upto(b + 8 + NS)
    t0, t1, vWa, vRa, vXo = slots[0][0], slots[0][1], slots[0][2], slots[0][3], slots[1][0]
    XR = [slots[2], slots[3]]
    g.valu("v_lshrrev_b32", t0, 2, V(0))
    g.salu("s_lshl_b32", sT0, sMt, 6)
    g.valu("v_add_u32", t0, sT0, t0)
    g.valu("v_lshlrev_b32", vXo, 10, t0)
    g.valu("v_and_b32", t1, 3, V(0))
    g.valu("v_lshl_add_u32", vXo, t1, 5, vXo)
    g.salu("s_lshl_b32", sT0, sNt, 7)
    g.valu("v_add_u32", vXo, sT0, vXo)
    g.bload("buffer_load_dwordx4", XR[0], vXo, srdX, 0)
    g.bload("buffer_load_dwordx4", XR[1], vXo, srdX, 0, 16)
    g.valu("v_and_b32", t0, 31, vLane)
    g.valu("v_mul_u32_u24", t0, K2_ROW, t0)
    g.valu("v_lshrrev_b32", t1, 5, vLane)
    g.valu("v_lshl_add_u32", t0, t1, 4, t0)
    g.salu("s_mul_i32", sT0, sW, 64 * K2_ROW)
    g.valu("v_add_u32", vWa, sT0, t0)
    for nb in range(2):
        for sb in range(2):
            for q in range(4):
                g.ds_write("ds_write_b128", vWa, acc[nb][sb][4 * q:4 * q + 4], sb * 32 * K2_ROW + nb * 128 + q * 32)
    g.valu("v_lshrrev_b32", t0, 2, V(0))
    g.valu("v_mul_u32_u24", t0, K2_ROW, t0)
    g.valu("v_and_b32", t1, 3, V(0))
    g.valu("v_lshl_add_u32", vRa, t1, 6, t0)
    g.waitcnt(lg=0)
    g.barrier()
    RD = [acc[0][0], acc[0][1], acc[1][0], acc[1][1]]
    for w in range(4):
        for q in range(4):
            g.ds_read("ds_read_b128", RD[w][4 * q:4 * q + 4], vRa, w * 64 * K2_ROW + q * 16)
    for r in range(16):
        g.valu("v_add_f32", RD[0][r], RD[0][r], RD[1][r])
        g.valu("v_add_f32", RD[2][r], RD[2][r], RD[3][r])
    tx = D[0]
    for r in range(16):
        src = XR[r >> 3][(r & 7) >> 1]
        if r & 1:
            g.valu("v_and_b32", tx[r], 0xFFFF0000, src)
        else:
            g.valu("v_lshlrev_b32", tx[r], 16, src)
    for r in range(16):
        g.valu("v_add_f32", RD[0][r], RD[0][r], RD[2][r])
    for r in range(16):
        g.valu("v_add_f32", RD[0][r], RD[0][r], tx[r])
    po = D[1]
    for q in range(8):
        g.valu("v_cvt_pk_bf16_f32", po[q], RD[0][2 * q], RD[0][2 * q + 1])
    g.bstore("buffer_store_dwordx4", po[0:4], vXo, srdO, 0)
    g.bstore("buffer_store_dwordx4", po[4:8], vXo, srdO, 0, 16)
    g.raw("s_endpgm")
    return name, g.text() + "hh_k2_exit:\n    s_endpgm\n", va.hi


def descriptor(name, nv):
    nv4 = (nv + 3) // 4 * 4
    return f""".amdhsa_kernel {name}
  .amdhsa_next_free_vgpr {nv4}
  .amdhsa_next_free_sgpr 102
  .amdhsa_accum_offset {nv4}
  .amdhsa_group_segment_fixed_size 0
  .amdhsa_kernarg_size 80
  .amdhsa_user_sgpr_count 2
  .amdhsa_user_sgpr_kernarg_segment_ptr 1
  .amdhsa_system_sgpr_workgroup_id_x 1
.end_amdhsa_kernel
"""


def main(path):
    ks = [gen_k1(), gen_kr(), gen_k2()]
    launches = [
        f"; @launch kernel=hh_k1_kernel grid=(256,1,1) block=(512,1,1) lds={K1_LDS}",
        f"; @launch kernel=hh_kr_kernel grid=(32,1,1) block=(256,1,1) lds=0",
        f"; @launch kernel=hh_k2_kernel grid=(256,1,1) block=(256,1,1) lds={K2_LDS}",
    ]
    s = "; hedgehog linear attention + SiLU FFN parallel block (generated by my own generator script)\n"
    s += "\n".join(launches) + "\n"
    s += '.amdgcn_target "amdgcn-amd-amdhsa--gfx950"\n.text\n'
    for name, txt, nv in ks:
        s += f".globl {name}\n.p2align 8\n.type {name},@function\n" + txt
    s += '.section .rodata,"a"\n'
    for name, txt, nv in ks:
        s += ".p2align 6\n" + descriptor(name, nv)
        print(name, "vgprs", nv, "lines", txt.count("\n"), file=sys.stderr)
    open(path, "w").write(s)


if __name__ == "__main__":
    main(sys.argv[1] if len(sys.argv) > 1 else
         "parallel_sum__linear_kernel_hedgehog__dense_activation_silu__prompt.s")
```

```python
import sys
from asmlib import *

WS_HF = 0x0
WS_PQ = 0x700000
WS_WF = 0xB00000
WS_PART = 0xE00000
WS_KV = 0x1000000
WS_SIZE = 0x1100000

LOG2E = 1.4426950408889634
ONES_BF = 0x3F803F80

A_BUF = 16384
B_BASE = 49152
B_BUF = 28672
RS = 135168
CS = RS + 4096
K1_LDS = RS + 4096 + 7 * 1024
PHK_IMG = 0
V_IMG = 32768


def make_srd(g, srd, base, nbytes, off=None):
    if off is None:
        g.salu("s_mov_b32", srd[0], base[0])
        g.salu("s_mov_b32", srd[1], base[1])
    else:
        g.salu("s_add_u32", srd[0], base[0], off)
        g.salu("s_addc_u32", srd[1], base[1], 0)
    g.salu("s_mov_b32", srd[2], nbytes)
    g.salu("s_mov_b32", srd[3], 0x20000)


STAMPS = False
ABL = set()
WS_DBG = 0x1080000


CURK = [None]


def stamp(g, idx, real=False):
    if STAMPS == CURK[0]:
        g.raw(f"{'s_memrealtime' if real else 's_memtime'} s[{72 + 2 * idx}:{73 + 2 * idx}]")


def stamp_flush(g, n, srdWs, sGw, sT, vtmp, vtmp2):
    if STAMPS != CURK[0]:
        return
    g.raw("s_waitcnt lgkmcnt(0)")
    g.salu("s_lshl_b32", sT, sGw, 6)
    g.salu("s_add_u32", sT, sT, WS_DBG)
    g.valu("v_mov_b32", vtmp2, 0)
    for i in range(n):
        g.valu("v_mov_b32", vtmp, S(72 + 2 * i))
        g.bstore("buffer_store_dword", vtmp, vtmp2, srdWs, sT, 4 * i)


def bf16_round(g, dst, src):
    g.valu("v_cvt_pk_bf16_f32", dst, src, src)
    g.valu("v_lshlrev_b32", dst, 16, dst)


def gen_k1():
    name = "hh_k1_kernel"
    CURK[0] = "k1"
    g = Gen()
    out = []
    sKarg, sWG = S(0, 2), S(2)
    sX, sWqkv, sWphi, sWo, sW1, sW2, sWs = S(4, 2), S(6, 2), S(8, 2), S(10, 2), S(12, 2), S(14, 2), S(16, 2)
    srdX, srdW, srdWs, srdAux, srdAux2, srdPhi = S(20, 4), S(24, 4), S(28, 4), S(32, 4), S(36, 4), S(40, 4)
    sW, sI, sJ, sMt, sNt, sType, sXcd, sIdx = (S(44 + k) for k in range(8))
    sT0, sT1, sT2, sT3 = S(52), S(53), S(54), S(55)
    sKA, sKB, sAm0, sBm0, sOnes, sGw = S(56), S(57), S(58), S(59), S(60), S(61)
    sMask = S(62, 2)
    sF1, sF2, sF1d, sF2d = S(64), S(65), S(66), S(67)
    sOut = S(68)
    sPhiOff = S(69)

    g.label(name)
    g.salu("s_cmp_ge_u32", None, sWG, 256)
    g.raw("s_cbranch_scc1 hh_k1_exit")
    stamp(g, 0)
    stamp(g, 12, True)
    g.sload(S(4, 4), sKarg, 0)
    g.sload(S(8, 4), sKarg, 16)
    g.sload(S(12, 4), sKarg, 40)
    g.sload(S(16, 2), sKarg, 72)
    vTid = V(0)
    vLane, vT = V(1), V(2)
    g.valu("v_lshrrev_b32", vT, 6, vTid)
    g.valu("v_and_b32", vLane, 63, vTid)
    g.valu("v_readfirstlane_b32", sW, vT)
    g.salu("s_and_b32", sXcd, sWG, 7)
    g.salu("s_lshr_b32", sIdx, sWG, 3)
    g.salu("s_and_b32", sT0, sXcd, 1)
    g.salu("s_lshl_b32", sT0, sT0, 3)
    g.salu("s_and_b32", sT1, sIdx, 7)
    g.salu("s_or_b32", sMt, sT0, sT1)
    g.salu("s_lshr_b32", sType, sIdx, 4)
    g.salu("s_lshr_b32", sT0, sXcd, 1)
    g.salu("s_lshl_b32", sT0, sT0, 1)
    g.salu("s_bfe_u32", sT1, sIdx, (1 << 16) | 3)
    g.salu("s_or_b32", sNt, sT0, sT1)
    g.salu("s_and_b32", sI, sW, 3)
    g.salu("s_lshr_b32", sJ, sW, 2)
    g.salu("s_lshl_b32", sT0, sWG, 3)
    g.salu("s_add_u32", sGw, sT0, sW)
    g.salu("s_mov_b32", sOnes, ONES_BF)
    g.salu("s_lshl_b32", sT0, sType, 1)
    g.salu("s_add_u32", sT0, sT0, sJ)
    g.salu("s_cmp_eq_u32", None, sT0, 1)
    g.raw("s_cbranch_scc1 hh_k1_r1")
    g.salu("s_cmp_eq_u32", None, sT0, 2)
    g.raw("s_cbranch_scc1 hh_k1_r2")
    g.salu("s_cmp_eq_u32", None, sT0, 3)
    g.raw("s_cbranch_scc1 hh_k1_r3")
    out.append(g.text())
    base_state = g
    maxv = 0

    for role in range(4):
        typ, j = role >> 1, role & 1
        g = base_state.fork()
        g.label(f"hh_k1_r{role}")
        va = VAlloc(5, 256)
        U = 4 if (typ == 1 and j == 0) else 3
        ldw = 3584 if typ else 3072
        nB = 4 if j == 1 else 3
        vA = [va.get() for _ in range(2)]
        vB = [va.get() for _ in range(nB)]
        t0, t1, t2, t3 = va.get(), va.get(), va.get(), va.get()
        g.valu("v_lshrrev_b32", t0, 3, vLane)
        g.valu("v_lshrrev_b32", t1, 4, vLane)
        g.valu("v_and_b32", t2, 7, vLane)
        g.salu("s_lshl_b32", sT0, sW, 4)
        for e in range(2):
            g.valu("v_add_u32", t3, sT0, t0)
            if e:
                g.valu("v_add_u32", t3, 8, t3)
            g.valu("v_lshlrev_b32", vA[e], 10, t3)
            g.valu("v_xor_b32", t3, t2, t1)
            if e:
                g.valu("v_xor_b32", t3, 4, t3)
            g.valu("v_lshl_add_u32", vA[e], t3, 4, vA[e])
        g.salu("s_add_u32", sT1, sW, 4)
        g.salu("s_and_b32", sT1, sT1, 7)
        g.salu("s_lshl_b32", sBm0, sT1, 10)
        g.salu("s_add_u32", sBm0, sBm0, B_BASE)
        g.salu("s_lshl_b32", sAm0, sW, 11)
        g.salu("s_lshl_b32", sT1, sT1, 6)
        for e in range(nB):
            g.valu("v_add_u32", t0, sT1, vLane)
            if e:
                g.valu("v_add_u32", t0, 512 * e, t0)
            g.valu("v_mul_u32_u24", t1, 2341, t0)
            g.valu("v_lshrrev_b32", t1, 16, t1)
            g.valu("v_mul_u32_u24", t2, 28, t1)
            g.valu("v_sub_u32", t2, t0, t2)
            g.valu("v_mul_u32_u24", vB[e], ldw, t1)
            if typ == 1:
                g.valu("v_lshl_add_u32", vB[e], t2, 4, vB[e])
            else:
                g.valu("v_lshrrev_b32", t3, 3, t2)
                g.valu("v_lshl_add_u32", vB[e], t3, 10, vB[e])
                g.valu("v_and_b32", t3, 7, t2)
                g.valu("v_lshl_add_u32", vB[e], t3, 4, vB[e])
                g.valu("v_cmp_le_u32", VCC, 24, t2)
                g.valu("v_mov_b32", t3, 0x80000000)
                g.valu("v_cndmask_b32", vB[e], vB[e], t3, VCC)
        g.salu("s_mov_b32", sKA, 0)
        g.salu("s_mov_b32", sKB, 0)
        g.lg = []
        g.raw("s_waitcnt lgkmcnt(0)")
        g.salu("s_lshl_b32", sT0, sMt, 17)
        make_srd(g, srdX, sX, 131072, sT0)
        if typ == 0:
            g.salu("s_lshl_b32", sT0, sNt, 7)
            make_srd(g, srdW, sWqkv, 512 * 3072 - 7 * 128, sT0)
        else:
            g.salu("s_mul_i32", sT0, sNt, 448)
            make_srd(g, srdW, sW1, 512 * 3584 - 7 * 448, sT0)
        make_srd(g, srdWs, sWs, WS_SIZE)

        def dma_items(stage):
            b = stage % 3
            items = []
            for e in range(2):
                def f(e=e):
                    g.salu("s_mov_b32", sKA, stage * 128)
                    g.salu("s_add_u32", M0, sAm0, b * A_BUF + e * 1024)
                    g.dma(vA[e], srdX, sKA, tag=("dma", stage))
                items.append(f)
            for e in range(nB):
                def f(e=e):
                    g.salu("s_mov_b32", sKB, stage * 64 * ldw)
                    g.salu("s_add_u32", M0, sBm0, b * B_BUF + e * 8192)
                    g.dma(vB[e], srdW, sKB, tag=("dma", stage))
                items.append(f)
            return items

        def issue_dma(stage):
            for f in dma_items(stage):
                f()

        stamp(g, 1)
        issue_dma(0)
        g.barrier()
        stamp(g, 2)

        vXa = [va.get() for _ in range(4)]
        vWa = [va.get() for _ in range(4)]
        vWb = [va.get() for _ in range(4)]
        g.valu("v_and_b32", t0, 31, vLane)
        g.salu("s_lshl_b32", sT0, sI, 5)
        g.valu("v_add_u32", t0, sT0, t0)
        g.valu("v_lshlrev_b32", t0, 7, t0)
        g.valu("v_lshrrev_b32", t1, 5, vLane)
        g.valu("v_bfe_u32", t2, vLane, 1, 3)
        g.valu("v_xor_b32", t1, t1, t2)
        g.valu("v_lshl_add_u32", t0, t1, 4, t0)
        g.valu("v_lshrrev_b32", t1, 5, vLane)
        g.valu("v_bfe_u32", t2, vLane, 2, 2)
        g.valu("v_lshl_add_u32", t1, t1, 3, t2)
        g.valu("v_mul_u32_u24", t1, 448, t1)
        g.valu("v_bfe_u32", t2, vLane, 4, 1)
        g.valu("v_lshl_add_u32", t1, t2, 5, t1)
        g.valu("v_and_b32", t2, 3, vLane)
        g.valu("v_lshl_add_u32", t1, t2, 3, t1)
        g.valu("v_add_u32", t1, B_BASE + j * 64, t1)
        for t in range(4):
            g.salu("s_add_u32", sT0, sI, t + 2 * j)
            g.salu("s_and_b32", sT0, sT0, 3)
            g.salu("s_lshl_b32", sT1, sT0, 5)
            g.valu("v_xor_b32", vXa[t], sT1, t0)
            g.salu("s_mul_i32", sT1, sT0, 16 * 448)
            g.valu("v_add_u32", vWa[t], sT1, t1)
            g.valu("v_add_u32", vWb[t], 2 * B_BUF, vWa[t])

        issue_dma(1)
        side = []
        side += dma_items(2)
        sched = {"n": 3 * U, "k": len(side), "i": 0}
        vRl = [va.get(), va.get()]
        g.valu("v_lshrrev_b32", t1, 5, vLane)
        g.valu("v_and_b32", t2, 31, vLane)
        g.valu("v_lshlrev_b32", t2, 1, t2)
        g.valu("v_lshl_add_u32", vRl[0], t1, 12, t2)
        g.valu("v_add_u32", vRl[1], 8192, vRl[0])
        vL16 = va.get()
        g.valu("v_lshlrev_b32", vL16, 4, vLane)
        g.salu("s_lshr_b32", sT0, sGw, 4)
        g.salu("s_and_b32", sT1, sGw, 15)
        g.salu("s_mul_i32", sF1d, sT1, 144)
        g.salu("s_add_u32", sF1d, sF1d, sT0)
        g.salu("s_lshl_b32", sF1d, sF1d, 10)
        g.salu("s_add_u32", sF1d, sF1d, WS_WF)
        g.salu("s_add_u32", sF2d, sF1d, 128 * 1024)
        g.salu("s_cmp_lt_u32", None, sGw, 256)
        g.salu("s_cselect_b32", sF2d, sF2d, 0x7FFF0000)
        g.salu("s_cmp_ge_u32", None, sT0, 112)
        g.salu("s_cselect_b32", srdAux[0], sWo[0], sW2[0])
        g.salu("s_cselect_b32", srdAux[1], sWo[1], sW2[1])
        g.salu("s_mov_b32", sT3, 1792 * 1024)
        g.salu("s_cselect_b32", srdAux[2], 512 * 1024, sT3)
        g.salu("s_mov_b32", srdAux[3], 0x20000)
        g.salu("s_cselect_b32", sT2, 112, 0)
        g.salu("s_sub_u32", sT2, sT0, sT2)
        g.salu("s_lshl_b32", sF1, sT2, 14)
        g.salu("s_lshl_b32", sT1, sT1, 6)
        g.salu("s_add_u32", sF1, sF1, sT1)
        g.salu("s_add_u32", sT2, sT0, 16)
        g.salu("s_lshl_b32", sF2, sT2, 14)
        g.salu("s_add_u32", sF2, sF2, sT1)
        make_srd(g, srdAux2, sWo, 512 * 1024)
        vR1 = [va.get() for _ in range(8)]
        vR2 = [va.get() for _ in range(8)]
        late = []
        for jj in range(8):
            late.append(lambda jj=jj: g.bload("buffer_load_ushort", vR1[jj], vRl[jj >> 2], srdAux, sF1, (jj & 3) * 1024))
        for jj in range(8):
            late.append(lambda jj=jj: g.bload("buffer_load_ushort", vR2[jj], vRl[jj >> 2], srdAux2, sF2, (jj & 3) * 1024))
        if typ == 0:
            make_srd(g, srdPhi, sWphi, 32 * 512)
            vPh = [va.get() for _ in range(16)]
            vPa, vSign = va.get(), va.get()
            g.valu("v_bfe_u32", t1, vLane, 3, 2)
            g.valu("v_and_b32", t2, 3, vLane)
            g.valu("v_lshl_add_u32", t1, t1, 2, t2)
            g.valu("v_lshlrev_b32", t1, 1, t1)
            g.valu("v_lshrrev_b32", t2, 5, vLane)
            g.valu("v_lshl_add_u32", vPa, t2, 7, t1)
            g.valu("v_bfe_u32", t1, vLane, 2, 1)
            g.salu("s_mov_b32", sT0, 0x80008000)
            g.valu("v_mul_lo_u32", vSign, t1, sT0)
            g.salu("s_lshl_b32", sT0, sNt, 2)
            g.salu("s_add_u32", sT0, sT0, 2 * j)
            g.salu("s_lshl_b32", sPhiOff, sT0, 9)
            for hl in range(2):
                for jj in range(8):
                    late.append(lambda hl=hl, jj=jj: g.bload("buffer_load_ushort", vPh[hl * 8 + jj], vPa, srdPhi, sPhiOff,
                                                             hl * 512 + (8 * (jj >> 2) + (jj & 3)) * 32))

        acc = [va.get(16, 4) for _ in range(U)]
        X = [va.get(4, 4) for _ in range(2)]
        Wf = [[va.get(4, 4) for _ in range(U)] for _ in range(2)]
        vSS = va.get(2, 2)
        vSum, vSq = vSS[0], vSS[1]
        vSum2, vSq2 = va.get(), va.get()
        vCsA = [va.get(4, 4) for _ in range(U)]
        vSel = va.get(4, 4)
        vUn = [va.get() for _ in range(4)]
        g.valu("v_lshrrev_b32", t1, 4, vLane)
        g.valu("v_xor_b32", t1, t1, vLane)
        g.valu("v_and_b32", t1, 1, t1)
        g.valu("v_cmp_eq_u32", VCC, 0, t1)
        g.valu("v_mov_b32", t1, 0)
        g.valu("v_mov_b32", t2, ONES_BF)
        for q in range(4):
            g.valu("v_cndmask_b32", vSel[q], t1, t2, VCC)
        sHiMask = sOnes
        g.salu("s_mov_b32", sHiMask, 0xFFFF0000)
        for z in [vSum, vSq, vSum2, vSq2]:
            g.valu("v_mov_b32", z, 0)

        def rd_x(T):
            s, t = divmod(T, 4)
            g.ds_read("ds_read_b128", X[T & 1], vXa[t], (s % 3) * A_BUF)

        def rd_w(T, u):
            if "nords" in ABL and T > 0:
                return
            s, t = divmod(T, 4)
            b = s % 3
            base, off = (vWa[t], b * B_BUF) if b < 2 else (vWb[t], 0)
            for half in range(2):
                g.ds_read("ds_read_b64_tr_b16", Wf[T & 1][u][2 * half:2 * half + 2], base,
                          off + half * 4 * 448 + u * 128)

        def relayout_store():
            for n_, (vr, dsto) in enumerate(((vR1, sF1d), (vR2, sF2d))):
                pk = va_tmp[n_]
                for q in range(4):
                    g.valu("v_lshl_or_b32", pk[q], vr[2 * q + 1], 16, vr[2 * q])
                g.bstore("buffer_store_dwordx4", pk, vL16, srdWs, dsto)

        va_tmp = [va.get(4, 4), va.get(4, 4)]

        stamp(g, 3)
        g.wait_vm_tag(("dma", 0))
        g.barrier()
        stamp(g, 4)
        rd_x(0)
        for u in range(U):
            rd_w(0, u)

        for T in range(32):
            s, t = divmod(T, 4)
            cur = T & 1
            last = (T == 31)
            fill = [[] for _ in range(U)]
            if "nodot" not in ABL:
                ops = []
                for r in (2 * j, 2 * j + 1):
                    lo, hi = vUn[2 * (r & 1)], vUn[2 * (r & 1) + 1]
                    ops += [lambda r=r, lo=lo: g.valu("v_lshlrev_b32", lo, 16, X[cur][r]),
                            lambda r=r, hi=hi: g.valu("v_and_b32", hi, sHiMask, X[cur][r]),
                            lambda lo=lo: g.valu("v_add_f32", vSum, vSum, lo),
                            lambda hi=hi: g.valu("v_add_f32", vSum2, vSum2, hi),
                            lambda lo=lo: g.valu("v_fma_f32", vSq, lo, lo, vSq),
                            lambda hi=hi: g.valu("v_fma_f32", vSq2, hi, hi, vSq2)]
                per = 12 // U
                for u in range(U):
                    fill[u] += ops[u * per:(u + 1) * per]
                if t < U:
                    fill[t].insert(0, lambda t=t: g.mfma(vCsA[t], Wf[cur][t], vSel, vCsA[t] if s else 0,
                                                         op="v_mfma_f32_16x16x32_bf16"))
            boundary = (t == 3 and not last)
            for u in range(U):
                if "nomfma" not in ABL or T == 0:
                    g.mfma(acc[u], Wf[cur][u], X[cur], acc[u] if T else 0)
                else:
                    g._wait_for_regs(Wf[cur][u].regs() + X[cur].regs())
                if not boundary and not last:
                    if u == 0:
                        rd_x(T + 1)
                    rd_w(T + 1, u)
                if boundary and u == 1:
                    g.waitcnt(lg=0)
                    g.wait_vm_tag(("dma", s + 1))
                    g.barrier()
                    rd_x(T + 1)
                    for uu in range(U):
                        rd_w(T + 1, uu)
                if boundary and u == 1:
                    assert not side
                    if s + 3 <= 7 and "nodma" not in ABL:
                        side += dma_items(s + 3)
                        sched["n"] = (U - 2) + 3 * U
                        sched["k"] = len(side)
                        sched["i"] = 0
                elif not (boundary and u < 2):
                    did = False
                    if side:
                        i0 = sched["i"]
                        if (i0 + 1) * sched["k"] // sched["n"] > i0 * sched["k"] // sched["n"]:
                            side.pop(0)()
                            did = True
                        sched["i"] += 1
                    if not did and late and T >= 16:
                        late.pop(0)()
                for f in fill[u]:
                    f()
            if T in (7, 15, 23, 31):
                stamp(g, 5 + T // 8)
        assert not side
        while late:
            late.pop(0)()
        vRa, vCa, vRr, vCr = va.get(), va.get(), va.get(), va.get()
        g.valu("v_and_b32", t0, 31, vLane)
        g.valu("v_lshrrev_b32", t2, 5, vLane)
        g.salu("s_lshl_b32", sT0, sI, 5)
        g.valu("v_add_u32", t1, sT0, t0)
        g.valu("v_lshlrev_b32", vRr, 5, t1)
        g.valu("v_add_u32", vRr, RS, vRr)
        g.valu("v_lshl_add_u32", vRa, t2, 3, vRr)
        g.valu("v_lshlrev_b32", vCr, 2, t0)
        g.valu("v_add_u32", vCr, CS + j * 512, vCr)
        g.valu("v_and_b32", t1, 1, vLane)
        g.valu("v_lshlrev_b32", t1, 6, t1)
        g.valu("v_lshrrev_b32", t2, 4, vLane)
        g.valu("v_lshl_add_u32", vCa, t2, 4, t1)
        g.salu("s_lshl_b32", sT0, sI, 7)
        g.salu("s_add_u32", sT0, sT0, CS + j * 512)
        g.valu("v_add_u32", vCa, sT0, vCa)
        g.valu("v_add_f32", vSum, vSum, vSum2)
        g.valu("v_add_f32", vSq, vSq, vSq2)
        g.ds_write("ds_write_b64", vRa, vSS, j * 16)
        g.salu("s_mov_b32", EXEC[0], 0x00030003)
        g.salu("s_mov_b32", EXEC[1], 0x00030003)
        for u in range(U):
            g.ds_write("ds_write_b128", vCa, vCsA[u], u * 1024)
        g.salu("s_mov_b64", EXEC, -1)
        g.waitcnt(lg=0)
        g.barrier()
        stamp(g, 9)
        csr = [va.get(16, 4) for _ in range(2)]
        rsr = csr[0][0:8]
        g.ds_read("ds_read_b128", rsr[0:4], vRr)
        g.ds_read("ds_read_b128", rsr[4:8], vRr, 16)
        cpt = [csr[1][4 * u:4 * u + 4] for u in range(U)]
        for u in range(U):
            for i_ in range(4):
                g.ds_read("ds_read_b32", cpt[u][i_], vCr, u * 1024 + i_ * 128)
        vMean, vVar, vRinv, vNr2 = va.get(), va.get(), va.get(), va.get()
        g.valu("v_add_f32", rsr[0], rsr[0], rsr[2])
        g.valu("v_add_f32", rsr[1], rsr[1], rsr[3])
        g.valu("v_add_f32", rsr[4], rsr[4], rsr[6])
        g.valu("v_add_f32", rsr[5], rsr[5], rsr[7])
        g.valu("v_add_f32", rsr[0], rsr[0], rsr[4])
        g.valu("v_add_f32", rsr[1], rsr[1], rsr[5])
        g.valu("v_mul_f32", vMean, 1.0 / 512, rsr[0])
        g.valu("v_mul_f32", vVar, 1.0 / 512, rsr[1])
        g.valu("v_fma_f32", vVar, Neg(vMean), vMean, vVar)
        MB = X[0]
        g.valu("v_cvt_pk_bf16_f32", MB[0], Neg(vMean), Neg(vMean))
        g.valu("v_cmp_gt_u32", VCC, 32, vLane)
        g.valu("v_mov_b32", MB[2], 0)
        g.valu("v_mov_b32", MB[3], 0)
        g.valu("v_cndmask_b32", MB[0], MB[2], MB[0], VCC)
        g.valu("v_and_b32", MB[1], 0xFFFF, MB[0])
        bf16_round(g, vVar, vVar)
        g.valu("v_add_f32", vVar, 1e-5, vVar)
        bf16_round(g, vVar, vVar)
        g.valu("v_sqrt_f32", vVar, vVar)
        bf16_round(g, vVar, vVar)
        g.valu("v_rcp_f32", vRinv, vVar)
        g.salu("s_mov_b32", sT3, 0x07060302)
        CA = [Wf[0][u] for u in range(U)]
        for u in range(U):
            c = cpt[u]
            g.valu("v_add_f32", c[0], c[0], c[1])
            g.valu("v_add_f32", c[2], c[2], c[3])
            g.valu("v_add_f32", c[0], c[0], c[2])
            g.valu("v_and_b32", c[1], sHiMask, c[0])
            g.valu("v_sub_f32", c[1], c[0], c[1])
            g.valu("v_and_b32", c[2], sHiMask, c[1])
            g.valu("v_sub_f32", c[2], c[1], c[2])
            g.valu("v_perm_b32", CA[u][0], c[1], c[0], sT3)
            g.valu("v_lshrrev_b32", CA[u][1], 16, c[2])
            g.valu("v_mov_b32", CA[u][2], 0)
            g.valu("v_mov_b32", CA[u][3], 0)
            g.mfma(acc[u], CA[u], MB, acc[u])
        g.valu("v_mul_f32", vNr2, -LOG2E, vRinv)
        relayout_store()

        if typ == 1:
            g.salu("s_lshl_b32", sT0, sMt, 2)
            g.salu("s_add_u32", sT0, sT0, sI)
            g.salu("s_mul_i32", sT0, sT0, 112)
            g.salu("s_mul_i32", sT1, sNt, 14)
            g.salu("s_add_u32", sT0, sT0, sT1)
            g.salu("s_add_u32", sT0, sT0, 2 * j)
            g.salu("s_lshl_b32", sOut, sT0, 10)
            e = [va.get() for _ in range(8)]
            pk = [va.get(4, 4) for _ in range(2)]
            g.salu("s_mov_b32", sT2, -LOG2E)
            for u in range(U):
                for m in range(2):
                    rr = range(8 * m, 8 * m + 8)
                    for r in rr:
                        g.valu("v_mul_f32", acc[u][r], vNr2, acc[u][r])
                    for r in rr:
                        g.valu("v_exp_f32", e[r & 7], acc[u][r])
                    for r in rr:
                        g.valu("v_fma_f32", e[r & 7], e[r & 7], sT2, sT2)
                    for r in rr:
                        g.valu("v_rcp_f32", e[r & 7], e[r & 7])
                    for r in rr:
                        g.valu("v_mul_f32", acc[u][r], acc[u][r], e[r & 7])
                    for q in range(4):
                        g.valu("v_cvt_pk_bf16_f32", pk[m][q], acc[u][8 * m + 2 * q], acc[u][8 * m + 2 * q + 1])
                    g.bstore("buffer_store_dwordx4", pk[m], vL16, srdWs, sOut, m * 1024)
                if u + 1 < U:
                    g.salu("s_add_u32", sOut, sOut, 4096)
        else:
            PH = [va.get(4, 4) for _ in range(2)]
            for hl in range(2):
                for q in range(4):
                    g.valu("v_lshl_or_b32", PH[hl][q], vPh[hl * 8 + 2 * q + 1], 16, vPh[hl * 8 + 2 * q])
                    g.valu("v_xor_b32", PH[hl][q], vSign, PH[hl][q])
            for u in (2, 1, 0):
                for r in range(16):
                    g.valu("v_mul_f32", acc[u][r], vRinv, acc[u][r])
            vIm = va.get()
            g.valu("v_and_b32", t0, 31, vLane)
            g.salu("s_lshl_b32", sT0, sI, 5)
            g.valu("v_add_u32", t0, sT0, t0)
            g.valu("v_lshlrev_b32", t0, 6, t0)
            g.valu("v_lshrrev_b32", t1, 5, vLane)
            g.valu("v_lshl_add_u32", vIm, t1, 3, t0)
            assert Wf[1][2].i == Wf[1][1].i + 4
            pk8 = V(Wf[1][1].i, 8)
            D2 = csr
            QF = X
            vMx, vSm = va.get(), va.get()
            for q in range(8):
                g.valu("v_cvt_pk_bf16_f32", pk8[q], acc[2][2 * q], acc[2][2 * q + 1])
            for q in range(4):
                g.ds_write("ds_write_b64", vIm, pk8[2 * q:2 * q + 2], V_IMG + j * 8192 + q * 16)

            def phi(u):
                for hl in range(2):
                    for q in range(4):
                        g.valu("v_cvt_pk_bf16_f32", QF[hl][q], acc[u][8 * hl + 2 * q], acc[u][8 * hl + 2 * q + 1])
                for hl in range(2):
                    g.mfma(D2[hl], PH[hl], QF[hl], 0)

            def softmax(hl):
                D = D2[hl]
                g.valu("v_max3_f32", vMx, D[0], D[1], D[2])
                for r in range(3, 15, 2):
                    g.valu("v_max3_f32", vMx, vMx, D[r], D[r + 1])
                g.valu("v_max_f32", vMx, vMx, D[15])
                g.valu("v_mul_f32", vMx, -LOG2E, vMx)
                for r in range(16):
                    g.valu("v_fma_f32", D[r], D[r], sLog2e, vMx)
                for r in range(16):
                    g.valu("v_exp_f32", D[r], D[r])
                g.valu("v_add_f32", vSm, D[0], D[1])
                for r in range(2, 16):
                    g.valu("v_add_f32", vSm, vSm, D[r])
                g.valu("v_rcp_f32", vSm, vSm)
                for r in range(16):
                    g.valu("v_mul_f32", D[r], vSm, D[r])
                for q in range(8):
                    g.valu("v_cvt_pk_bf16_f32", pk8[q], D[2 * q], D[2 * q + 1])

            sLog2e = sT3
            g.salu("s_mov_b32", sLog2e, LOG2E)
            phi(1)
            for hl in range(2):
                softmax(hl)
                for q in range(4):
                    g.ds_write("ds_write_b64", vIm, pk8[2 * q:2 * q + 2], PHK_IMG + (2 * j + hl) * 8192 + q * 16)
            g.waitcnt(lg=0)
            g.barrier()
            phi(0)
            g.salu("s_lshl_b32", sT0, sMt, 2)
            g.salu("s_add_u32", sT0, sT0, sI)
            g.salu("s_lshl_b32", sT0, sT0, 5)
            g.salu("s_lshl_b32", sT1, sNt, 2)
            g.salu("s_add_u32", sT0, sT0, sT1)
            g.salu("s_add_u32", sT0, sT0, 2 * j)
            g.salu("s_lshl_b32", sOut, sT0, 11)
            g.salu("s_add_u32", sOut, sOut, WS_PQ)
            for hl in range(2):
                softmax(hl)
                for m in range(2):
                    g.bstore("buffer_store_dwordx4", pk8[4 * m:4 * m + 4], vL16, srdWs, sOut, (hl * 2 + m) * 1024)
            if j == 0:
                vKa, vVa, vOne = va.get(), va.get(), va.get()
                g.valu("v_lshrrev_b32", t1, 5, vLane)
                g.valu("v_bfe_u32", t2, vLane, 2, 2)
                g.valu("v_lshl_add_u32", t1, t1, 3, t2)
                g.valu("v_lshlrev_b32", t1, 6, t1)
                g.valu("v_and_b32", t2, 3, vLane)
                g.valu("v_lshl_add_u32", t1, t2, 3, t1)
                g.valu("v_bfe_u32", t2, vLane, 4, 1)
                g.valu("v_lshl_add_u32", t2, t2, 5, t1)
                g.salu("s_lshl_b32", sT0, sI, 13)
                g.valu("v_add_u32", vKa, sT0, t2)
                g.salu("s_lshr_b32", sT0, sI, 1)
                g.salu("s_lshl_b32", sT0, sT0, 13)
                g.salu("s_and_b32", sT1, sI, 1)
                g.salu("s_lshl_b32", sT1, sT1, 5)
                g.salu("s_add_u32", sT0, sT0, sT1)
                g.salu("s_add_u32", sT0, sT0, V_IMG)
                g.valu("v_add_u32", vVa, sT0, t1)
                g.valu("v_mov_b32", vOne, ONES_BF)
                g.salu("s_mov_b32", sMask[0], 0xFFFF0000)
                g.salu("s_mov_b32", sMask[1], 0xFFFF0000)
                KA = [Wf[0][0], Wf[0][1]]
                KB = [Wf[0][2], Wf[1][0]]
                D3 = D2[0]

                def rd_kv(ks):
                    for half in range(2):
                        g.ds_read("ds_read_b64_tr_b16", KA[ks & 1][2 * half:2 * half + 2], vKa, ks * 1024 + half * 256)
                    for half in range(2):
                        g.ds_read("ds_read_b64_tr_b16", KB[ks & 1][2 * half:2 * half + 2], vVa, ks * 1024 + half * 256)

                rd_kv(0)
                for ks in range(8):
                    if ks + 1 < 8:
                        rd_kv(ks + 1)
                    for r in range(4):
                        g.valu("v_cndmask_b32_e64", KB[ks & 1][r], KB[ks & 1][r], vOne, sMask)
                    g.mfma(D3, KA[ks & 1], KB[ks & 1], D3 if ks else 0)
                g.salu("s_lshl_b32", sT0, sMt, 5)
                g.salu("s_lshl_b32", sT1, sNt, 2)
                g.salu("s_add_u32", sT0, sT0, sT1)
                g.salu("s_add_u32", sT0, sT0, sI)
                g.salu("s_lshl_b32", sOut, sT0, 12)
                g.salu("s_add_u32", sOut, sOut, WS_PART)
                for q in range(4):
                    g.bstore("buffer_store_dwordx4", D3[4 * q:4 * q + 4], vL16, srdWs, sOut, q * 1024)
        stamp(g, 10)
        g.waitcnt(vm=0)
        stamp(g, 11)
        stamp(g, 13, True)
        stamp_flush(g, 14, srdWs, sGw, sT0, t0, t1)
        g.raw("s_endpgm")
        maxv = max(maxv, va.hi)
        out.append(g.text())
    out.append("hh_k1_exit:\n    s_endpgm\n")
    return name, "".join(out), maxv


def gen_kr():
    name = "hh_kr_kernel"
    CURK[0] = "kr"
    g = Gen()
    sKarg, sWG = S(0, 2), S(2)
    sWs, srdWs = S(4, 2), S(8, 4)
    sW, sT0, sT1, sOff = S(12), S(13), S(14), S(15)
    g.label(name)
    g.salu("s_cmp_ge_u32", None, sWG, 32)
    g.raw("s_cbranch_scc1 hh_kr_exit")
    g.sload(sWs, sKarg, 72)
    vLane, vT, vL16, vL8 = V(1), V(2), V(3), V(4)
    g.valu("v_lshrrev_b32", vT, 6, V(0))
    g.valu("v_and_b32", vLane, 63, V(0))
    g.valu("v_readfirstlane_b32", sW, vT)
    g.valu("v_lshlrev_b32", vL16, 4, vLane)
    g.lg = []
    g.raw("s_waitcnt lgkmcnt(0)")
    make_srd(g, srdWs, sWs, WS_SIZE)
    g.salu("s_lshl_b32", sT0, sWG, 2)
    g.salu("s_add_u32", sT0, sT0, sW)
    g.salu("s_lshl_b32", sOff, sT0, 10)
    g.salu("s_add_u32", sOff, sOff, WS_PART)
    P = [V(8 + 4 * m, 4) for m in range(16)]
    for m in range(16):
        g.bload("buffer_load_dwordx4", P[m], vL16, srdWs, sOff)
        if m < 15:
            g.salu("s_add_u32", sOff, sOff, 32 * 4096)
    for m in range(1, 16):
        for r in range(4):
            g.valu("v_add_f32", P[0][r], P[0][r], P[m][r])
    pk = V(6, 2)
    g.valu("v_cvt_pk_bf16_f32", pk[0], P[0][0], P[0][1])
    g.valu("v_cvt_pk_bf16_f32", pk[1], P[0][2], P[0][3])
    g.salu("s_lshl_b32", sT0, sWG, 11)
    g.salu("s_lshr_b32", sT1, sW, 1)
    g.salu("s_lshl_b32", sT1, sT1, 10)
    g.salu("s_add_u32", sT0, sT0, sT1)
    g.salu("s_and_b32", sT1, sW, 1)
    g.salu("s_lshl_b32", sT1, sT1, 3)
    g.salu("s_add_u32", sT0, sT0, sT1)
    g.salu("s_add_u32", sOff, sT0, WS_KV)
    g.bstore("buffer_store_dwordx2", pk, vL16, srdWs, sOff)
    g.raw("s_endpgm")
    return name, g.text() + "hh_kr_exit:\n    s_endpgm\n", 72


K2_LDS = 48 * 1024


def gen_k2(NS=28):
    name = "hh_k2_kernel"
    CURK[0] = "k2"
    g = Gen()
    out = []
    sKarg, sWG = S(0, 2), S(2)
    sX, sWs, sOutp, sDbg = S(4, 2), S(6, 2), S(8, 2), S(10, 2)
    srdX, srdO, srdWs, srdDbg = S(12, 4), S(16, 4), S(20, 4), S(44, 4)
    sW, sMt, sNt, sT0, sT1, sT2 = (S(24 + k) for k in range(6))
    g.label(name)
    g.salu("s_cmp_ge_u32", None, sWG, 256)
    g.raw("s_cbranch_scc1 hh_k2_exit")
    stamp(g, 0)
    stamp(g, 12, True)
    g.sload(sWs, sKarg, 72)
    g.sload(sX, sKarg, 0)
    g.sload(S(8, 4), sKarg, 56)
    va = VAlloc(1, 256)
    vLane, vT, vL16, vZero = va.get(), va.get(), va.get(), va.get()
    g.valu("v_lshrrev_b32", vT, 6, V(0))
    g.valu("v_and_b32", vLane, 63, V(0))
    g.valu("v_readfirstlane_b32", sW, vT)
    g.valu("v_lshlrev_b32", vL16, 4, vLane)
    g.valu("v_mov_b32", vZero, 0)
    g.salu("s_and_b32", sT0, sWG, 7)
    g.salu("s_lshl_b32", sT0, sT0, 2)
    g.salu("s_bfe_u32", sT1, sWG, (2 << 16) | 3)
    g.salu("s_or_b32", sMt, sT0, sT1)
    g.salu("s_lshr_b32", sNt, sWG, 5)
    g.salu("s_cmp_eq_u32", None, sW, 4)
    g.raw("s_cbranch_scc1 hh_k2_red")
    base_state = g
    out.append(g.text())

    g = base_state.fork()
    sH = [S(32), S(33)]
    sWn = [S(34), S(35)]
    sPQ = [S(36), S(37)]
    sWoN = [S(38), S(39)]
    sKV, sCnt, sPoll = S(40), S(41), S(42)
    g.salu("s_mul_i32", sT2, sW, 28)
    for sb in range(2):
        g.salu("s_lshl_b32", sT0, sMt, 1)
        if sb:
            g.salu("s_add_u32", sT0, sT0, sb)
        g.salu("s_mul_i32", sT1, sT0, 112)
        g.salu("s_add_u32", sT1, sT1, sT2)
        g.salu("s_lshl_b32", sH[sb], sT1, 10)
    for nb in range(2):
        g.salu("s_lshl_b32", sT0, sNt, 1)
        if nb:
            g.salu("s_add_u32", sT0, sT0, nb)
        g.salu("s_mul_i32", sT0, sT0, 144)
        g.salu("s_add_u32", sT1, sT0, sT2)
        g.salu("s_lshl_b32", sT1, sT1, 10)
        g.salu("s_add_u32", sWn[nb], sT1, WS_WF)
    g.lg = []
    g.raw("s_waitcnt lgkmcnt(0)")
    make_srd(g, srdWs, sWs, WS_SIZE)
    win = {}

    def ld(dst, sreg, off, mods=""):
        w0 = win.get(sreg.i, 0)
        if not (w0 <= off < w0 + 4096):
            g.salu("s_add_u32", sreg, sreg, off - w0)
            win[sreg.i] = w0 = off
        g.bload("buffer_load_dwordx4", dst, vL16, srdWs, sreg, off - w0, mods=mods)

    acc = [[va.get(16, 4) for sb in range(2)] for nb in range(2)]
    D = [va.get(16, 4) for _ in range(2)]
    O = [va.get(4, 4) for _ in range(2)]
    vRc, vPoll, vXo = va.get(), va.get(), va.get()
    XR = va.get(8, 4)
    slots = [va.get(4, 4) for _ in range(NS)]
    reqs = []
    for k in range(28):
        reqs += [(sWn[0], k * 1024), (sH[0], k * 1024), (sH[1], k * 1024), (sWn[1], k * 1024)]
    for h in range(8):
        reqs += [(sKV, h * 2048, "sc1"), (sPQ[0], h * 2048), (sKV, h * 2048 + 1024, "sc1"), (sPQ[0], h * 2048 + 1024),
                 (sPQ[1], h * 2048), (sPQ[1], h * 2048 + 1024), (sWoN[0], h * 1024), (sWoN[1], h * 1024)]
    issued = [0]
    gate = [112]

    def slot(q):
        return slots[q % NS]

    def issue_upto(n):
        n = min(n, len(reqs), gate[0])
        while issued[0] < n:
            q = issued[0]
            ld(slot(q), *reqs[q])
            issued[0] += 1

    stamp(g, 1)
    issue_upto(NS)
    stamp(g, 2)
    make_srd(g, srdX, sX, 2048 * 1024)
    make_srd(g, srdO, sOutp, 2048 * 1024)
    make_srd(g, srdDbg, sDbg, 256)
    for sb in range(2):
        g.salu("s_lshl_b32", sT0, sMt, 1)
        if sb:
            g.salu("s_add_u32", sT0, sT0, sb)
        g.salu("s_lshl_b32", sT1, sT0, 5)
        g.salu("s_lshl_b32", sT2, sW, 3)
        g.salu("s_add_u32", sT1, sT1, sT2)
        g.salu("s_lshl_b32", sT1, sT1, 11)
        g.salu("s_add_u32", sPQ[sb], sT1, WS_PQ)
    for nb in range(2):
        g.salu("s_lshl_b32", sT0, sNt, 1)
        if nb:
            g.salu("s_add_u32", sT0, sT0, nb)
        g.salu("s_mul_i32", sT0, sT0, 144)
        g.salu("s_lshl_b32", sT2, sW, 3)
        g.salu("s_add_u32", sT1, sT0, sT2)
        g.salu("s_add_u32", sT1, sT1, 112)
        g.salu("s_lshl_b32", sT1, sT1, 10)
        g.salu("s_add_u32", sWoN[nb], sT1, WS_WF)
    g.salu("s_lshl_b32", sT1, sW, 14)
    g.salu("s_add_u32", sKV, sT1, WS_KV)
    g.salu("s_lshl_b32", sCnt, sW, 6)
    t0, t1 = vRc, vPoll
    g.salu("s_and_b32", sT0, sW, 1)
    g.salu("s_lshl_b32", sT0, sT0, 5)
    g.salu("s_lshl_b32", sT1, sMt, 6)
    g.salu("s_add_u32", sT0, sT0, sT1)
    g.valu("v_and_b32", t0, 31, vLane)
    g.valu("v_add_u32", t0, sT0, t0)
    g.valu("v_lshlrev_b32", vXo, 10, t0)
    g.salu("s_lshr_b32", sT0, sW, 1)
    g.salu("s_lshl_b32", sT0, sT0, 6)
    g.salu("s_lshl_b32", sT1, sNt, 7)
    g.salu("s_add_u32", sT0, sT0, sT1)
    g.valu("v_add_u32", vXo, sT0, vXo)
    g.valu("v_lshrrev_b32", t1, 5, vLane)
    g.valu("v_lshl_add_u32", vXo, t1, 3, vXo)

    for k in range(28):
        b = 4 * k
        Wn0, H0, H1, Wn1 = (slot(b + i) for i in range(4))
        g.mfma(acc[0][0], Wn0, H0, acc[0][0] if k else 0)
        g.mfma(acc[0][1], Wn0, H1, acc[0][1] if k else 0)
        issue_upto(b + 1 + NS)
        g.mfma(acc[1][0], Wn1, H0, acc[1][0] if k else 0)
        issue_upto(b + 2 + NS)
        g.mfma(acc[1][1], Wn1, H1, acc[1][1] if k else 0)
        issue_upto(b + 4 + NS)
        if k == 10:
            g.bload("buffer_load_dword", vPoll, vZero, srdDbg, sCnt, mods="sc1")
        if k == 20:
            g.valu("v_readfirstlane_b32", sPoll, vPoll)
            g.salu("s_cmp_ge_u32", None, sPoll, 32)
            g.raw("s_cbranch_scc1 hh_k2_kvok")
            g.raw(f"s_mov_b32 {sT2}, 0")
            g.label("hh_k2_spin")
            g.raw("buffer_inv sc1")
            g.raw(f"buffer_load_dword {vPoll}, {vZero}, {srdDbg}, {sCnt} offen sc1")
            g.raw(f"s_add_u32 {sT2}, {sT2}, 1")
            g.raw("s_waitcnt vmcnt(0)")
            g.raw(f"s_cmp_ge_u32 {sT2}, 0x10000")
            g.raw("s_cbranch_scc1 hh_k2_kvok")
            g.raw(f"v_readfirstlane_b32 {sPoll}, {vPoll}")
            g.raw("s_nop 3")
            g.raw(f"s_cmp_ge_u32 {sPoll}, 32")
            g.raw("s_cbranch_scc0 hh_k2_spin")
            g.label("hh_k2_kvok")
            gate[0] = 10 ** 9
            for q in range(4):
                g.bload("buffer_load_dwordx2", XR[2 * q:2 * q + 2], vXo, srdX, 0, q * 16)
        if k in (0, 6, 13, 20, 27):
            stamp(g, 3 + (0, 6, 13, 20, 27).index(k))
    for h in range(8):
        b = 112 + 8 * h
        KV0, P00, KV1, P01, P10, P11, WO0, WO1 = (slot(b + i) for i in range(8))
        g.mfma(D[0], KV0, P00, 0)
        g.mfma(D[0], KV1, P01, D[0])
        g.mfma(D[1], KV0, P10, 0)
        g.mfma(D[1], KV1, P11, D[1])
        issue_upto(b + 6 + NS)
        for sb in range(2):
            g.valu("v_add_f32", vRc, 1e-6, D[sb][8])
            g.valu("v_rcp_f32", vRc, vRc)
            for r in range(8):
                g.valu("v_mul_f32", D[sb][r], vRc, D[sb][r])
            for q in range(4):
                g.valu("v_cvt_pk_bf16_f32", O[sb][q], D[sb][2 * q], D[sb][2 * q + 1])
            g.mfma(acc[0][sb], WO0, O[sb], acc[0][sb])
            g.mfma(acc[1][sb], WO1, O[sb], acc[1][sb])
        issue_upto(b + 8 + NS)
        if h in (3, 7):
            stamp(g, 8 + h // 4)
    g.waitcnt(vm=0)
    for w in range(1, 4):
        g.salu("s_cmp_eq_u32", None, sW, w)
        g.raw(f"s_cbranch_scc1 hh_k2_ep{w}")
    out.append(g.text())
    ep_state = g
    for w in range(4):
        g = ep_state.fork()
        g.label(f"hh_k2_ep{w}")
        quads = [(0, 0), (0, 1), (1, 0), (1, 1)]
        for Q in range(4):
            if Q == w:
                continue
            k_ = (w - Q - 1) % 4
            nb, sb = quads[Q]
            for q in range(4):
                g.ds_write("ds_write_b128", vL16, acc[nb][sb][4 * q:4 * q + 4], (Q * 3 + k_) * 4096 + q * 1024)
        own = acc[quads[w][0]][quads[w][1]]
        tx = D[0]
        for r in range(16):
            src = XR[r >> 1]
            if r & 1:
                g.valu("v_and_b32", tx[r], 0xFFFF0000, src)
            else:
                g.valu("v_lshlrev_b32", tx[r], 16, src)
        for r in range(16):
            g.valu("v_add_f32", own[r], own[r], tx[r])
        g.waitcnt(lg=0)
        g.barrier()
        RD = [V(slots[4 * k_].i, 16) for k_ in range(3)]
        for k_ in range(3):
            for q in range(4):
                g.ds_read("ds_read_b128", RD[k_][4 * q:4 * q + 4], vL16, (w * 3 + k_) * 4096 + q * 1024)
        for r in range(16):
            g.valu("v_add_f32", own[r], own[r], RD[0][r])
        for r in range(16):
            g.valu("v_add_f32", RD[1][r], RD[1][r], RD[2][r])
        for r in range(16):
            g.valu("v_add_f32", own[r], own[r], RD[1][r])
        po = D[1]
        for q in range(8):
            g.valu("v_cvt_pk_bf16_f32", po[q], own[2 * q], own[2 * q + 1])
        for i_ in range(2):
            g.valu("v_permlane32_swap_b32", [po[i_], po[2 + i_]])
            g.valu("v_permlane32_swap_b32", [po[4 + i_], po[6 + i_]])
        g.valu("v_lshrrev_b32", vRc, 5, vLane)
        g.valu("v_lshl_add_u32", vXo, vRc, 3, vXo)
        g.bstore("buffer_store_dwordx4", po[0:4], vXo, srdO, 0)
        g.bstore("buffer_store_dwordx4", po[4:8], vXo, srdO, 0, 32)
        stamp(g, 10)
        if STAMPS == "k2":
            g.waitcnt(vm=0)
        stamp(g, 11)
        stamp(g, 13, True)
        g.salu("s_lshl_b32", sT2, sWG, 2)
        g.salu("s_add_u32", sT2, sT2, sW)
        stamp_flush(g, 14, srdWs, sT2, sT0, vRc, vPoll)
        g.raw("s_endpgm")
        out.append(g.text())

    g = base_state.fork()
    g.label("hh_k2_red")
    g.salu("s_cmp_ge_u32", None, sWG, 128)
    g.raw("s_cbranch_scc1 hh_k2_exit")
    g.lg = []
    g.raw("s_waitcnt lgkmcnt(0)")
    make_srd(g, srdWs, sWs, WS_SIZE)
    make_srd(g, srdDbg, sDbg, 256)
    sOff = S(32)
    vA = V(6)
    g.valu("v_and_b32", vA, 31, vLane)
    g.valu("v_lshlrev_b32", vA, 4, vA)
    g.valu("v_lshrrev_b32", vT, 5, vLane)
    g.valu("v_lshl_add_u32", vT, vT, 10, vA)
    g.salu("s_lshr_b32", sT0, sWG, 1)
    g.salu("s_lshl_b32", sOff, sT0, 11)
    g.salu("s_and_b32", sT1, sWG, 1)
    g.salu("s_lshl_b32", sT1, sT1, 9)
    g.salu("s_add_u32", sOff, sOff, sT1)
    g.salu("s_add_u32", sOff, sOff, WS_PART)
    P = [V(12 + 4 * m, 4) for m in range(16)]
    for m in range(16):
        g.bload("buffer_load_dwordx4", P[m], vT, srdWs, sOff)
        if m < 15:
            g.salu("s_add_u32", sOff, sOff, 32 * 4096)
    for st in (1, 2, 4, 8):
        for m in range(0, 16, 2 * st):
            for r in range(4):
                g.valu("v_add_f32", P[m][r], P[m][r], P[m + st][r])
    pk = V(8, 4)
    g.valu("v_cvt_pk_bf16_f32", pk[0], P[0][0], P[0][1])
    g.valu("v_cvt_pk_bf16_f32", pk[1], P[0][2], P[0][3])
    g.valu("v_mov_b32", pk[2], pk[0])
    g.valu("v_mov_b32", pk[3], pk[1])
    g.valu("v_permlane32_swap_b32", [pk[0], pk[2]])
    g.valu("v_permlane32_swap_b32", [pk[1], pk[3]])
    g.salu("s_lshl_b32", sOff, sWG, 9)
    g.salu("s_add_u32", sOff, sOff, WS_KV)
    g.salu("s_mov_b32", EXEC[1], 0)
    g.bstore("buffer_store_dwordx4", pk, vA, srdWs, sOff, mods="sc1")
    g.valu("v_mov_b32", vT, 1)
    g.salu("s_lshr_b32", sT0, sWG, 5)
    g.salu("s_lshl_b32", sT0, sT0, 6)
    g.waitcnt(vm=0)
    g.salu("s_mov_b64", EXEC, 1)
    g.bstore("buffer_atomic_add", vT, vZero, srdDbg, sT0, mods="sc1")
    g.raw("s_endpgm")
    out.append(g.text())
    return name, "".join(out) + "hh_k2_exit:\n    s_endpgm\n", va.hi


def descriptor(name, nv):
    nv4 = (nv + 3) // 4 * 4
    return f""".amdhsa_kernel {name}
  .amdhsa_next_free_vgpr {nv4}
  .amdhsa_next_free_sgpr 102
  .amdhsa_accum_offset {nv4}
  .amdhsa_group_segment_fixed_size 0
  .amdhsa_kernarg_size 80
  .amdhsa_user_sgpr_count 2
  .amdhsa_user_sgpr_kernarg_segment_ptr 1
  .amdhsa_system_sgpr_workgroup_id_x 1
.end_amdhsa_kernel
"""


def main(path):
    ks = [gen_k1(), gen_k2()]
    launches = [
        f"; @launch kernel=hh_k1_kernel grid=(256,1,1) block=(512,1,1) lds={K1_LDS}",
        f"; @launch kernel=hh_k2_kernel grid=(256,1,1) block=(320,1,1) lds={K2_LDS}",
    ]
    s = "; hedgehog linear attention + SiLU FFN parallel block (generated by my own generator script)\n"
    s += "\n".join(launches) + "\n"
    s += '.amdgcn_target "amdgcn-amd-amdhsa--gfx950"\n.text\n'
    for name, txt, nv in ks:
        s += f".globl {name}\n.p2align 8\n.type {name},@function\n" + txt
    s += '.section .rodata,"a"\n'
    for name, txt, nv in ks:
        s += ".p2align 6\n" + descriptor(name, nv)
        print(name, "vgprs", nv, "lines", txt.count("\n"), file=sys.stderr)
    open(path, "w").write(s)


if __name__ == "__main__":
    if len(sys.argv) > 2 and sys.argv[2].startswith("stamps"):
        STAMPS = sys.argv[2][6:] or "k1"
        ABL.update(sys.argv[3:])
    main(sys.argv[1] if len(sys.argv) > 1 else
         "parallel_sum__linear_kernel_hedgehog__dense_activation_silu__prompt.s")
```

```python
import sys
from asmlib import *

WS_HF = 0x0
WS_PQ = 0x700000
WS_WF = 0xB00000
WS_PART = 0xE00000
WS_KV = 0x1000000
WS_FLG = 0x1010000
WS_SIZE = 0x1100000

LOG2E = 1.4426950408889634
ONES_BF = 0x3F803F80

A_BUF = 16384
B_BASE = 49152
B_BUF = 28672
RS = 135168
CS = RS + 4096
K1_LDS = RS + 4096 + 7 * 1024
PHK_IMG = 0
V_IMG = 32768


def make_srd(g, srd, base, nbytes, off=None):
    if off is None:
        g.salu("s_mov_b32", srd[0], base[0])
        g.salu("s_mov_b32", srd[1], base[1])
    else:
        g.salu("s_add_u32", srd[0], base[0], off)
        g.salu("s_addc_u32", srd[1], base[1], 0)
    g.salu("s_mov_b32", srd[2], nbytes)
    g.salu("s_mov_b32", srd[3], 0x20000)


STAMPS = False
import os
STM = os.environ.get("STM", "sc0 sc1")
ABL = set()
WS_DBG = 0x1080000


CURK = [None]


def stamp(g, idx, real=False):
    if STAMPS == CURK[0]:
        g.raw(f"{'s_memrealtime' if real else 's_memtime'} s[{72 + 2 * idx}:{73 + 2 * idx}]")


def stamp_flush(g, n, srdWs, sGw, sT, vtmp, vtmp2):
    if STAMPS != CURK[0]:
        return
    g.raw("s_waitcnt lgkmcnt(0)")
    g.salu("s_lshl_b32", sT, sGw, 6)
    g.salu("s_add_u32", sT, sT, WS_DBG)
    g.valu("v_mov_b32", vtmp2, 0)
    for i in range(n):
        g.valu("v_mov_b32", vtmp, S(72 + 2 * i))
        g.bstore("buffer_store_dword", vtmp, vtmp2, srdWs, sT, 4 * i)


def bf16_round(g, dst, src):
    g.valu("v_cvt_pk_bf16_f32", dst, src, src)
    g.valu("v_lshlrev_b32", dst, 16, dst)


def gen_k1():
    name = "hh_k1_kernel"
    CURK[0] = "k1"
    g = Gen()
    out = []
    sKarg, sWG = S(0, 2), S(2)
    sX, sWqkv, sWphi, sWo, sW1, sW2, sWs = S(4, 2), S(6, 2), S(8, 2), S(10, 2), S(12, 2), S(14, 2), S(16, 2)
    srdX, srdW, srdWs, srdAux, srdAux2, srdPhi = S(20, 4), S(24, 4), S(28, 4), S(32, 4), S(36, 4), S(40, 4)
    sW, sI, sJ, sMt, sNt, sType, sXcd, sIdx = (S(44 + k) for k in range(8))
    sT0, sT1, sT2, sT3 = S(52), S(53), S(54), S(55)
    sKA, sKB, sAm0, sBm0, sOnes, sGw = S(56), S(57), S(58), S(59), S(60), S(61)
    sMask = S(62, 2)
    sF1, sF2, sF1d, sF2d = S(64), S(65), S(66), S(67)
    sOut = S(68)
    sPhiOff = S(69)

    g.label(name)
    g.salu("s_cmp_ge_u32", None, sWG, 256)
    g.raw("s_cbranch_scc1 hh_k1_exit")
    stamp(g, 0)
    stamp(g, 12, True)
    g.sload(S(4, 4), sKarg, 0)
    g.sload(S(8, 4), sKarg, 16)
    g.sload(S(12, 4), sKarg, 40)
    g.sload(S(16, 2), sKarg, 72)
    vTid = V(0)
    vLane, vT = V(1), V(2)
    g.valu("v_lshrrev_b32", vT, 6, vTid)
    g.valu("v_and_b32", vLane, 63, vTid)
    g.valu("v_readfirstlane_b32", sW, vT)
    g.salu("s_and_b32", sXcd, sWG, 7)
    g.salu("s_lshr_b32", sIdx, sWG, 3)
    g.salu("s_and_b32", sT0, sXcd, 1)
    g.salu("s_lshl_b32", sT0, sT0, 3)
    g.salu("s_and_b32", sT1, sIdx, 7)
    g.salu("s_or_b32", sMt, sT0, sT1)
    g.salu("s_lshr_b32", sType, sIdx, 4)
    g.salu("s_lshr_b32", sT0, sXcd, 1)
    g.salu("s_lshl_b32", sT0, sT0, 1)
    g.salu("s_bfe_u32", sT1, sIdx, (1 << 16) | 3)
    g.salu("s_or_b32", sNt, sT0, sT1)
    g.salu("s_and_b32", sI, sW, 3)
    g.salu("s_lshr_b32", sJ, sW, 2)
    g.salu("s_lshl_b32", sT0, sWG, 3)
    g.salu("s_add_u32", sGw, sT0, sW)
    g.salu("s_mov_b32", sOnes, ONES_BF)
    g.salu("s_lshl_b32", sT0, sType, 1)
    g.salu("s_add_u32", sT0, sT0, sJ)
    g.salu("s_cmp_eq_u32", None, sT0, 1)
    g.raw("s_cbranch_scc1 hh_k1_r1")
    g.salu("s_cmp_eq_u32", None, sT0, 2)
    g.raw("s_cbranch_scc1 hh_k1_r2")
    g.salu("s_cmp_eq_u32", None, sT0, 3)
    g.raw("s_cbranch_scc1 hh_k1_r3")
    out.append(g.text())
    base_state = g
    maxv = 0

    for role in range(4):
        typ, j = role >> 1, role & 1
        g = base_state.fork()
        g.label(f"hh_k1_r{role}")
        va = VAlloc(5, 256)
        U = 4 if (typ == 1 and j == 0) else 3
        ldw = 3584 if typ else 3072
        nB = 4 if j == 1 else 3
        vA = [va.get() for _ in range(2)]
        vB = [va.get() for _ in range(nB)]
        t0, t1, t2, t3 = va.get(), va.get(), va.get(), va.get()
        g.valu("v_lshrrev_b32", t0, 3, vLane)
        g.valu("v_lshrrev_b32", t1, 4, vLane)
        g.valu("v_and_b32", t2, 7, vLane)
        g.salu("s_lshl_b32", sT0, sW, 4)
        for e in range(2):
            g.valu("v_add_u32", t3, sT0, t0)
            if e:
                g.valu("v_add_u32", t3, 8, t3)
            g.valu("v_lshlrev_b32", vA[e], 10, t3)
            g.valu("v_xor_b32", t3, t2, t1)
            if e:
                g.valu("v_xor_b32", t3, 4, t3)
            g.valu("v_lshl_add_u32", vA[e], t3, 4, vA[e])
        g.salu("s_add_u32", sT1, sW, 4)
        g.salu("s_and_b32", sT1, sT1, 7)
        g.salu("s_lshl_b32", sBm0, sT1, 10)
        g.salu("s_add_u32", sBm0, sBm0, B_BASE)
        g.salu("s_lshl_b32", sAm0, sW, 11)
        g.salu("s_lshl_b32", sT1, sT1, 6)
        for e in range(nB):
            g.valu("v_add_u32", t0, sT1, vLane)
            if e:
                g.valu("v_add_u32", t0, 512 * e, t0)
            g.valu("v_mul_u32_u24", t1, 2341, t0)
            g.valu("v_lshrrev_b32", t1, 16, t1)
            g.valu("v_mul_u32_u24", t2, 28, t1)
            g.valu("v_sub_u32", t2, t0, t2)
            g.valu("v_mul_u32_u24", vB[e], ldw, t1)
            if typ == 1:
                g.valu("v_lshl_add_u32", vB[e], t2, 4, vB[e])
            else:
                g.valu("v_lshrrev_b32", t3, 3, t2)
                g.valu("v_lshl_add_u32", vB[e], t3, 10, vB[e])
                g.valu("v_and_b32", t3, 7, t2)
                g.valu("v_lshl_add_u32", vB[e], t3, 4, vB[e])
                g.valu("v_cmp_le_u32", VCC, 24, t2)
                g.valu("v_mov_b32", t3, 0x80000000)
                g.valu("v_cndmask_b32", vB[e], vB[e], t3, VCC)
        g.salu("s_mov_b32", sKA, 0)
        g.salu("s_mov_b32", sKB, 0)
        g.lg = []
        g.raw("s_waitcnt lgkmcnt(0)")
        g.salu("s_lshl_b32", sT0, sMt, 17)
        make_srd(g, srdX, sX, 131072, sT0)
        if typ == 0:
            g.salu("s_lshl_b32", sT0, sNt, 7)
            make_srd(g, srdW, sWqkv, 512 * 3072 - 7 * 128, sT0)
        else:
            g.salu("s_mul_i32", sT0, sNt, 448)
            make_srd(g, srdW, sW1, 512 * 3584 - 7 * 448, sT0)
        make_srd(g, srdWs, sWs, WS_SIZE)

        def dma_items(stage):
            b = stage % 3
            items = []
            for e in range(2):
                def f(e=e):
                    g.salu("s_mov_b32", sKA, stage * 128)
                    g.salu("s_add_u32", M0, sAm0, b * A_BUF + e * 1024)
                    g.dma(vA[e], srdX, sKA, tag=("dma", stage))
                items.append(f)
            for e in range(nB):
                def f(e=e):
                    g.salu("s_mov_b32", sKB, stage * 64 * ldw)
                    g.salu("s_add_u32", M0, sBm0, b * B_BUF + e * 8192)
                    g.dma(vB[e], srdW, sKB, tag=("dma", stage))
                items.append(f)
            return items

        def issue_dma(stage):
            for f in dma_items(stage):
                f()

        stamp(g, 1)
        issue_dma(0)
        g.barrier()
        stamp(g, 2)

        vXa = [va.get() for _ in range(4)]
        vWa = [va.get() for _ in range(4)]
        vWb = [va.get() for _ in range(4)]
        g.valu("v_and_b32", t0, 31, vLane)
        g.salu("s_lshl_b32", sT0, sI, 5)
        g.valu("v_add_u32", t0, sT0, t0)
        g.valu("v_lshlrev_b32", t0, 7, t0)
        g.valu("v_lshrrev_b32", t1, 5, vLane)
        g.valu("v_bfe_u32", t2, vLane, 1, 3)
        g.valu("v_xor_b32", t1, t1, t2)
        g.valu("v_lshl_add_u32", t0, t1, 4, t0)
        g.valu("v_lshrrev_b32", t1, 5, vLane)
        g.valu("v_bfe_u32", t2, vLane, 2, 2)
        g.valu("v_lshl_add_u32", t1, t1, 3, t2)
        g.valu("v_mul_u32_u24", t1, 448, t1)
        g.valu("v_bfe_u32", t2, vLane, 4, 1)
        g.valu("v_lshl_add_u32", t1, t2, 5, t1)
        g.valu("v_and_b32", t2, 3, vLane)
        g.valu("v_lshl_add_u32", t1, t2, 3, t1)
        g.valu("v_add_u32", t1, B_BASE + j * 64, t1)
        for t in range(4):
            g.salu("s_add_u32", sT0, sI, t + 2 * j)
            g.salu("s_and_b32", sT0, sT0, 3)
            g.salu("s_lshl_b32", sT1, sT0, 5)
            g.valu("v_xor_b32", vXa[t], sT1, t0)
            g.salu("s_mul_i32", sT1, sT0, 16 * 448)
            g.valu("v_add_u32", vWa[t], sT1, t1)
            g.valu("v_add_u32", vWb[t], 2 * B_BUF, vWa[t])

        issue_dma(1)
        side = []
        side += dma_items(2)
        sched = {"n": 3 * U, "k": len(side), "i": 0}
        vRl = [va.get(), va.get()]
        g.valu("v_lshrrev_b32", t1, 5, vLane)
        g.valu("v_and_b32", t2, 31, vLane)
        g.valu("v_lshlrev_b32", t2, 1, t2)
        g.valu("v_lshl_add_u32", vRl[0], t1, 12, t2)
        g.valu("v_add_u32", vRl[1], 8192, vRl[0])
        vL16 = va.get()
        g.valu("v_lshlrev_b32", vL16, 4, vLane)
        g.salu("s_lshr_b32", sT0, sGw, 4)
        g.salu("s_and_b32", sT1, sGw, 15)
        g.salu("s_mul_i32", sF1d, sT1, 144)
        g.salu("s_add_u32", sF1d, sF1d, sT0)
        g.salu("s_lshl_b32", sF1d, sF1d, 10)
        g.salu("s_add_u32", sF1d, sF1d, WS_WF)
        g.salu("s_add_u32", sF2d, sF1d, 128 * 1024)
        g.salu("s_cmp_lt_u32", None, sGw, 256)
        g.salu("s_cselect_b32", sF2d, sF2d, 0x7FFF0000)
        g.salu("s_cmp_ge_u32", None, sT0, 112)
        g.salu("s_cselect_b32", srdAux[0], sWo[0], sW2[0])
        g.salu("s_cselect_b32", srdAux[1], sWo[1], sW2[1])
        g.salu("s_mov_b32", sT3, 1792 * 1024)
        g.salu("s_cselect_b32", srdAux[2], 512 * 1024, sT3)
        g.salu("s_mov_b32", srdAux[3], 0x20000)
        g.salu("s_cselect_b32", sT2, 112, 0)
        g.salu("s_sub_u32", sT2, sT0, sT2)
        g.salu("s_lshl_b32", sF1, sT2, 14)
        g.salu("s_lshl_b32", sT1, sT1, 6)
        g.salu("s_add_u32", sF1, sF1, sT1)
        g.salu("s_add_u32", sT2, sT0, 16)
        g.salu("s_lshl_b32", sF2, sT2, 14)
        g.salu("s_add_u32", sF2, sF2, sT1)
        make_srd(g, srdAux2, sWo, 512 * 1024)
        vR1 = [va.get() for _ in range(8)]
        vR2 = [va.get() for _ in range(8)]
        late = []
        for jj in range(8):
            late.append(lambda jj=jj: g.bload("buffer_load_ushort", vR1[jj], vRl[jj >> 2], srdAux, sF1, (jj & 3) * 1024))
        for jj in range(8):
            late.append(lambda jj=jj: g.bload("buffer_load_ushort", vR2[jj], vRl[jj >> 2], srdAux2, sF2, (jj & 3) * 1024))
        if typ == 0:
            make_srd(g, srdPhi, sWphi, 32 * 512)
            vPh = [va.get() for _ in range(16)]
            vPa, vSign = va.get(), va.get()
            g.valu("v_bfe_u32", t1, vLane, 3, 2)
            g.valu("v_and_b32", t2, 3, vLane)
            g.valu("v_lshl_add_u32", t1, t1, 2, t2)
            g.valu("v_lshlrev_b32", t1, 1, t1)
            g.valu("v_lshrrev_b32", t2, 5, vLane)
            g.valu("v_lshl_add_u32", vPa, t2, 7, t1)
            g.valu("v_bfe_u32", t1, vLane, 2, 1)
            g.salu("s_mov_b32", sT0, 0x80008000)
            g.valu("v_mul_lo_u32", vSign, t1, sT0)
            g.salu("s_lshl_b32", sT0, sNt, 2)
            g.salu("s_add_u32", sT0, sT0, 2 * j)
            g.salu("s_lshl_b32", sPhiOff, sT0, 9)
            for hl in range(2):
                for jj in range(8):
                    late.append(lambda hl=hl, jj=jj: g.bload("buffer_load_ushort", vPh[hl * 8 + jj], vPa, srdPhi, sPhiOff,
                                                             hl * 512 + (8 * (jj >> 2) + (jj & 3)) * 32))

        acc = [va.get(16, 4) for _ in range(U)]
        X = [va.get(4, 4) for _ in range(2)]
        Wf = [[va.get(4, 4) for _ in range(U)] for _ in range(2)]
        vSS = va.get(2, 2)
        vSum, vSq = vSS[0], vSS[1]
        vSum2, vSq2 = va.get(), va.get()
        vCsA = [va.get(4, 4) for _ in range(U)]
        vSel = va.get(4, 4)
        vUn = [va.get() for _ in range(4)]
        g.valu("v_lshrrev_b32", t1, 4, vLane)
        g.valu("v_xor_b32", t1, t1, vLane)
        g.valu("v_and_b32", t1, 1, t1)
        g.valu("v_cmp_eq_u32", VCC, 0, t1)
        g.valu("v_mov_b32", t1, 0)
        g.valu("v_mov_b32", t2, ONES_BF)
        for q in range(4):
            g.valu("v_cndmask_b32", vSel[q], t1, t2, VCC)
        sHiMask = sOnes
        g.salu("s_mov_b32", sHiMask, 0xFFFF0000)
        for z in [vSum, vSq, vSum2, vSq2]:
            g.valu("v_mov_b32", z, 0)

        def rd_x(T):
            s, t = divmod(T, 4)
            g.ds_read("ds_read_b128", X[T & 1], vXa[t], (s % 3) * A_BUF)

        def rd_w(T, u):
            if "nords" in ABL and T > 0:
                return
            s, t = divmod(T, 4)
            b = s % 3
            base, off = (vWa[t], b * B_BUF) if b < 2 else (vWb[t], 0)
            for half in range(2):
                g.ds_read("ds_read_b64_tr_b16", Wf[T & 1][u][2 * half:2 * half + 2], base,
                          off + half * 4 * 448 + u * 128)

        def flag_zero():
            g.salu("s_lshl_b32", sT0, sGw, 13)
            g.salu("s_add_u32", sT0, sT0, WS_FLG)
            g.salu("s_cmp_lt_u32", None, sGw, 2)
            g.salu("s_cselect_b32", sT0, sT0, 0x7FFF0000)
            g.valu("v_lshlrev_b32", t0, 7, vLane)
            g.valu("v_mov_b32", t1, 0)
            g.bstore("buffer_store_dword", t1, t0, srdWs, sT0, mods=STM)

        def relayout_store():
            for n_, (vr, dsto) in enumerate(((vR1, sF1d), (vR2, sF2d))):
                pk = va_tmp[n_]
                for q in range(4):
                    g.valu("v_lshl_or_b32", pk[q], vr[2 * q + 1], 16, vr[2 * q])
                g.bstore("buffer_store_dwordx4", pk, vL16, srdWs, dsto, mods=STM)

        va_tmp = [va.get(4, 4), va.get(4, 4)]

        stamp(g, 3)
        g.wait_vm_tag(("dma", 0))
        g.barrier()
        stamp(g, 4)
        rd_x(0)
        for u in range(U):
            rd_w(0, u)

        for T in range(32):
            s, t = divmod(T, 4)
            cur = T & 1
            last = (T == 31)
            fill = [[] for _ in range(U)]
            if "nodot" not in ABL:
                ops = []
                for r in (2 * j, 2 * j + 1):
                    lo, hi = vUn[2 * (r & 1)], vUn[2 * (r & 1) + 1]
                    ops += [lambda r=r, lo=lo: g.valu("v_lshlrev_b32", lo, 16, X[cur][r]),
                            lambda r=r, hi=hi: g.valu("v_and_b32", hi, sHiMask, X[cur][r]),
                            lambda lo=lo: g.valu("v_add_f32", vSum, vSum, lo),
                            lambda hi=hi: g.valu("v_add_f32", vSum2, vSum2, hi),
                            lambda lo=lo: g.valu("v_fma_f32", vSq, lo, lo, vSq),
                            lambda hi=hi: g.valu("v_fma_f32", vSq2, hi, hi, vSq2)]
                per = 12 // U
                for u in range(U):
                    fill[u] += ops[u * per:(u + 1) * per]
                if t < U:
                    fill[t].insert(0, lambda t=t: g.mfma(vCsA[t], Wf[cur][t], vSel, vCsA[t] if s else 0,
                                                         op="v_mfma_f32_16x16x32_bf16"))
            boundary = (t == 3 and not last)
            for u in range(U):
                if "nomfma" not in ABL or T == 0:
                    g.mfma(acc[u], Wf[cur][u], X[cur], acc[u] if T else 0)
                else:
                    g._wait_for_regs(Wf[cur][u].regs() + X[cur].regs())
                if not boundary and not last:
                    if u == 0:
                        rd_x(T + 1)
                    rd_w(T + 1, u)
                if boundary and u == 1:
                    g.waitcnt(lg=0)
                    g.wait_vm_tag(("dma", s + 1))
                    g.barrier()
                    rd_x(T + 1)
                    for uu in range(U):
                        rd_w(T + 1, uu)
                if boundary and u == 1:
                    assert not side
                    if s + 3 <= 7 and "nodma" not in ABL:
                        side += dma_items(s + 3)
                        sched["n"] = (U - 2) + 3 * U
                        sched["k"] = len(side)
                        sched["i"] = 0
                elif not (boundary and u < 2):
                    did = False
                    if side:
                        i0 = sched["i"]
                        if (i0 + 1) * sched["k"] // sched["n"] > i0 * sched["k"] // sched["n"]:
                            side.pop(0)()
                            did = True
                        sched["i"] += 1
                    if not did and late and T >= 16:
                        late.pop(0)()
                for f in fill[u]:
                    f()
            if T in (7, 15, 23, 31):
                stamp(g, 5 + T // 8)
        assert not side
        while late:
            late.pop(0)()
        vRa, vCa, vRr, vCr = va.get(), va.get(), va.get(), va.get()
        g.valu("v_and_b32", t0, 31, vLane)
        g.valu("v_lshrrev_b32", t2, 5, vLane)
        g.salu("s_lshl_b32", sT0, sI, 5)
        g.valu("v_add_u32", t1, sT0, t0)
        g.valu("v_lshlrev_b32", vRr, 5, t1)
        g.valu("v_add_u32", vRr, RS, vRr)
        g.valu("v_lshl_add_u32", vRa, t2, 3, vRr)
        g.valu("v_lshlrev_b32", vCr, 2, t0)
        g.valu("v_add_u32", vCr, CS + j * 512, vCr)
        g.valu("v_and_b32", t1, 1, vLane)
        g.valu("v_lshlrev_b32", t1, 6, t1)
        g.valu("v_lshrrev_b32", t2, 4, vLane)
        g.valu("v_lshl_add_u32", vCa, t2, 4, t1)
        g.salu("s_lshl_b32", sT0, sI, 7)
        g.salu("s_add_u32", sT0, sT0, CS + j * 512)
        g.valu("v_add_u32", vCa, sT0, vCa)
        g.valu("v_add_f32", vSum, vSum, vSum2)
        g.valu("v_add_f32", vSq, vSq, vSq2)
        g.ds_write("ds_write_b64", vRa, vSS, j * 16)
        g.salu("s_mov_b32", EXEC[0], 0x00030003)
        g.salu("s_mov_b32", EXEC[1], 0x00030003)
        for u in range(U):
            g.ds_write("ds_write_b128", vCa, vCsA[u], u * 1024)
        g.salu("s_mov_b64", EXEC, -1)
        g.waitcnt(lg=0)
        g.barrier()
        stamp(g, 9)
        csr = [va.get(16, 4) for _ in range(2)]
        rsr = csr[0][0:8]
        g.ds_read("ds_read_b128", rsr[0:4], vRr)
        g.ds_read("ds_read_b128", rsr[4:8], vRr, 16)
        cpt = [csr[1][4 * u:4 * u + 4] for u in range(U)]
        for u in range(U):
            for i_ in range(4):
                g.ds_read("ds_read_b32", cpt[u][i_], vCr, u * 1024 + i_ * 128)
        vMean, vVar, vRinv, vNr2 = va.get(), va.get(), va.get(), va.get()
        g.valu("v_add_f32", rsr[0], rsr[0], rsr[2])
        g.valu("v_add_f32", rsr[1], rsr[1], rsr[3])
        g.valu("v_add_f32", rsr[4], rsr[4], rsr[6])
        g.valu("v_add_f32", rsr[5], rsr[5], rsr[7])
        g.valu("v_add_f32", rsr[0], rsr[0], rsr[4])
        g.valu("v_add_f32", rsr[1], rsr[1], rsr[5])
        g.valu("v_mul_f32", vMean, 1.0 / 512, rsr[0])
        g.valu("v_mul_f32", vVar, 1.0 / 512, rsr[1])
        g.valu("v_fma_f32", vVar, Neg(vMean), vMean, vVar)
        MB = X[0]
        g.valu("v_cvt_pk_bf16_f32", MB[0], Neg(vMean), Neg(vMean))
        g.valu("v_cmp_gt_u32", VCC, 32, vLane)
        g.valu("v_mov_b32", MB[2], 0)
        g.valu("v_mov_b32", MB[3], 0)
        g.valu("v_cndmask_b32", MB[0], MB[2], MB[0], VCC)
        g.valu("v_and_b32", MB[1], 0xFFFF, MB[0])
        bf16_round(g, vVar, vVar)
        g.valu("v_add_f32", vVar, 1e-5, vVar)
        bf16_round(g, vVar, vVar)
        g.valu("v_sqrt_f32", vVar, vVar)
        bf16_round(g, vVar, vVar)
        g.valu("v_rcp_f32", vRinv, vVar)
        g.salu("s_mov_b32", sT3, 0x07060302)
        CA = [Wf[0][u] for u in range(U)]
        for u in range(U):
            c = cpt[u]
            g.valu("v_add_f32", c[0], c[0], c[1])
            g.valu("v_add_f32", c[2], c[2], c[3])
            g.valu("v_add_f32", c[0], c[0], c[2])
            g.valu("v_and_b32", c[1], sHiMask, c[0])
            g.valu("v_sub_f32", c[1], c[0], c[1])
            g.valu("v_and_b32", c[2], sHiMask, c[1])
            g.valu("v_sub_f32", c[2], c[1], c[2])
            g.valu("v_perm_b32", CA[u][0], c[1], c[0], sT3)
            g.valu("v_lshrrev_b32", CA[u][1], 16, c[2])
            g.valu("v_mov_b32", CA[u][2], 0)
            g.valu("v_mov_b32", CA[u][3], 0)
            g.mfma(acc[u], CA[u], MB, acc[u])
        g.valu("v_mul_f32", vNr2, -LOG2E, vRinv)
        relayout_store()
        if role == 0:
            flag_zero()

        if typ == 1:
            g.salu("s_lshl_b32", sT0, sMt, 2)
            g.salu("s_add_u32", sT0, sT0, sI)
            g.salu("s_mul_i32", sT0, sT0, 112)
            g.salu("s_mul_i32", sT1, sNt, 14)
            g.salu("s_add_u32", sT0, sT0, sT1)
            g.salu("s_add_u32", sT0, sT0, 2 * j)
            g.salu("s_lshl_b32", sOut, sT0, 10)
            e = [va.get() for _ in range(8)]
            pk = [va.get(4, 4) for _ in range(2)]
            g.salu("s_mov_b32", sT2, -LOG2E)
            for u in range(U):
                for m in range(2):
                    rr = range(8 * m, 8 * m + 8)
                    for r in rr:
                        g.valu("v_mul_f32", acc[u][r], vNr2, acc[u][r])
                    for r in rr:
                        g.valu("v_exp_f32", e[r & 7], acc[u][r])
                    for r in rr:
                        g.valu("v_fma_f32", e[r & 7], e[r & 7], sT2, sT2)
                    for r in rr:
                        g.valu("v_rcp_f32", e[r & 7], e[r & 7])
                    for r in rr:
                        g.valu("v_mul_f32", acc[u][r], acc[u][r], e[r & 7])
                    for q in range(4):
                        g.valu("v_cvt_pk_bf16_f32", pk[m][q], acc[u][8 * m + 2 * q], acc[u][8 * m + 2 * q + 1])
                    g.bstore("buffer_store_dwordx4", pk[m], vL16, srdWs, sOut, m * 1024, mods=STM)
                if u + 1 < U:
                    g.salu("s_add_u32", sOut, sOut, 4096)
        else:
            PH = [va.get(4, 4) for _ in range(2)]
            for hl in range(2):
                for q in range(4):
                    g.valu("v_lshl_or_b32", PH[hl][q], vPh[hl * 8 + 2 * q + 1], 16, vPh[hl * 8 + 2 * q])
                    g.valu("v_xor_b32", PH[hl][q], vSign, PH[hl][q])
            for u in (2, 1, 0):
                for r in range(16):
                    g.valu("v_mul_f32", acc[u][r], vRinv, acc[u][r])
            vIm = va.get()
            g.valu("v_and_b32", t0, 31, vLane)
            g.salu("s_lshl_b32", sT0, sI, 5)
            g.valu("v_add_u32", t0, sT0, t0)
            g.valu("v_lshlrev_b32", t0, 6, t0)
            g.valu("v_lshrrev_b32", t1, 5, vLane)
            g.valu("v_lshl_add_u32", vIm, t1, 3, t0)
            assert Wf[1][2].i == Wf[1][1].i + 4
            pk8 = V(Wf[1][1].i, 8)
            D2 = csr
            QF = X
            vMx, vSm = va.get(), va.get()
            for q in range(8):
                g.valu("v_cvt_pk_bf16_f32", pk8[q], acc[2][2 * q], acc[2][2 * q + 1])
            for q in range(4):
                g.ds_write("ds_write_b64", vIm, pk8[2 * q:2 * q + 2], V_IMG + j * 8192 + q * 16)

            def phi(u):
                for hl in range(2):
                    for q in range(4):
                        g.valu("v_cvt_pk_bf16_f32", QF[hl][q], acc[u][8 * hl + 2 * q], acc[u][8 * hl + 2 * q + 1])
                for hl in range(2):
                    g.mfma(D2[hl], PH[hl], QF[hl], 0)

            def softmax(hl):
                D = D2[hl]
                g.valu("v_max3_f32", vMx, D[0], D[1], D[2])
                for r in range(3, 15, 2):
                    g.valu("v_max3_f32", vMx, vMx, D[r], D[r + 1])
                g.valu("v_max_f32", vMx, vMx, D[15])
                g.valu("v_mul_f32", vMx, -LOG2E, vMx)
                for r in range(16):
                    g.valu("v_fma_f32", D[r], D[r], sLog2e, vMx)
                for r in range(16):
                    g.valu("v_exp_f32", D[r], D[r])
                g.valu("v_add_f32", vSm, D[0], D[1])
                for r in range(2, 16):
                    g.valu("v_add_f32", vSm, vSm, D[r])
                g.valu("v_rcp_f32", vSm, vSm)
                for r in range(16):
                    g.valu("v_mul_f32", D[r], vSm, D[r])
                for q in range(8):
                    g.valu("v_cvt_pk_bf16_f32", pk8[q], D[2 * q], D[2 * q + 1])

            sLog2e = sT3
            g.salu("s_mov_b32", sLog2e, LOG2E)
            phi(1)
            for hl in range(2):
                softmax(hl)
                for q in range(4):
                    g.ds_write("ds_write_b64", vIm, pk8[2 * q:2 * q + 2], PHK_IMG + (2 * j + hl) * 8192 + q * 16)
            g.waitcnt(lg=0)
            g.barrier()
            phi(0)
            g.salu("s_lshl_b32", sT0, sMt, 2)
            g.salu("s_add_u32", sT0, sT0, sI)
            g.salu("s_lshl_b32", sT0, sT0, 5)
            g.salu("s_lshl_b32", sT1, sNt, 2)
            g.salu("s_add_u32", sT0, sT0, sT1)
            g.salu("s_add_u32", sT0, sT0, 2 * j)
            g.salu("s_lshl_b32", sOut, sT0, 11)
            g.salu("s_add_u32", sOut, sOut, WS_PQ)
            for hl in range(2):
                softmax(hl)
                for m in range(2):
                    g.bstore("buffer_store_dwordx4", pk8[4 * m:4 * m + 4], vL16, srdWs, sOut, (hl * 2 + m) * 1024, mods=STM)
            if j == 0:
                vKa, vVa, vOne = va.get(), va.get(), va.get()
                g.valu("v_lshrrev_b32", t1, 5, vLane)
                g.valu("v_bfe_u32", t2, vLane, 2, 2)
                g.valu("v_lshl_add_u32", t1, t1, 3, t2)
                g.valu("v_lshlrev_b32", t1, 6, t1)
                g.valu("v_and_b32", t2, 3, vLane)
                g.valu("v_lshl_add_u32", t1, t2, 3, t1)
                g.valu("v_bfe_u32", t2, vLane, 4, 1)
                g.valu("v_lshl_add_u32", t2, t2, 5, t1)
                g.salu("s_lshl_b32", sT0, sI, 13)
                g.valu("v_add_u32", vKa, sT0, t2)
                g.salu("s_lshr_b32", sT0, sI, 1)
                g.salu("s_lshl_b32", sT0, sT0, 13)
                g.salu("s_and_b32", sT1, sI, 1)
                g.salu("s_lshl_b32", sT1, sT1, 5)
                g.salu("s_add_u32", sT0, sT0, sT1)
                g.salu("s_add_u32", sT0, sT0, V_IMG)
                g.valu("v_add_u32", vVa, sT0, t1)
                g.valu("v_mov_b32", vOne, ONES_BF)
                g.salu("s_mov_b32", sMask[0], 0xFFFF0000)
                g.salu("s_mov_b32", sMask[1], 0xFFFF0000)
                KA = [Wf[0][0], Wf[0][1]]
                KB = [Wf[0][2], Wf[1][0]]
                D3 = D2[0]

                def rd_kv(ks):
                    for half in range(2):
                        g.ds_read("ds_read_b64_tr_b16", KA[ks & 1][2 * half:2 * half + 2], vKa, ks * 1024 + half * 256)
                    for half in range(2):
                        g.ds_read("ds_read_b64_tr_b16", KB[ks & 1][2 * half:2 * half + 2], vVa, ks * 1024 + half * 256)

                rd_kv(0)
                for ks in range(8):
                    if ks + 1 < 8:
                        rd_kv(ks + 1)
                    for r in range(4):
                        g.valu("v_cndmask_b32_e64", KB[ks & 1][r], KB[ks & 1][r], vOne, sMask)
                    g.mfma(D3, KA[ks & 1], KB[ks & 1], D3 if ks else 0)
                g.salu("s_lshl_b32", sT0, sMt, 5)
                g.salu("s_lshl_b32", sT1, sNt, 2)
                g.salu("s_add_u32", sT0, sT0, sT1)
                g.salu("s_add_u32", sT0, sT0, sI)
                g.salu("s_lshl_b32", sOut, sT0, 12)
                g.salu("s_add_u32", sOut, sOut, WS_PART)
                for q in range(4):
                    g.bstore("buffer_store_dwordx4", D3[4 * q:4 * q + 4], vL16, srdWs, sOut, q * 1024, mods=STM)
        stamp(g, 10)
        g.waitcnt(vm=0)
        stamp(g, 11)
        stamp(g, 13, True)
        stamp_flush(g, 14, srdWs, sGw, sT0, t0, t1)
        g.raw("s_endpgm")
        maxv = max(maxv, va.hi)
        out.append(g.text())
    out.append("hh_k1_exit:\n    s_endpgm\n")
    return name, "".join(out), maxv


def gen_kr():
    name = "hh_kr_kernel"
    CURK[0] = "kr"
    g = Gen()
    sKarg, sWG = S(0, 2), S(2)
    sWs, srdWs = S(4, 2), S(8, 4)
    sW, sT0, sT1, sOff = S(12), S(13), S(14), S(15)
    g.label(name)
    g.salu("s_cmp_ge_u32", None, sWG, 32)
    g.raw("s_cbranch_scc1 hh_kr_exit")
    g.sload(sWs, sKarg, 72)
    vLane, vT, vL16, vL8 = V(1), V(2), V(3), V(4)
    g.valu("v_lshrrev_b32", vT, 6, V(0))
    g.valu("v_and_b32", vLane, 63, V(0))
    g.valu("v_readfirstlane_b32", sW, vT)
    g.valu("v_lshlrev_b32", vL16, 4, vLane)
    g.lg = []
    g.raw("s_waitcnt lgkmcnt(0)")
    make_srd(g, srdWs, sWs, WS_SIZE)
    g.salu("s_lshl_b32", sT0, sWG, 2)
    g.salu("s_add_u32", sT0, sT0, sW)
    g.salu("s_lshl_b32", sOff, sT0, 10)
    g.salu("s_add_u32", sOff, sOff, WS_PART)
    P = [V(8 + 4 * m, 4) for m in range(16)]
    for m in range(16):
        g.bload("buffer_load_dwordx4", P[m], vL16, srdWs, sOff)
        if m < 15:
            g.salu("s_add_u32", sOff, sOff, 32 * 4096)
    for m in range(1, 16):
        for r in range(4):
            g.valu("v_add_f32", P[0][r], P[0][r], P[m][r])
    pk = V(6, 2)
    g.valu("v_cvt_pk_bf16_f32", pk[0], P[0][0], P[0][1])
    g.valu("v_cvt_pk_bf16_f32", pk[1], P[0][2], P[0][3])
    g.salu("s_lshl_b32", sT0, sWG, 11)
    g.salu("s_lshr_b32", sT1, sW, 1)
    g.salu("s_lshl_b32", sT1, sT1, 10)
    g.salu("s_add_u32", sT0, sT0, sT1)
    g.salu("s_and_b32", sT1, sW, 1)
    g.salu("s_lshl_b32", sT1, sT1, 3)
    g.salu("s_add_u32", sT0, sT0, sT1)
    g.salu("s_add_u32", sOff, sT0, WS_KV)
    g.bstore("buffer_store_dwordx2", pk, vL16, srdWs, sOff)
    g.raw("s_endpgm")
    return name, g.text() + "hh_kr_exit:\n    s_endpgm\n", 72


K2_LDS = 48 * 1024


def gen_k2(NS=28):
    name = "hh_k2_kernel"
    CURK[0] = "k2"
    g = Gen()
    out = []
    sKarg, sWG = S(0, 2), S(2)
    sX, sWs, sOutp, sDbg = S(4, 2), S(6, 2), S(8, 2), S(10, 2)
    srdX, srdO, srdWs, srdDbg = S(12, 4), S(16, 4), S(20, 4), S(44, 4)
    sW, sMt, sNt, sT0, sT1, sT2 = (S(24 + k) for k in range(6))
    g.label(name)
    g.salu("s_cmp_ge_u32", None, sWG, 256)
    g.raw("s_cbranch_scc1 hh_k2_exit")
    stamp(g, 0)
    stamp(g, 12, True)
    g.sload(sWs, sKarg, 72)
    g.sload(sX, sKarg, 0)
    g.sload(S(8, 4), sKarg, 56)
    va = VAlloc(1, 256)
    vLane, vT, vL16, vZero = va.get(), va.get(), va.get(), va.get()
    g.valu("v_lshrrev_b32", vT, 6, V(0))
    g.valu("v_and_b32", vLane, 63, V(0))
    g.valu("v_readfirstlane_b32", sW, vT)
    g.valu("v_lshlrev_b32", vL16, 4, vLane)
    g.valu("v_mov_b32", vZero, 0)
    g.salu("s_and_b32", sT0, sWG, 7)
    g.salu("s_lshl_b32", sT0, sT0, 2)
    g.salu("s_bfe_u32", sT1, sWG, (2 << 16) | 3)
    g.salu("s_or_b32", sMt, sT0, sT1)
    g.salu("s_lshr_b32", sNt, sWG, 5)
    g.salu("s_cmp_eq_u32", None, sW, 4)
    g.raw("s_cbranch_scc1 hh_k2_red")
    base_state = g
    out.append(g.text())

    g = base_state.fork()
    sH = [S(32), S(33)]
    sWn = [S(34), S(35)]
    sPQ = [S(36), S(37)]
    sWoN = [S(38), S(39)]
    sKV, sCnt, sPoll = S(40), S(41), S(42)
    g.salu("s_mul_i32", sT2, sW, 28)
    for sb in range(2):
        g.salu("s_lshl_b32", sT0, sMt, 1)
        if sb:
            g.salu("s_add_u32", sT0, sT0, sb)
        g.salu("s_mul_i32", sT1, sT0, 112)
        g.salu("s_add_u32", sT1, sT1, sT2)
        g.salu("s_lshl_b32", sH[sb], sT1, 10)
    for nb in range(2):
        g.salu("s_lshl_b32", sT0, sNt, 1)
        if nb:
            g.salu("s_add_u32", sT0, sT0, nb)
        g.salu("s_mul_i32", sT0, sT0, 144)
        g.salu("s_add_u32", sT1, sT0, sT2)
        g.salu("s_lshl_b32", sT1, sT1, 10)
        g.salu("s_add_u32", sWn[nb], sT1, WS_WF)
    g.lg = []
    g.raw("s_waitcnt lgkmcnt(0)")
    make_srd(g, srdWs, sWs, WS_SIZE)
    win = {}

    def ld(dst, sreg, off, mods=""):
        w0 = win.get(sreg.i, 0)
        if not (w0 <= off < w0 + 4096):
            g.salu("s_add_u32", sreg, sreg, off - w0)
            win[sreg.i] = w0 = off
        g.bload("buffer_load_dwordx4", dst, vL16, srdWs, sreg, off - w0, mods=mods)

    acc = [[va.get(16, 4) for sb in range(2)] for nb in range(2)]
    D = [va.get(16, 4) for _ in range(2)]
    O = [va.get(4, 4) for _ in range(2)]
    vRc, vPoll, vXo = va.get(), va.get(), va.get()
    XR = va.get(8, 4)
    slots = [va.get(4, 4) for _ in range(NS)]
    reqs = []
    for k in range(28):
        reqs += [(sWn[0], k * 1024), (sH[0], k * 1024), (sH[1], k * 1024), (sWn[1], k * 1024)]
    for h in range(8):
        reqs += [(sKV, h * 2048, "sc1"), (sPQ[0], h * 2048), (sKV, h * 2048 + 1024, "sc1"), (sPQ[0], h * 2048 + 1024),
                 (sPQ[1], h * 2048), (sPQ[1], h * 2048 + 1024), (sWoN[0], h * 1024), (sWoN[1], h * 1024)]
    issued = [0]
    gate = [112]

    def slot(q):
        return slots[q % NS]

    def issue_upto(n):
        n = min(n, len(reqs), gate[0])
        while issued[0] < n:
            q = issued[0]
            ld(slot(q), *reqs[q])
            issued[0] += 1

    stamp(g, 1)
    issue_upto(NS)
    stamp(g, 2)
    make_srd(g, srdX, sX, 2048 * 1024)
    make_srd(g, srdO, sOutp, 2048 * 1024)
    for sb in range(2):
        g.salu("s_lshl_b32", sT0, sMt, 1)
        if sb:
            g.salu("s_add_u32", sT0, sT0, sb)
        g.salu("s_lshl_b32", sT1, sT0, 5)
        g.salu("s_lshl_b32", sT2, sW, 3)
        g.salu("s_add_u32", sT1, sT1, sT2)
        g.salu("s_lshl_b32", sT1, sT1, 11)
        g.salu("s_add_u32", sPQ[sb], sT1, WS_PQ)
    for nb in range(2):
        g.salu("s_lshl_b32", sT0, sNt, 1)
        if nb:
            g.salu("s_add_u32", sT0, sT0, nb)
        g.salu("s_mul_i32", sT0, sT0, 144)
        g.salu("s_lshl_b32", sT2, sW, 3)
        g.salu("s_add_u32", sT1, sT0, sT2)
        g.salu("s_add_u32", sT1, sT1, 112)
        g.salu("s_lshl_b32", sT1, sT1, 10)
        g.salu("s_add_u32", sWoN[nb], sT1, WS_WF)
    g.salu("s_lshl_b32", sT1, sW, 14)
    g.salu("s_add_u32", sKV, sT1, WS_KV)
    g.salu("s_lshl_b32", sCnt, sW, 12)
    g.salu("s_add_u32", sCnt, sCnt, WS_FLG)
    g.salu("s_mov_b32", sPoll, 1)
    g.valu("v_and_b32", vZero, 31, vLane)
    g.valu("v_lshlrev_b32", vZero, 7, vZero)
    t0, t1 = vRc, vPoll
    g.salu("s_and_b32", sT0, sW, 1)
    g.salu("s_lshl_b32", sT0, sT0, 5)
    g.salu("s_lshl_b32", sT1, sMt, 6)
    g.salu("s_add_u32", sT0, sT0, sT1)
    g.valu("v_and_b32", t0, 31, vLane)
    g.valu("v_add_u32", t0, sT0, t0)
    g.valu("v_lshlrev_b32", vXo, 10, t0)
    g.salu("s_lshr_b32", sT0, sW, 1)
    g.salu("s_lshl_b32", sT0, sT0, 6)
    g.salu("s_lshl_b32", sT1, sNt, 7)
    g.salu("s_add_u32", sT0, sT0, sT1)
    g.valu("v_add_u32", vXo, sT0, vXo)
    g.valu("v_lshrrev_b32", t1, 5, vLane)
    g.valu("v_lshl_add_u32", vXo, t1, 3, vXo)

    for k in range(28):
        b = 4 * k
        Wn0, H0, H1, Wn1 = (slot(b + i) for i in range(4))
        g.mfma(acc[0][0], Wn0, H0, acc[0][0] if k else 0)
        g.mfma(acc[0][1], Wn0, H1, acc[0][1] if k else 0)
        issue_upto(b + 1 + NS)
        g.mfma(acc[1][0], Wn1, H0, acc[1][0] if k else 0)
        issue_upto(b + 2 + NS)
        g.mfma(acc[1][1], Wn1, H1, acc[1][1] if k else 0)
        issue_upto(b + 4 + NS)
        if k == 17:
            g.bload("buffer_load_dword", vPoll, vZero, srdWs, sCnt, mods="sc1")
        if k == 20:
            g.valu("v_cmp_ne_u32", VCC, sPoll, vPoll)
            g.salu("s_cmp_eq_u64", None, VCC, 0)
            g.raw("s_cbranch_scc1 hh_k2_kvok")
            g.raw(f"s_mov_b32 {sT2}, 0")
            g.label("hh_k2_spin")
            g.raw("s_sleep 4")
            g.raw(f"buffer_load_dword {vPoll}, {vZero}, {srdWs}, {sCnt} offen sc1")
            g.raw(f"s_add_u32 {sT2}, {sT2}, 1")
            g.raw("s_waitcnt vmcnt(0)")
            g.raw(f"s_cmp_ge_u32 {sT2}, 0x10000")
            g.raw("s_cbranch_scc1 hh_k2_kvok")
            g.raw(f"v_cmp_ne_u32 vcc, {sPoll}, {vPoll}")
            g.raw("s_nop 3")
            g.raw("s_cmp_eq_u64 vcc, 0")
            g.raw("s_cbranch_scc0 hh_k2_spin")
            g.label("hh_k2_kvok")
            gate[0] = 10 ** 9
            for q in range(4):
                g.bload("buffer_load_dwordx2", XR[2 * q:2 * q + 2], vXo, srdX, 0, q * 16)
        if k in (0, 6, 13, 20, 27):
            stamp(g, 3 + (0, 6, 13, 20, 27).index(k))
    for h in range(8):
        b = 112 + 8 * h
        KV0, P00, KV1, P01, P10, P11, WO0, WO1 = (slot(b + i) for i in range(8))
        g.mfma(D[0], KV0, P00, 0)
        g.mfma(D[0], KV1, P01, D[0])
        g.mfma(D[1], KV0, P10, 0)
        g.mfma(D[1], KV1, P11, D[1])
        issue_upto(b + 6 + NS)
        for sb in range(2):
            g.valu("v_add_f32", vRc, 1e-6, D[sb][8])
            g.valu("v_rcp_f32", vRc, vRc)
            for r in range(8):
                g.valu("v_mul_f32", D[sb][r], vRc, D[sb][r])
            for q in range(4):
                g.valu("v_cvt_pk_bf16_f32", O[sb][q], D[sb][2 * q], D[sb][2 * q + 1])
            g.mfma(acc[0][sb], WO0, O[sb], acc[0][sb])
            g.mfma(acc[1][sb], WO1, O[sb], acc[1][sb])
        issue_upto(b + 8 + NS)
        if h in (3, 7):
            stamp(g, 8 + h // 4)
    g.waitcnt(vm=0)
    for w in range(1, 4):
        g.salu("s_cmp_eq_u32", None, sW, w)
        g.raw(f"s_cbranch_scc1 hh_k2_ep{w}")
    out.append(g.text())
    ep_state = g
    for w in range(4):
        g = ep_state.fork()
        g.label(f"hh_k2_ep{w}")
        quads = [(0, 0), (0, 1), (1, 0), (1, 1)]
        for Q in range(4):
            if Q == w:
                continue
            k_ = (w - Q - 1) % 4
            nb, sb = quads[Q]
            for q in range(4):
                g.ds_write("ds_write_b128", vL16, acc[nb][sb][4 * q:4 * q + 4], (Q * 3 + k_) * 4096 + q * 1024)
        own = acc[quads[w][0]][quads[w][1]]
        tx = D[0]
        for r in range(16):
            src = XR[r >> 1]
            if r & 1:
                g.valu("v_and_b32", tx[r], 0xFFFF0000, src)
            else:
                g.valu("v_lshlrev_b32", tx[r], 16, src)
        for r in range(16):
            g.valu("v_add_f32", own[r], own[r], tx[r])
        g.waitcnt(lg=0)
        g.barrier()
        RD = [V(slots[4 * k_].i, 16) for k_ in range(3)]
        for k_ in range(3):
            for q in range(4):
                g.ds_read("ds_read_b128", RD[k_][4 * q:4 * q + 4], vL16, (w * 3 + k_) * 4096 + q * 1024)
        for r in range(16):
            g.valu("v_add_f32", own[r], own[r], RD[0][r])
        for r in range(16):
            g.valu("v_add_f32", RD[1][r], RD[1][r], RD[2][r])
        for r in range(16):
            g.valu("v_add_f32", own[r], own[r], RD[1][r])
        po = D[1]
        for q in range(8):
            g.valu("v_cvt_pk_bf16_f32", po[q], own[2 * q], own[2 * q + 1])
        for i_ in range(2):
            g.valu("v_permlane32_swap_b32", [po[i_], po[2 + i_]])
            g.valu("v_permlane32_swap_b32", [po[4 + i_], po[6 + i_]])
        g.valu("v_lshrrev_b32", vRc, 5, vLane)
        g.valu("v_lshl_add_u32", vXo, vRc, 3, vXo)
        g.bstore("buffer_store_dwordx4", po[0:4], vXo, srdO, 0)
        g.bstore("buffer_store_dwordx4", po[4:8], vXo, srdO, 0, 32)
        stamp(g, 10)
        if STAMPS == "k2":
            g.waitcnt(vm=0)
        stamp(g, 11)
        stamp(g, 13, True)
        g.salu("s_lshl_b32", sT2, sWG, 2)
        g.salu("s_add_u32", sT2, sT2, sW)
        stamp_flush(g, 14, srdWs, sT2, sT0, vRc, vPoll)
        g.raw("s_endpgm")
        out.append(g.text())

    g = base_state.fork()
    g.label("hh_k2_red")
    g.salu("s_cmp_ge_u32", None, sWG, 128)
    g.raw("s_cbranch_scc1 hh_k2_exit")
    g.raw("s_setprio 3")
    g.lg = []
    g.raw("s_waitcnt lgkmcnt(0)")
    make_srd(g, srdWs, sWs, WS_SIZE)
    sOff = S(32)
    vA = V(6)
    g.valu("v_and_b32", vA, 31, vLane)
    g.valu("v_lshlrev_b32", vA, 4, vA)
    g.valu("v_lshrrev_b32", vT, 5, vLane)
    g.valu("v_lshl_add_u32", vT, vT, 10, vA)
    g.salu("s_lshr_b32", sT0, sWG, 1)
    g.salu("s_lshl_b32", sOff, sT0, 11)
    g.salu("s_and_b32", sT1, sWG, 1)
    g.salu("s_lshl_b32", sT1, sT1, 9)
    g.salu("s_add_u32", sOff, sOff, sT1)
    g.salu("s_add_u32", sOff, sOff, WS_PART)
    P = [V(12 + 4 * m, 4) for m in range(16)]
    for m in range(16):
        g.bload("buffer_load_dwordx4", P[m], vT, srdWs, sOff)
        if m < 15:
            g.salu("s_add_u32", sOff, sOff, 32 * 4096)
    stamp(g, 1)
    for st in (1, 2, 4, 8):
        for m in range(0, 16, 2 * st):
            for r in range(4):
                g.valu("v_add_f32", P[m][r], P[m][r], P[m + st][r])
    stamp(g, 2)
    pk = V(8, 4)
    g.valu("v_cvt_pk_bf16_f32", pk[0], P[0][0], P[0][1])
    g.valu("v_cvt_pk_bf16_f32", pk[1], P[0][2], P[0][3])
    g.valu("v_mov_b32", pk[2], pk[0])
    g.valu("v_mov_b32", pk[3], pk[1])
    g.valu("v_permlane32_swap_b32", [pk[0], pk[2]])
    g.valu("v_permlane32_swap_b32", [pk[1], pk[3]])
    g.salu("s_lshl_b32", sOff, sWG, 9)
    g.salu("s_add_u32", sOff, sOff, WS_KV)
    g.salu("s_mov_b32", EXEC[1], 0)
    g.bstore("buffer_store_dwordx4", pk, vA, srdWs, sOff, mods="sc1")
    g.valu("v_mov_b32", vT, 1)
    g.salu("s_lshl_b32", sT1, sWG, 7)
    g.salu("s_add_u32", sT1, sT1, WS_FLG)
    g.waitcnt(vm=0)
    stamp(g, 3)
    g.salu("s_mov_b64", EXEC, 1)
    g.bstore("buffer_store_dword", vT, vZero, srdWs, sT1, mods="sc1")
    if STAMPS == "k2":
        g.waitcnt(vm=0)
        for i_ in range(4, 12):
            stamp(g, i_)
        stamp(g, 13, True)
        g.salu("s_add_u32", sT2, sWG, 1024)
        stamp_flush(g, 14, srdWs, sT2, sT0, V(6), V(7))
    g.raw("s_endpgm")
    out.append(g.text())
    return name, "".join(out) + "hh_k2_exit:\n    s_endpgm\n", va.hi


def descriptor(name, nv):
    nv4 = (nv + 3) // 4 * 4
    return f""".amdhsa_kernel {name}
  .amdhsa_next_free_vgpr {nv4}
  .amdhsa_next_free_sgpr 102
  .amdhsa_accum_offset {nv4}
  .amdhsa_group_segment_fixed_size 0
  .amdhsa_kernarg_size 80
  .amdhsa_user_sgpr_count 2
  .amdhsa_user_sgpr_kernarg_segment_ptr 1
  .amdhsa_system_sgpr_workgroup_id_x 1
.end_amdhsa_kernel
"""


def main(path):
    ks = [gen_k1(), gen_k2()]
    launches = [
        f"; @launch kernel=hh_k1_kernel grid=(256,1,1) block=(512,1,1) lds={K1_LDS}",
        f"; @launch kernel=hh_k2_kernel grid=(256,1,1) block=(320,1,1) lds={K2_LDS}",
    ]
    s = "; hedgehog linear attention + SiLU FFN parallel block (generated by my own generator script)\n"
    s += "\n".join(launches) + "\n"
    s += '.amdgcn_target "amdgcn-amd-amdhsa--gfx950"\n.text\n'
    for name, txt, nv in ks:
        s += f".globl {name}\n.p2align 8\n.type {name},@function\n" + txt
    s += '.section .rodata,"a"\n'
    for name, txt, nv in ks:
        s += ".p2align 6\n" + descriptor(name, nv)
        print(name, "vgprs", nv, "lines", txt.count("\n"), file=sys.stderr)
    open(path, "w").write(s)


if __name__ == "__main__":
    if len(sys.argv) > 2 and sys.argv[2].startswith("stamps"):
        STAMPS = sys.argv[2][6:] or "k1"
        ABL.update(sys.argv[3:])
    main(sys.argv[1] if len(sys.argv) > 1 else
         "parallel_sum__linear_kernel_hedgehog__dense_activation_silu__prompt.s")
```

```python
import sys
from asmlib import *

WS_HF = 0x0
WS_PQ = 0x700000
WS_WF = 0xB00000
WS_PART = 0xE00000
WS_KV = 0x1000000
WS_FLG = 0x1010000
WS_SIZE = 0x1100000

LOG2E = 1.4426950408889634
ONES_BF = 0x3F803F80

A_BUF = 16384
B_BASE = 49152
B_BUF = 28672
RS = 135168
CS = RS + 4096
K1_LDS = RS + 4096 + 7 * 1024
PHK_IMG = 0
V_IMG = 32768


def make_srd(g, srd, base, nbytes, off=None):
    if off is None:
        g.salu("s_mov_b32", srd[0], base[0])
        g.salu("s_mov_b32", srd[1], base[1])
    else:
        g.salu("s_add_u32", srd[0], base[0], off)
        g.salu("s_addc_u32", srd[1], base[1], 0)
    g.salu("s_mov_b32", srd[2], nbytes)
    g.salu("s_mov_b32", srd[3], 0x20000)


STAMPS = False
import os
KR = os.environ.get("KR", "") == "1"
import os
STM = os.environ.get("STM", "sc0 sc1")
ABL = set()
WS_DBG = 0x1080000


CURK = [None]


def stamp(g, idx, real=False):
    if STAMPS == CURK[0]:
        g.raw(f"{'s_memrealtime' if real else 's_memtime'} s[{72 + 2 * idx}:{73 + 2 * idx}]")


def stamp_flush(g, n, srdWs, sGw, sT, vtmp, vtmp2):
    if STAMPS != CURK[0]:
        return
    g.raw("s_waitcnt lgkmcnt(0)")
    g.salu("s_lshl_b32", sT, sGw, 6)
    g.salu("s_add_u32", sT, sT, WS_DBG)
    g.valu("v_mov_b32", vtmp2, 0)
    for i in range(n):
        g.valu("v_mov_b32", vtmp, S(72 + 2 * i))
        g.bstore("buffer_store_dword", vtmp, vtmp2, srdWs, sT, 4 * i)


def bf16_round(g, dst, src):
    g.valu("v_cvt_pk_bf16_f32", dst, src, src)
    g.valu("v_lshlrev_b32", dst, 16, dst)


def gen_k1():
    name = "hh_k1_kernel"
    CURK[0] = "k1"
    g = Gen()
    out = []
    sKarg, sWG = S(0, 2), S(2)
    sX, sWqkv, sWphi, sWo, sW1, sW2, sWs = S(4, 2), S(6, 2), S(8, 2), S(10, 2), S(12, 2), S(14, 2), S(16, 2)
    srdX, srdW, srdWs, srdAux, srdAux2, srdPhi = S(20, 4), S(24, 4), S(28, 4), S(32, 4), S(36, 4), S(40, 4)
    sW, sI, sJ, sMt, sNt, sType, sXcd, sIdx = (S(44 + k) for k in range(8))
    sT0, sT1, sT2, sT3 = S(52), S(53), S(54), S(55)
    sKA, sKB, sAm0, sBm0, sOnes, sGw = S(56), S(57), S(58), S(59), S(60), S(61)
    sMask = S(62, 2)
    sF1, sF2, sF1d, sF2d = S(64), S(65), S(66), S(67)
    sOut = S(68)
    sPhiOff = S(69)

    g.label(name)
    g.salu("s_cmp_ge_u32", None, sWG, 256)
    g.raw("s_cbranch_scc1 hh_k1_exit")
    stamp(g, 0)
    stamp(g, 12, True)
    g.sload(S(4, 4), sKarg, 0)
    g.sload(S(8, 4), sKarg, 16)
    g.sload(S(12, 4), sKarg, 40)
    g.sload(S(16, 2), sKarg, 72)
    vTid = V(0)
    vLane, vT = V(1), V(2)
    g.valu("v_lshrrev_b32", vT, 6, vTid)
    g.valu("v_and_b32", vLane, 63, vTid)
    g.valu("v_readfirstlane_b32", sW, vT)
    g.salu("s_and_b32", sXcd, sWG, 7)
    g.salu("s_lshr_b32", sIdx, sWG, 3)
    g.salu("s_and_b32", sT0, sXcd, 1)
    g.salu("s_lshl_b32", sT0, sT0, 3)
    g.salu("s_and_b32", sT1, sIdx, 7)
    g.salu("s_or_b32", sMt, sT0, sT1)
    g.salu("s_lshr_b32", sType, sIdx, 4)
    g.salu("s_lshr_b32", sT0, sXcd, 1)
    g.salu("s_lshl_b32", sT0, sT0, 1)
    g.salu("s_bfe_u32", sT1, sIdx, (1 << 16) | 3)
    g.salu("s_or_b32", sNt, sT0, sT1)
    g.salu("s_and_b32", sI, sW, 3)
    g.salu("s_lshr_b32", sJ, sW, 2)
    g.salu("s_lshl_b32", sT0, sWG, 3)
    g.salu("s_add_u32", sGw, sT0, sW)
    g.salu("s_mov_b32", sOnes, ONES_BF)
    g.salu("s_lshl_b32", sT0, sType, 1)
    g.salu("s_add_u32", sT0, sT0, sJ)
    g.salu("s_cmp_eq_u32", None, sT0, 1)
    g.raw("s_cbranch_scc1 hh_k1_r1")
    g.salu("s_cmp_eq_u32", None, sT0, 2)
    g.raw("s_cbranch_scc1 hh_k1_r2")
    g.salu("s_cmp_eq_u32", None, sT0, 3)
    g.raw("s_cbranch_scc1 hh_k1_r3")
    out.append(g.text())
    base_state = g
    maxv = 0

    for role in range(4):
        typ, j = role >> 1, role & 1
        g = base_state.fork()
        g.label(f"hh_k1_r{role}")
        va = VAlloc(5, 256)
        U = 4 if (typ == 1 and j == 0) else 3
        ldw = 3584 if typ else 3072
        nB = 4 if j == 1 else 3
        vA = [va.get() for _ in range(2)]
        vB = [va.get() for _ in range(nB)]
        t0, t1, t2, t3 = va.get(), va.get(), va.get(), va.get()
        g.valu("v_lshrrev_b32", t0, 3, vLane)
        g.valu("v_lshrrev_b32", t1, 4, vLane)
        g.valu("v_and_b32", t2, 7, vLane)
        g.salu("s_lshl_b32", sT0, sW, 4)
        for e in range(2):
            g.valu("v_add_u32", t3, sT0, t0)
            if e:
                g.valu("v_add_u32", t3, 8, t3)
            g.valu("v_lshlrev_b32", vA[e], 10, t3)
            g.valu("v_xor_b32", t3, t2, t1)
            if e:
                g.valu("v_xor_b32", t3, 4, t3)
            g.valu("v_lshl_add_u32", vA[e], t3, 4, vA[e])
        g.salu("s_add_u32", sT1, sW, 4)
        g.salu("s_and_b32", sT1, sT1, 7)
        g.salu("s_lshl_b32", sBm0, sT1, 10)
        g.salu("s_add_u32", sBm0, sBm0, B_BASE)
        g.salu("s_lshl_b32", sAm0, sW, 11)
        g.salu("s_lshl_b32", sT1, sT1, 6)
        for e in range(nB):
            g.valu("v_add_u32", t0, sT1, vLane)
            if e:
                g.valu("v_add_u32", t0, 512 * e, t0)
            g.valu("v_mul_u32_u24", t1, 2341, t0)
            g.valu("v_lshrrev_b32", t1, 16, t1)
            g.valu("v_mul_u32_u24", t2, 28, t1)
            g.valu("v_sub_u32", t2, t0, t2)
            g.valu("v_mul_u32_u24", vB[e], ldw, t1)
            if typ == 1:
                g.valu("v_lshl_add_u32", vB[e], t2, 4, vB[e])
            else:
                g.valu("v_lshrrev_b32", t3, 3, t2)
                g.valu("v_lshl_add_u32", vB[e], t3, 10, vB[e])
                g.valu("v_and_b32", t3, 7, t2)
                g.valu("v_lshl_add_u32", vB[e], t3, 4, vB[e])
                g.valu("v_cmp_le_u32", VCC, 24, t2)
                g.valu("v_mov_b32", t3, 0x80000000)
                g.valu("v_cndmask_b32", vB[e], vB[e], t3, VCC)
        g.salu("s_mov_b32", sKA, 0)
        g.salu("s_mov_b32", sKB, 0)
        g.lg = []
        g.raw("s_waitcnt lgkmcnt(0)")
        g.salu("s_lshl_b32", sT0, sMt, 17)
        make_srd(g, srdX, sX, 131072, sT0)
        if typ == 0:
            g.salu("s_lshl_b32", sT0, sNt, 7)
            make_srd(g, srdW, sWqkv, 512 * 3072 - 7 * 128, sT0)
        else:
            g.salu("s_mul_i32", sT0, sNt, 448)
            make_srd(g, srdW, sW1, 512 * 3584 - 7 * 448, sT0)
        make_srd(g, srdWs, sWs, WS_SIZE)

        def dma_items(stage):
            b = stage % 3
            items = []
            for e in range(2):
                def f(e=e):
                    g.salu("s_mov_b32", sKA, stage * 128)
                    g.salu("s_add_u32", M0, sAm0, b * A_BUF + e * 1024)
                    g.dma(vA[e], srdX, sKA, tag=("dma", stage))
                items.append(f)
            for e in range(nB):
                def f(e=e):
                    g.salu("s_mov_b32", sKB, stage * 64 * ldw)
                    g.salu("s_add_u32", M0, sBm0, b * B_BUF + e * 8192)
                    g.dma(vB[e], srdW, sKB, tag=("dma", stage))
                items.append(f)
            return items

        def issue_dma(stage):
            for f in dma_items(stage):
                f()

        stamp(g, 1)
        issue_dma(0)
        g.barrier()
        stamp(g, 2)

        vXa = [va.get() for _ in range(4)]
        vWa = [va.get() for _ in range(4)]
        vWb = [va.get() for _ in range(4)]
        g.valu("v_and_b32", t0, 31, vLane)
        g.salu("s_lshl_b32", sT0, sI, 5)
        g.valu("v_add_u32", t0, sT0, t0)
        g.valu("v_lshlrev_b32", t0, 7, t0)
        g.valu("v_lshrrev_b32", t1, 5, vLane)
        g.valu("v_bfe_u32", t2, vLane, 1, 3)
        g.valu("v_xor_b32", t1, t1, t2)
        g.valu("v_lshl_add_u32", t0, t1, 4, t0)
        g.valu("v_lshrrev_b32", t1, 5, vLane)
        g.valu("v_bfe_u32", t2, vLane, 2, 2)
        g.valu("v_lshl_add_u32", t1, t1, 3, t2)
        g.valu("v_mul_u32_u24", t1, 448, t1)
        g.valu("v_bfe_u32", t2, vLane, 4, 1)
        g.valu("v_lshl_add_u32", t1, t2, 5, t1)
        g.valu("v_and_b32", t2, 3, vLane)
        g.valu("v_lshl_add_u32", t1, t2, 3, t1)
        g.valu("v_add_u32", t1, B_BASE + j * 64, t1)
        for t in range(4):
            g.salu("s_add_u32", sT0, sI, t + 2 * j)
            g.salu("s_and_b32", sT0, sT0, 3)
            g.salu("s_lshl_b32", sT1, sT0, 5)
            g.valu("v_xor_b32", vXa[t], sT1, t0)
            g.salu("s_mul_i32", sT1, sT0, 16 * 448)
            g.valu("v_add_u32", vWa[t], sT1, t1)
            g.valu("v_add_u32", vWb[t], 2 * B_BUF, vWa[t])

        issue_dma(1)
        side = []
        side += dma_items(2)
        sched = {"n": 3 * U, "k": len(side), "i": 0}
        vRl = [va.get(), va.get()]
        g.valu("v_lshrrev_b32", t1, 5, vLane)
        g.valu("v_and_b32", t2, 31, vLane)
        g.valu("v_lshlrev_b32", t2, 1, t2)
        g.valu("v_lshl_add_u32", vRl[0], t1, 12, t2)
        g.valu("v_add_u32", vRl[1], 8192, vRl[0])
        vL16 = va.get()
        g.valu("v_lshlrev_b32", vL16, 4, vLane)
        g.salu("s_lshr_b32", sT0, sGw, 4)
        g.salu("s_and_b32", sT1, sGw, 15)
        g.salu("s_mul_i32", sF1d, sT1, 144)
        g.salu("s_add_u32", sF1d, sF1d, sT0)
        g.salu("s_lshl_b32", sF1d, sF1d, 10)
        g.salu("s_add_u32", sF1d, sF1d, WS_WF)
        g.salu("s_add_u32", sF2d, sF1d, 128 * 1024)
        g.salu("s_cmp_lt_u32", None, sGw, 256)
        g.salu("s_cselect_b32", sF2d, sF2d, 0x7FFF0000)
        g.salu("s_cmp_ge_u32", None, sT0, 112)
        g.salu("s_cselect_b32", srdAux[0], sWo[0], sW2[0])
        g.salu("s_cselect_b32", srdAux[1], sWo[1], sW2[1])
        g.salu("s_mov_b32", sT3, 1792 * 1024)
        g.salu("s_cselect_b32", srdAux[2], 512 * 1024, sT3)
        g.salu("s_mov_b32", srdAux[3], 0x20000)
        g.salu("s_cselect_b32", sT2, 112, 0)
        g.salu("s_sub_u32", sT2, sT0, sT2)
        g.salu("s_lshl_b32", sF1, sT2, 14)
        g.salu("s_lshl_b32", sT1, sT1, 6)
        g.salu("s_add_u32", sF1, sF1, sT1)
        g.salu("s_add_u32", sT2, sT0, 16)
        g.salu("s_lshl_b32", sF2, sT2, 14)
        g.salu("s_add_u32", sF2, sF2, sT1)
        make_srd(g, srdAux2, sWo, 512 * 1024)
        vR1 = [va.get() for _ in range(8)]
        vR2 = [va.get() for _ in range(8)]
        late = []
        for jj in range(8):
            late.append(lambda jj=jj: g.bload("buffer_load_ushort", vR1[jj], vRl[jj >> 2], srdAux, sF1, (jj & 3) * 1024))
        for jj in range(8):
            late.append(lambda jj=jj: g.bload("buffer_load_ushort", vR2[jj], vRl[jj >> 2], srdAux2, sF2, (jj & 3) * 1024))
        if typ == 0:
            make_srd(g, srdPhi, sWphi, 32 * 512)
            vPh = [va.get() for _ in range(16)]
            vPa, vSign = va.get(), va.get()
            g.valu("v_bfe_u32", t1, vLane, 3, 2)
            g.valu("v_and_b32", t2, 3, vLane)
            g.valu("v_lshl_add_u32", t1, t1, 2, t2)
            g.valu("v_lshlrev_b32", t1, 1, t1)
            g.valu("v_lshrrev_b32", t2, 5, vLane)
            g.valu("v_lshl_add_u32", vPa, t2, 7, t1)
            g.valu("v_bfe_u32", t1, vLane, 2, 1)
            g.salu("s_mov_b32", sT0, 0x80008000)
            g.valu("v_mul_lo_u32", vSign, t1, sT0)
            g.salu("s_lshl_b32", sT0, sNt, 2)
            g.salu("s_add_u32", sT0, sT0, 2 * j)
            g.salu("s_lshl_b32", sPhiOff, sT0, 9)
            for hl in range(2):
                for jj in range(8):
                    late.append(lambda hl=hl, jj=jj: g.bload("buffer_load_ushort", vPh[hl * 8 + jj], vPa, srdPhi, sPhiOff,
                                                             hl * 512 + (8 * (jj >> 2) + (jj & 3)) * 32))

        acc = [va.get(16, 4) for _ in range(U)]
        X = [va.get(4, 4) for _ in range(2)]
        Wf = [[va.get(4, 4) for _ in range(U)] for _ in range(2)]
        vSS = va.get(2, 2)
        vSum, vSq = vSS[0], vSS[1]
        vSum2, vSq2 = va.get(), va.get()
        vCsA = [va.get(4, 4) for _ in range(U)]
        vSel = va.get(4, 4)
        vUn = [va.get() for _ in range(4)]
        g.valu("v_lshrrev_b32", t1, 4, vLane)
        g.valu("v_xor_b32", t1, t1, vLane)
        g.valu("v_and_b32", t1, 1, t1)
        g.valu("v_cmp_eq_u32", VCC, 0, t1)
        g.valu("v_mov_b32", t1, 0)
        g.valu("v_mov_b32", t2, ONES_BF)
        for q in range(4):
            g.valu("v_cndmask_b32", vSel[q], t1, t2, VCC)
        sHiMask = sOnes
        g.salu("s_mov_b32", sHiMask, 0xFFFF0000)
        for z in [vSum, vSq, vSum2, vSq2]:
            g.valu("v_mov_b32", z, 0)

        def rd_x(T):
            s, t = divmod(T, 4)
            g.ds_read("ds_read_b128", X[T & 1], vXa[t], (s % 3) * A_BUF)

        def rd_w(T, u):
            if "nords" in ABL and T > 0:
                return
            s, t = divmod(T, 4)
            b = s % 3
            base, off = (vWa[t], b * B_BUF) if b < 2 else (vWb[t], 0)
            for half in range(2):
                g.ds_read("ds_read_b64_tr_b16", Wf[T & 1][u][2 * half:2 * half + 2], base,
                          off + half * 4 * 448 + u * 128)

        def flag_zero():
            g.salu("s_lshl_b32", sT0, sGw, 13)
            g.salu("s_add_u32", sT0, sT0, WS_FLG)
            g.salu("s_cmp_lt_u32", None, sGw, 2)
            g.salu("s_cselect_b32", sT0, sT0, 0x7FFF0000)
            g.valu("v_lshlrev_b32", t0, 7, vLane)
            g.valu("v_mov_b32", t1, 0)
            g.bstore("buffer_store_dword", t1, t0, srdWs, sT0, mods=STM)

        def relayout_store():
            for n_, (vr, dsto) in enumerate(((vR1, sF1d), (vR2, sF2d))):
                pk = va_tmp[n_]
                for q in range(4):
                    g.valu("v_lshl_or_b32", pk[q], vr[2 * q + 1], 16, vr[2 * q])
                g.bstore("buffer_store_dwordx4", pk, vL16, srdWs, dsto, mods=STM)

        va_tmp = [va.get(4, 4), va.get(4, 4)]

        stamp(g, 3)
        g.wait_vm_tag(("dma", 0))
        g.barrier()
        stamp(g, 4)
        rd_x(0)
        for u in range(U):
            rd_w(0, u)

        for T in range(32):
            s, t = divmod(T, 4)
            cur = T & 1
            last = (T == 31)
            fill = [[] for _ in range(U)]
            if "nodot" not in ABL:
                ops = []
                for r in (2 * j, 2 * j + 1):
                    lo, hi = vUn[2 * (r & 1)], vUn[2 * (r & 1) + 1]
                    ops += [lambda r=r, lo=lo: g.valu("v_lshlrev_b32", lo, 16, X[cur][r]),
                            lambda r=r, hi=hi: g.valu("v_and_b32", hi, sHiMask, X[cur][r]),
                            lambda lo=lo: g.valu("v_add_f32", vSum, vSum, lo),
                            lambda hi=hi: g.valu("v_add_f32", vSum2, vSum2, hi),
                            lambda lo=lo: g.valu("v_fma_f32", vSq, lo, lo, vSq),
                            lambda hi=hi: g.valu("v_fma_f32", vSq2, hi, hi, vSq2)]
                per = 12 // U
                for u in range(U):
                    fill[u] += ops[u * per:(u + 1) * per]
                if t < U:
                    fill[t].insert(0, lambda t=t: g.mfma(vCsA[t], Wf[cur][t], vSel, vCsA[t] if s else 0,
                                                         op="v_mfma_f32_16x16x32_bf16"))
            boundary = (t == 3 and not last)
            for u in range(U):
                if "nomfma" not in ABL or T == 0:
                    g.mfma(acc[u], Wf[cur][u], X[cur], acc[u] if T else 0)
                else:
                    g._wait_for_regs(Wf[cur][u].regs() + X[cur].regs())
                if not boundary and not last:
                    if u == 0:
                        rd_x(T + 1)
                    rd_w(T + 1, u)
                if boundary and u == 1:
                    g.waitcnt(lg=0)
                    g.wait_vm_tag(("dma", s + 1))
                    g.barrier()
                    rd_x(T + 1)
                    for uu in range(U):
                        rd_w(T + 1, uu)
                if boundary and u == 1:
                    assert not side
                    if s + 3 <= 7 and "nodma" not in ABL:
                        side += dma_items(s + 3)
                        sched["n"] = (U - 2) + 3 * U
                        sched["k"] = len(side)
                        sched["i"] = 0
                elif not (boundary and u < 2):
                    did = False
                    if side:
                        i0 = sched["i"]
                        if (i0 + 1) * sched["k"] // sched["n"] > i0 * sched["k"] // sched["n"]:
                            side.pop(0)()
                            did = True
                        sched["i"] += 1
                    if not did and late and T >= 16:
                        late.pop(0)()
                for f in fill[u]:
                    f()
            if T in (7, 15, 23, 31):
                stamp(g, 5 + T // 8)
        assert not side
        while late:
            late.pop(0)()
        vRa, vCa, vRr, vCr = va.get(), va.get(), va.get(), va.get()
        g.valu("v_and_b32", t0, 31, vLane)
        g.valu("v_lshrrev_b32", t2, 5, vLane)
        g.salu("s_lshl_b32", sT0, sI, 5)
        g.valu("v_add_u32", t1, sT0, t0)
        g.valu("v_lshlrev_b32", vRr, 5, t1)
        g.valu("v_add_u32", vRr, RS, vRr)
        g.valu("v_lshl_add_u32", vRa, t2, 3, vRr)
        g.valu("v_lshlrev_b32", vCr, 2, t0)
        g.valu("v_add_u32", vCr, CS + j * 512, vCr)
        g.valu("v_and_b32", t1, 1, vLane)
        g.valu("v_lshlrev_b32", t1, 6, t1)
        g.valu("v_lshrrev_b32", t2, 4, vLane)
        g.valu("v_lshl_add_u32", vCa, t2, 4, t1)
        g.salu("s_lshl_b32", sT0, sI, 7)
        g.salu("s_add_u32", sT0, sT0, CS + j * 512)
        g.valu("v_add_u32", vCa, sT0, vCa)
        g.valu("v_add_f32", vSum, vSum, vSum2)
        g.valu("v_add_f32", vSq, vSq, vSq2)
        g.ds_write("ds_write_b64", vRa, vSS, j * 16)
        g.salu("s_mov_b32", EXEC[0], 0x00030003)
        g.salu("s_mov_b32", EXEC[1], 0x00030003)
        for u in range(U):
            g.ds_write("ds_write_b128", vCa, vCsA[u], u * 1024)
        g.salu("s_mov_b64", EXEC, -1)
        g.waitcnt(lg=0)
        g.barrier()
        stamp(g, 9)
        csr = [va.get(16, 4) for _ in range(2)]
        rsr = csr[0][0:8]
        g.ds_read("ds_read_b128", rsr[0:4], vRr)
        g.ds_read("ds_read_b128", rsr[4:8], vRr, 16)
        cpt = [csr[1][4 * u:4 * u + 4] for u in range(U)]
        for u in range(U):
            for i_ in range(4):
                g.ds_read("ds_read_b32", cpt[u][i_], vCr, u * 1024 + i_ * 128)
        vMean, vVar, vRinv, vNr2 = va.get(), va.get(), va.get(), va.get()
        g.valu("v_add_f32", rsr[0], rsr[0], rsr[2])
        g.valu("v_add_f32", rsr[1], rsr[1], rsr[3])
        g.valu("v_add_f32", rsr[4], rsr[4], rsr[6])
        g.valu("v_add_f32", rsr[5], rsr[5], rsr[7])
        g.valu("v_add_f32", rsr[0], rsr[0], rsr[4])
        g.valu("v_add_f32", rsr[1], rsr[1], rsr[5])
        g.valu("v_mul_f32", vMean, 1.0 / 512, rsr[0])
        g.valu("v_mul_f32", vVar, 1.0 / 512, rsr[1])
        g.valu("v_fma_f32", vVar, Neg(vMean), vMean, vVar)
        MB = X[0]
        g.valu("v_cvt_pk_bf16_f32", MB[0], Neg(vMean), Neg(vMean))
        g.valu("v_cmp_gt_u32", VCC, 32, vLane)
        g.valu("v_mov_b32", MB[2], 0)
        g.valu("v_mov_b32", MB[3], 0)
        g.valu("v_cndmask_b32", MB[0], MB[2], MB[0], VCC)
        g.valu("v_and_b32", MB[1], 0xFFFF, MB[0])
        bf16_round(g, vVar, vVar)
        g.valu("v_add_f32", vVar, 1e-5, vVar)
        bf16_round(g, vVar, vVar)
        g.valu("v_sqrt_f32", vVar, vVar)
        bf16_round(g, vVar, vVar)
        g.valu("v_rcp_f32", vRinv, vVar)
        g.salu("s_mov_b32", sT3, 0x07060302)
        CA = [Wf[0][u] for u in range(U)]
        for u in range(U):
            c = cpt[u]
            g.valu("v_add_f32", c[0], c[0], c[1])
            g.valu("v_add_f32", c[2], c[2], c[3])
            g.valu("v_add_f32", c[0], c[0], c[2])
            g.valu("v_and_b32", c[1], sHiMask, c[0])
            g.valu("v_sub_f32", c[1], c[0], c[1])
            g.valu("v_and_b32", c[2], sHiMask, c[1])
            g.valu("v_sub_f32", c[2], c[1], c[2])
            g.valu("v_perm_b32", CA[u][0], c[1], c[0], sT3)
            g.valu("v_lshrrev_b32", CA[u][1], 16, c[2])
            g.valu("v_mov_b32", CA[u][2], 0)
            g.valu("v_mov_b32", CA[u][3], 0)
            g.mfma(acc[u], CA[u], MB, acc[u])
        g.valu("v_mul_f32", vNr2, -LOG2E, vRinv)
        relayout_store()
        if role == 0:
            flag_zero()

        if typ == 1:
            g.salu("s_lshl_b32", sT0, sMt, 2)
            g.salu("s_add_u32", sT0, sT0, sI)
            g.salu("s_mul_i32", sT0, sT0, 112)
            g.salu("s_mul_i32", sT1, sNt, 14)
            g.salu("s_add_u32", sT0, sT0, sT1)
            g.salu("s_add_u32", sT0, sT0, 2 * j)
            g.salu("s_lshl_b32", sOut, sT0, 10)
            e = [va.get() for _ in range(8)]
            pk = [va.get(4, 4) for _ in range(2)]
            g.salu("s_mov_b32", sT2, -LOG2E)
            for u in range(U):
                for m in range(2):
                    rr = range(8 * m, 8 * m + 8)
                    for r in rr:
                        g.valu("v_mul_f32", acc[u][r], vNr2, acc[u][r])
                    for r in rr:
                        g.valu("v_exp_f32", e[r & 7], acc[u][r])
                    for r in rr:
                        g.valu("v_fma_f32", e[r & 7], e[r & 7], sT2, sT2)
                    for r in rr:
                        g.valu("v_rcp_f32", e[r & 7], e[r & 7])
                    for r in rr:
                        g.valu("v_mul_f32", acc[u][r], acc[u][r], e[r & 7])
                    for q in range(4):
                        g.valu("v_cvt_pk_bf16_f32", pk[m][q], acc[u][8 * m + 2 * q], acc[u][8 * m + 2 * q + 1])
                    g.bstore("buffer_store_dwordx4", pk[m], vL16, srdWs, sOut, m * 1024, mods=STM)
                if u + 1 < U:
                    g.salu("s_add_u32", sOut, sOut, 4096)
        else:
            PH = [va.get(4, 4) for _ in range(2)]
            for hl in range(2):
                for q in range(4):
                    g.valu("v_lshl_or_b32", PH[hl][q], vPh[hl * 8 + 2 * q + 1], 16, vPh[hl * 8 + 2 * q])
                    g.valu("v_xor_b32", PH[hl][q], vSign, PH[hl][q])
            for u in (2, 1, 0):
                for r in range(16):
                    g.valu("v_mul_f32", acc[u][r], vRinv, acc[u][r])
            vIm = va.get()
            g.valu("v_and_b32", t0, 31, vLane)
            g.salu("s_lshl_b32", sT0, sI, 5)
            g.valu("v_add_u32", t0, sT0, t0)
            g.valu("v_lshlrev_b32", t0, 6, t0)
            g.valu("v_lshrrev_b32", t1, 5, vLane)
            g.valu("v_lshl_add_u32", vIm, t1, 3, t0)
            assert Wf[1][2].i == Wf[1][1].i + 4
            pk8 = V(Wf[1][1].i, 8)
            D2 = csr
            QF = X
            vMx, vSm = va.get(), va.get()
            for q in range(8):
                g.valu("v_cvt_pk_bf16_f32", pk8[q], acc[2][2 * q], acc[2][2 * q + 1])
            for q in range(4):
                g.ds_write("ds_write_b64", vIm, pk8[2 * q:2 * q + 2], V_IMG + j * 8192 + q * 16)

            def phi(u):
                for hl in range(2):
                    for q in range(4):
                        g.valu("v_cvt_pk_bf16_f32", QF[hl][q], acc[u][8 * hl + 2 * q], acc[u][8 * hl + 2 * q + 1])
                for hl in range(2):
                    g.mfma(D2[hl], PH[hl], QF[hl], 0)

            def softmax(hl):
                D = D2[hl]
                g.valu("v_max3_f32", vMx, D[0], D[1], D[2])
                for r in range(3, 15, 2):
                    g.valu("v_max3_f32", vMx, vMx, D[r], D[r + 1])
                g.valu("v_max_f32", vMx, vMx, D[15])
                g.valu("v_mul_f32", vMx, -LOG2E, vMx)
                for r in range(16):
                    g.valu("v_fma_f32", D[r], D[r], sLog2e, vMx)
                for r in range(16):
                    g.valu("v_exp_f32", D[r], D[r])
                g.valu("v_add_f32", vSm, D[0], D[1])
                for r in range(2, 16):
                    g.valu("v_add_f32", vSm, vSm, D[r])
                g.valu("v_rcp_f32", vSm, vSm)
                for r in range(16):
                    g.valu("v_mul_f32", D[r], vSm, D[r])
                for q in range(8):
                    g.valu("v_cvt_pk_bf16_f32", pk8[q], D[2 * q], D[2 * q + 1])

            sLog2e = sT3
            g.salu("s_mov_b32", sLog2e, LOG2E)
            phi(1)
            for hl in range(2):
                softmax(hl)
                for q in range(4):
                    g.ds_write("ds_write_b64", vIm, pk8[2 * q:2 * q + 2], PHK_IMG + (2 * j + hl) * 8192 + q * 16)
            g.waitcnt(lg=0)
            g.barrier()
            phi(0)
            g.salu("s_lshl_b32", sT0, sMt, 2)
            g.salu("s_add_u32", sT0, sT0, sI)
            g.salu("s_lshl_b32", sT0, sT0, 5)
            g.salu("s_lshl_b32", sT1, sNt, 2)
            g.salu("s_add_u32", sT0, sT0, sT1)
            g.salu("s_add_u32", sT0, sT0, 2 * j)
            g.salu("s_lshl_b32", sOut, sT0, 11)
            g.salu("s_add_u32", sOut, sOut, WS_PQ)
            for hl in range(2):
                softmax(hl)
                for m in range(2):
                    g.bstore("buffer_store_dwordx4", pk8[4 * m:4 * m + 4], vL16, srdWs, sOut, (hl * 2 + m) * 1024, mods=STM)
            if j == 0:
                vKa, vVa, vOne = va.get(), va.get(), va.get()
                g.valu("v_lshrrev_b32", t1, 5, vLane)
                g.valu("v_bfe_u32", t2, vLane, 2, 2)
                g.valu("v_lshl_add_u32", t1, t1, 3, t2)
                g.valu("v_lshlrev_b32", t1, 6, t1)
                g.valu("v_and_b32", t2, 3, vLane)
                g.valu("v_lshl_add_u32", t1, t2, 3, t1)
                g.valu("v_bfe_u32", t2, vLane, 4, 1)
                g.valu("v_lshl_add_u32", t2, t2, 5, t1)
                g.salu("s_lshl_b32", sT0, sI, 13)
                g.valu("v_add_u32", vKa, sT0, t2)
                g.salu("s_lshr_b32", sT0, sI, 1)
                g.salu("s_lshl_b32", sT0, sT0, 13)
                g.salu("s_and_b32", sT1, sI, 1)
                g.salu("s_lshl_b32", sT1, sT1, 5)
                g.salu("s_add_u32", sT0, sT0, sT1)
                g.salu("s_add_u32", sT0, sT0, V_IMG)
                g.valu("v_add_u32", vVa, sT0, t1)
                g.valu("v_mov_b32", vOne, ONES_BF)
                g.salu("s_mov_b32", sMask[0], 0xFFFF0000)
                g.salu("s_mov_b32", sMask[1], 0xFFFF0000)
                KA = [Wf[0][0], Wf[0][1]]
                KB = [Wf[0][2], Wf[1][0]]
                D3 = D2[0]

                def rd_kv(ks):
                    for half in range(2):
                        g.ds_read("ds_read_b64_tr_b16", KA[ks & 1][2 * half:2 * half + 2], vKa, ks * 1024 + half * 256)
                    for half in range(2):
                        g.ds_read("ds_read_b64_tr_b16", KB[ks & 1][2 * half:2 * half + 2], vVa, ks * 1024 + half * 256)

                rd_kv(0)
                for ks in range(8):
                    if ks + 1 < 8:
                        rd_kv(ks + 1)
                    for r in range(4):
                        g.valu("v_cndmask_b32_e64", KB[ks & 1][r], KB[ks & 1][r], vOne, sMask)
                    g.mfma(D3, KA[ks & 1], KB[ks & 1], D3 if ks else 0)
                g.salu("s_lshl_b32", sT0, sMt, 5)
                g.salu("s_lshl_b32", sT1, sNt, 2)
                g.salu("s_add_u32", sT0, sT0, sT1)
                g.salu("s_add_u32", sT0, sT0, sI)
                g.salu("s_lshl_b32", sOut, sT0, 12)
                g.salu("s_add_u32", sOut, sOut, WS_PART)
                for q in range(4):
                    g.bstore("buffer_store_dwordx4", D3[4 * q:4 * q + 4], vL16, srdWs, sOut, q * 1024, mods=STM)
        stamp(g, 10)
        g.waitcnt(vm=0)
        stamp(g, 11)
        stamp(g, 13, True)
        stamp_flush(g, 14, srdWs, sGw, sT0, t0, t1)
        g.raw("s_endpgm")
        maxv = max(maxv, va.hi)
        out.append(g.text())
    out.append("hh_k1_exit:\n    s_endpgm\n")
    return name, "".join(out), maxv


def gen_kr():
    name = "hh_kr_kernel"
    CURK[0] = "kr"
    g = Gen()
    sKarg, sWG = S(0, 2), S(2)
    sWs, srdWs = S(4, 2), S(8, 4)
    sW, sT0, sT1, sOff = S(12), S(13), S(14), S(15)
    g.label(name)
    g.salu("s_cmp_ge_u32", None, sWG, 32)
    g.raw("s_cbranch_scc1 hh_kr_exit")
    g.sload(sWs, sKarg, 72)
    vLane, vT, vL16, vL8 = V(1), V(2), V(3), V(4)
    g.valu("v_lshrrev_b32", vT, 6, V(0))
    g.valu("v_and_b32", vLane, 63, V(0))
    g.valu("v_readfirstlane_b32", sW, vT)
    g.valu("v_lshlrev_b32", vL16, 4, vLane)
    g.lg = []
    g.raw("s_waitcnt lgkmcnt(0)")
    make_srd(g, srdWs, sWs, WS_SIZE)
    g.salu("s_lshl_b32", sT0, sWG, 2)
    g.salu("s_add_u32", sT0, sT0, sW)
    g.salu("s_lshl_b32", sOff, sT0, 10)
    g.salu("s_add_u32", sOff, sOff, WS_PART)
    P = [V(8 + 4 * m, 4) for m in range(16)]
    for m in range(16):
        g.bload("buffer_load_dwordx4", P[m], vL16, srdWs, sOff)
        if m < 15:
            g.salu("s_add_u32", sOff, sOff, 32 * 4096)
    for m in range(1, 16):
        for r in range(4):
            g.valu("v_add_f32", P[0][r], P[0][r], P[m][r])
    pk = V(6, 2)
    g.valu("v_cvt_pk_bf16_f32", pk[0], P[0][0], P[0][1])
    g.valu("v_cvt_pk_bf16_f32", pk[1], P[0][2], P[0][3])
    g.salu("s_lshl_b32", sT0, sWG, 11)
    g.salu("s_lshr_b32", sT1, sW, 1)
    g.salu("s_lshl_b32", sT1, sT1, 10)
    g.salu("s_add_u32", sT0, sT0, sT1)
    g.salu("s_and_b32", sT1, sW, 1)
    g.salu("s_lshl_b32", sT1, sT1, 3)
    g.salu("s_add_u32", sT0, sT0, sT1)
    g.salu("s_add_u32", sOff, sT0, WS_KV)
    g.bstore("buffer_store_dwordx2", pk, vL16, srdWs, sOff)
    g.raw("s_endpgm")
    return name, g.text() + "hh_kr_exit:\n    s_endpgm\n", 72


K2_LDS = 48 * 1024


def gen_k2(NS=28):
    name = "hh_k2_kernel"
    CURK[0] = "k2"
    g = Gen()
    out = []
    sKarg, sWG = S(0, 2), S(2)
    sX, sWs, sOutp, sDbg = S(4, 2), S(6, 2), S(8, 2), S(10, 2)
    srdX, srdO, srdWs, srdDbg = S(12, 4), S(16, 4), S(20, 4), S(44, 4)
    sW, sMt, sNt, sT0, sT1, sT2 = (S(24 + k) for k in range(6))
    g.label(name)
    g.salu("s_cmp_ge_u32", None, sWG, 256)
    g.raw("s_cbranch_scc1 hh_k2_exit")
    stamp(g, 0)
    stamp(g, 12, True)
    g.sload(sWs, sKarg, 72)
    g.sload(sX, sKarg, 0)
    g.sload(S(8, 4), sKarg, 56)
    va = VAlloc(1, 256)
    vLane, vT, vL16, vZero = va.get(), va.get(), va.get(), va.get()
    g.valu("v_lshrrev_b32", vT, 6, V(0))
    g.valu("v_and_b32", vLane, 63, V(0))
    g.valu("v_readfirstlane_b32", sW, vT)
    g.valu("v_lshlrev_b32", vL16, 4, vLane)
    g.valu("v_mov_b32", vZero, 0)
    g.salu("s_and_b32", sT0, sWG, 7)
    g.salu("s_lshl_b32", sT0, sT0, 2)
    g.salu("s_bfe_u32", sT1, sWG, (2 << 16) | 3)
    g.salu("s_or_b32", sMt, sT0, sT1)
    g.salu("s_lshr_b32", sNt, sWG, 5)
    g.salu("s_cmp_eq_u32", None, sW, 4)
    g.raw("s_cbranch_scc1 hh_k2_red")
    base_state = g
    out.append(g.text())

    g = base_state.fork()
    sH = [S(32), S(33)]
    sWn = [S(34), S(35)]
    sPQ = [S(36), S(37)]
    sWoN = [S(38), S(39)]
    sKV, sCnt, sPoll = S(40), S(41), S(42)
    g.salu("s_mul_i32", sT2, sW, 28)
    for sb in range(2):
        g.salu("s_lshl_b32", sT0, sMt, 1)
        if sb:
            g.salu("s_add_u32", sT0, sT0, sb)
        g.salu("s_mul_i32", sT1, sT0, 112)
        g.salu("s_add_u32", sT1, sT1, sT2)
        g.salu("s_lshl_b32", sH[sb], sT1, 10)
    for nb in range(2):
        g.salu("s_lshl_b32", sT0, sNt, 1)
        if nb:
            g.salu("s_add_u32", sT0, sT0, nb)
        g.salu("s_mul_i32", sT0, sT0, 144)
        g.salu("s_add_u32", sT1, sT0, sT2)
        g.salu("s_lshl_b32", sT1, sT1, 10)
        g.salu("s_add_u32", sWn[nb], sT1, WS_WF)
    g.lg = []
    g.raw("s_waitcnt lgkmcnt(0)")
    make_srd(g, srdWs, sWs, WS_SIZE)
    win = {}

    def ld(dst, sreg, off, mods=""):
        w0 = win.get(sreg.i, 0)
        if not (w0 <= off < w0 + 4096):
            g.salu("s_add_u32", sreg, sreg, off - w0)
            win[sreg.i] = w0 = off
        g.bload("buffer_load_dwordx4", dst, vL16, srdWs, sreg, off - w0, mods=mods)

    acc = [[va.get(16, 4) for sb in range(2)] for nb in range(2)]
    D = [va.get(16, 4) for _ in range(2)]
    O = [va.get(4, 4) for _ in range(2)]
    vRc, vPoll, vXo = va.get(), va.get(), va.get()
    XR = va.get(8, 4)
    slots = [va.get(4, 4) for _ in range(NS)]
    reqs = []
    for k in range(28):
        reqs += [(sWn[0], k * 1024), (sH[0], k * 1024), (sH[1], k * 1024), (sWn[1], k * 1024)]
    for h in range(8):
        reqs += [(sKV, h * 2048, "sc1"), (sPQ[0], h * 2048), (sKV, h * 2048 + 1024, "sc1"), (sPQ[0], h * 2048 + 1024),
                 (sPQ[1], h * 2048), (sPQ[1], h * 2048 + 1024), (sWoN[0], h * 1024), (sWoN[1], h * 1024)]
    issued = [0]
    gate = [112]

    def slot(q):
        return slots[q % NS]

    def issue_upto(n):
        n = min(n, len(reqs), gate[0])
        while issued[0] < n:
            q = issued[0]
            ld(slot(q), *reqs[q])
            issued[0] += 1

    stamp(g, 1)
    issue_upto(NS)
    stamp(g, 2)
    make_srd(g, srdX, sX, 2048 * 1024)
    make_srd(g, srdO, sOutp, 2048 * 1024)
    for sb in range(2):
        g.salu("s_lshl_b32", sT0, sMt, 1)
        if sb:
            g.salu("s_add_u32", sT0, sT0, sb)
        g.salu("s_lshl_b32", sT1, sT0, 5)
        g.salu("s_lshl_b32", sT2, sW, 3)
        g.salu("s_add_u32", sT1, sT1, sT2)
        g.salu("s_lshl_b32", sT1, sT1, 11)
        g.salu("s_add_u32", sPQ[sb], sT1, WS_PQ)
    for nb in range(2):
        g.salu("s_lshl_b32", sT0, sNt, 1)
        if nb:
            g.salu("s_add_u32", sT0, sT0, nb)
        g.salu("s_mul_i32", sT0, sT0, 144)
        g.salu("s_lshl_b32", sT2, sW, 3)
        g.salu("s_add_u32", sT1, sT0, sT2)
        g.salu("s_add_u32", sT1, sT1, 112)
        g.salu("s_lshl_b32", sT1, sT1, 10)
        g.salu("s_add_u32", sWoN[nb], sT1, WS_WF)
    g.salu("s_lshl_b32", sT1, sW, 14)
    g.salu("s_add_u32", sKV, sT1, WS_KV)
    g.salu("s_lshl_b32", sCnt, sW, 12)
    g.salu("s_add_u32", sCnt, sCnt, WS_FLG)
    g.salu("s_mov_b32", sPoll, 1)
    g.valu("v_and_b32", vZero, 31, vLane)
    g.valu("v_lshlrev_b32", vZero, 7, vZero)
    t0, t1 = vRc, vPoll
    g.salu("s_and_b32", sT0, sW, 1)
    g.salu("s_lshl_b32", sT0, sT0, 5)
    g.salu("s_lshl_b32", sT1, sMt, 6)
    g.salu("s_add_u32", sT0, sT0, sT1)
    g.valu("v_and_b32", t0, 31, vLane)
    g.valu("v_add_u32", t0, sT0, t0)
    g.valu("v_lshlrev_b32", vXo, 10, t0)
    g.salu("s_lshr_b32", sT0, sW, 1)
    g.salu("s_lshl_b32", sT0, sT0, 6)
    g.salu("s_lshl_b32", sT1, sNt, 7)
    g.salu("s_add_u32", sT0, sT0, sT1)
    g.valu("v_add_u32", vXo, sT0, vXo)
    g.valu("v_lshrrev_b32", t1, 5, vLane)
    g.valu("v_lshl_add_u32", vXo, t1, 3, vXo)

    for k in range(28):
        b = 4 * k
        Wn0, H0, H1, Wn1 = (slot(b + i) for i in range(4))
        g.mfma(acc[0][0], Wn0, H0, acc[0][0] if k else 0)
        g.mfma(acc[0][1], Wn0, H1, acc[0][1] if k else 0)
        issue_upto(b + 1 + NS)
        g.mfma(acc[1][0], Wn1, H0, acc[1][0] if k else 0)
        issue_upto(b + 2 + NS)
        g.mfma(acc[1][1], Wn1, H1, acc[1][1] if k else 0)
        issue_upto(b + 4 + NS)
        if k == 17 and not KR:
            g.bload("buffer_load_dword", vPoll, vZero, srdWs, sCnt, mods="sc1")
        if k == 20:
            if not KR:
                g.valu("v_cmp_ne_u32", VCC, sPoll, vPoll)
                g.salu("s_cmp_eq_u64", None, VCC, 0)
                g.raw("s_cbranch_scc1 hh_k2_kvok")
                g.raw(f"s_mov_b32 {sT2}, 0")
                g.label("hh_k2_spin")
                g.raw("s_sleep 4")
                g.raw(f"buffer_load_dword {vPoll}, {vZero}, {srdWs}, {sCnt} offen sc1")
                g.raw(f"s_add_u32 {sT2}, {sT2}, 1")
                g.raw("s_waitcnt vmcnt(0)")
                g.raw(f"s_cmp_ge_u32 {sT2}, 0x10000")
                g.raw("s_cbranch_scc1 hh_k2_kvok")
                g.raw(f"v_cmp_ne_u32 vcc, {sPoll}, {vPoll}")
                g.raw("s_nop 3")
                g.raw("s_cmp_eq_u64 vcc, 0")
                g.raw("s_cbranch_scc0 hh_k2_spin")
                g.label("hh_k2_kvok")
            gate[0] = 10 ** 9
            for q in range(4):
                g.bload("buffer_load_dwordx2", XR[2 * q:2 * q + 2], vXo, srdX, 0, q * 16)
        if k in (0, 6, 13, 20, 27):
            stamp(g, 3 + (0, 6, 13, 20, 27).index(k))
    for h in range(8):
        b = 112 + 8 * h
        KV0, P00, KV1, P01, P10, P11, WO0, WO1 = (slot(b + i) for i in range(8))
        g.mfma(D[0], KV0, P00, 0)
        g.mfma(D[0], KV1, P01, D[0])
        g.mfma(D[1], KV0, P10, 0)
        g.mfma(D[1], KV1, P11, D[1])
        issue_upto(b + 6 + NS)
        for sb in range(2):
            g.valu("v_add_f32", vRc, 1e-6, D[sb][8])
            g.valu("v_rcp_f32", vRc, vRc)
            for r in range(8):
                g.valu("v_mul_f32", D[sb][r], vRc, D[sb][r])
            for q in range(4):
                g.valu("v_cvt_pk_bf16_f32", O[sb][q], D[sb][2 * q], D[sb][2 * q + 1])
            g.mfma(acc[0][sb], WO0, O[sb], acc[0][sb])
            g.mfma(acc[1][sb], WO1, O[sb], acc[1][sb])
        issue_upto(b + 8 + NS)
        if h in (3, 7):
            stamp(g, 8 + h // 4)
    g.waitcnt(vm=0)
    for w in range(1, 4):
        g.salu("s_cmp_eq_u32", None, sW, w)
        g.raw(f"s_cbranch_scc1 hh_k2_ep{w}")
    out.append(g.text())
    ep_state = g
    for w in range(4):
        g = ep_state.fork()
        g.label(f"hh_k2_ep{w}")
        quads = [(0, 0), (0, 1), (1, 0), (1, 1)]
        for Q in range(4):
            if Q == w:
                continue
            k_ = (w - Q - 1) % 4
            nb, sb = quads[Q]
            for q in range(4):
                g.ds_write("ds_write_b128", vL16, acc[nb][sb][4 * q:4 * q + 4], (Q * 3 + k_) * 4096 + q * 1024)
        own = acc[quads[w][0]][quads[w][1]]
        tx = D[0]
        for r in range(16):
            src = XR[r >> 1]
            if r & 1:
                g.valu("v_and_b32", tx[r], 0xFFFF0000, src)
            else:
                g.valu("v_lshlrev_b32", tx[r], 16, src)
        for r in range(16):
            g.valu("v_add_f32", own[r], own[r], tx[r])
        g.waitcnt(lg=0)
        g.barrier()
        RD = [V(slots[4 * k_].i, 16) for k_ in range(3)]
        for k_ in range(3):
            for q in range(4):
                g.ds_read("ds_read_b128", RD[k_][4 * q:4 * q + 4], vL16, (w * 3 + k_) * 4096 + q * 1024)
        for r in range(16):
            g.valu("v_add_f32", own[r], own[r], RD[0][r])
        for r in range(16):
            g.valu("v_add_f32", RD[1][r], RD[1][r], RD[2][r])
        for r in range(16):
            g.valu("v_add_f32", own[r], own[r], RD[1][r])
        po = D[1]
        for q in range(8):
            g.valu("v_cvt_pk_bf16_f32", po[q], own[2 * q], own[2 * q + 1])
        for i_ in range(2):
            g.valu("v_permlane32_swap_b32", [po[i_], po[2 + i_]])
            g.valu("v_permlane32_swap_b32", [po[4 + i_], po[6 + i_]])
        g.valu("v_lshrrev_b32", vRc, 5, vLane)
        g.valu("v_lshl_add_u32", vXo, vRc, 3, vXo)
        g.bstore("buffer_store_dwordx4", po[0:4], vXo, srdO, 0)
        g.bstore("buffer_store_dwordx4", po[4:8], vXo, srdO, 0, 32)
        stamp(g, 10)
        if STAMPS == "k2":
            g.waitcnt(vm=0)
        stamp(g, 11)
        stamp(g, 13, True)
        g.salu("s_lshl_b32", sT2, sWG, 2)
        g.salu("s_add_u32", sT2, sT2, sW)
        stamp_flush(g, 14, srdWs, sT2, sT0, vRc, vPoll)
        g.raw("s_endpgm")
        out.append(g.text())

    g = base_state.fork()
    g.label("hh_k2_red")
    g.salu("s_cmp_ge_u32", None, sWG, 128)
    g.raw("s_cbranch_scc1 hh_k2_exit")
    g.raw("s_setprio 3")
    g.lg = []
    g.raw("s_waitcnt lgkmcnt(0)")
    make_srd(g, srdWs, sWs, WS_SIZE)
    sOff = S(32)
    vA = V(6)
    g.valu("v_and_b32", vA, 31, vLane)
    g.valu("v_lshlrev_b32", vA, 4, vA)
    g.valu("v_lshrrev_b32", vT, 5, vLane)
    g.valu("v_lshl_add_u32", vT, vT, 10, vA)
    g.salu("s_lshr_b32", sT0, sWG, 1)
    g.salu("s_lshl_b32", sOff, sT0, 11)
    g.salu("s_and_b32", sT1, sWG, 1)
    g.salu("s_lshl_b32", sT1, sT1, 9)
    g.salu("s_add_u32", sOff, sOff, sT1)
    g.salu("s_add_u32", sOff, sOff, WS_PART)
    P = [V(12 + 4 * m, 4) for m in range(16)]
    for m in range(16):
        g.bload("buffer_load_dwordx4", P[m], vT, srdWs, sOff)
        if m < 15:
            g.salu("s_add_u32", sOff, sOff, 32 * 4096)
    stamp(g, 1)
    for st in (1, 2, 4, 8):
        for m in range(0, 16, 2 * st):
            for r in range(4):
                g.valu("v_add_f32", P[m][r], P[m][r], P[m + st][r])
    stamp(g, 2)
    pk = V(8, 4)
    g.valu("v_cvt_pk_bf16_f32", pk[0], P[0][0], P[0][1])
    g.valu("v_cvt_pk_bf16_f32", pk[1], P[0][2], P[0][3])
    g.valu("v_mov_b32", pk[2], pk[0])
    g.valu("v_mov_b32", pk[3], pk[1])
    g.valu("v_permlane32_swap_b32", [pk[0], pk[2]])
    g.valu("v_permlane32_swap_b32", [pk[1], pk[3]])
    g.salu("s_lshl_b32", sOff, sWG, 9)
    g.salu("s_add_u32", sOff, sOff, WS_KV)
    g.salu("s_mov_b32", EXEC[1], 0)
    g.bstore("buffer_store_dwordx4", pk, vA, srdWs, sOff, mods="sc1")
    g.valu("v_mov_b32", vT, 1)
    g.salu("s_lshl_b32", sT1, sWG, 7)
    g.salu("s_add_u32", sT1, sT1, WS_FLG)
    g.waitcnt(vm=0)
    stamp(g, 3)
    g.salu("s_mov_b64", EXEC, 1)
    g.bstore("buffer_store_dword", vT, vZero, srdWs, sT1, mods="sc1")
    if STAMPS == "k2":
        g.waitcnt(vm=0)
        for i_ in range(4, 12):
            stamp(g, i_)
        stamp(g, 13, True)
        g.salu("s_add_u32", sT2, sWG, 1024)
        stamp_flush(g, 14, srdWs, sT2, sT0, V(6), V(7))
    g.raw("s_endpgm")
    out.append(g.text())
    return name, "".join(out) + "hh_k2_exit:\n    s_endpgm\n", va.hi


def descriptor(name, nv):
    nv4 = (nv + 3) // 4 * 4
    return f""".amdhsa_kernel {name}
  .amdhsa_next_free_vgpr {nv4}
  .amdhsa_next_free_sgpr 102
  .amdhsa_accum_offset {nv4}
  .amdhsa_group_segment_fixed_size 0
  .amdhsa_kernarg_size 80
  .amdhsa_user_sgpr_count 2
  .amdhsa_user_sgpr_kernarg_segment_ptr 1
  .amdhsa_system_sgpr_workgroup_id_x 1
.end_amdhsa_kernel
"""


def main(path):
    ks = [gen_k1(), gen_k2()]
    launches = [
        f"; @launch kernel=hh_k1_kernel grid=(256,1,1) block=(512,1,1) lds={K1_LDS}",
        f"; @launch kernel=hh_k2_kernel grid=(256,1,1) block=({256 if KR else 320},1,1) lds={K2_LDS}",
    ]
    if KR:
        ks.append(gen_kr())
        launches.insert(1, "; @launch kernel=hh_kr_kernel grid=(32,1,1) block=(256,1,1) lds=0")
    s = "; hedgehog linear attention + SiLU FFN parallel block (generated by my own generator script)\n"
    s += "\n".join(launches) + "\n"
    s += '.amdgcn_target "amdgcn-amd-amdhsa--gfx950"\n.text\n'
    for name, txt, nv in ks:
        s += f".globl {name}\n.p2align 8\n.type {name},@function\n" + txt
    s += '.section .rodata,"a"\n'
    for name, txt, nv in ks:
        s += ".p2align 6\n" + descriptor(name, nv)
        print(name, "vgprs", nv, "lines", txt.count("\n"), file=sys.stderr)
    open(path, "w").write(s)


if __name__ == "__main__":
    if len(sys.argv) > 2 and sys.argv[2].startswith("stamps"):
        STAMPS = sys.argv[2][6:] or "k1"
        ABL.update(sys.argv[3:])
    main(sys.argv[1] if len(sys.argv) > 1 else
         "parallel_sum__linear_kernel_hedgehog__dense_activation_silu__prompt.s")
```

```python
import sys
import os
from asmlib import *

WS_HF = 0x0
WS_PQ = 0x700000
WS_PART = 0xE00000
WS_KV = 0x1000000
WS_FLG = 0x1010000
FH, FQ, FP, FK = 0, 16384, 32768, 36864
WS_SIZE = 0x1100000
WS_DBG = 0x1080000

LOG2E = 1.4426950408889634
ONES_BF = 0x3F803F80
OOR = 0x7FFF0000

A_BUF = 16384
A_BASE = 49152
B_BUF = 16384
NRING = 9
RS = 147456
CS = RS + 4096
LDS_BYTES = RS + 4096 + 7 * 1024
PHK_IMG = 98304
V_IMG = 131072

STAMPS = False
ABL = set()
STM = "sc0 sc1"
MAPA = os.environ.get("MAPA", "local")
NS = int(os.environ.get("NS", "14"))
SPIN_MAX = 0x8000

NAME = "parallel_sum__linear_kernel_hedgehog__dense_activation_silu__prompt_kernel"


def make_srd(g, srd, base, nbytes, off=None):
    if off is None:
        g.salu("s_mov_b32", srd[0], base[0])
        g.salu("s_mov_b32", srd[1], base[1])
    else:
        g.salu("s_add_u32", srd[0], base[0], off)
        g.salu("s_addc_u32", srd[1], base[1], 0)
    g.salu("s_mov_b32", srd[2], nbytes)
    g.salu("s_mov_b32", srd[3], 0x20000)


def stamp(g, idx, real=False):
    if STAMPS:
        g.raw(f"{'s_memrealtime' if real else 's_memtime'} s[{72 + 2 * idx}:{73 + 2 * idx}]")


def bf16_round(g, dst, src):
    g.valu("v_cvt_pk_bf16_f32", dst, src, src)
    g.valu("v_lshlrev_b32", dst, 16, dst)


sKarg, sWG = S(0, 2), S(2)
sX, sWqkv, sWphi, sWo, sW1, sW2, sOutp, sDbg = (S(4 + 2 * k, 2) for k in range(8))
srdX, srdW, srdWs, srdW2, srdWo, srdPhi, srdDbg = (S(20 + 4 * k, 4) for k in range(7))
srdO = srdPhi
sW, sI, sJ, sMt, sNt, sType, sXcd, sIdx = (S(48 + k) for k in range(8))
sT0, sT1, sT2, sT3 = S(56), S(57), S(58), S(59)
sKA, sKB, sAm0, sBm0, sOnes, sGw = S(60), S(61), S(62), S(63), S(64), S(65)
sMask = S(66, 2)
sOut, sPhiOff = S(68), S(69)
sWs = S(70, 2)
sW2o, sRing = S(100), S(101)
sH = [S(24), S(25)]
sPQ = [S(26), S(27)]
sKV, sWoO, sMj0, sMj1 = S(60), S(61), S(62), S(63)
sMq, sRoff, sKvo, sKvf = S(6), S(7), S(12), S(13)
sMt2, sNt2 = S(3), S(8)
sSpin = S(9)

vLane = V(1)
vL16, vPollA, vPoll, vDma, vE0, vE1, vRd, vXo, vRc, vRa2 = (V(240 + k) for k in range(10))
vWr = [[V(250 + 2 * b + nb) for nb in range(2)] for b in range(3)]

FFN_ORDER = list(range(14))
NSTEP = 18


def ring_dma(g, t, es=(0, 1)):
    for e in es:
        if t < 14:
            g.salu("s_add_u32", sT3, sW2o, (16 * FFN_ORDER[t] + 8 * e) * 1024)
            srd = srdW2
        else:
            g.salu("s_add_u32", sT3, sWoO, (16 * (t - 14) + 8 * e) * 1024)
            srd = srdWo
        g.salu("s_add_u32", M0, sRing, (t % NRING) * 16384 + e * 1024)
        g.dma(vDma, srd, sT3, tag=("ring", t))


_lab = [0]


SLEEP = int(os.environ.get("SLEEP", "8"))


def spin_check(g, mask, hi=False, first=False):
    _lab[0] += 1
    n = _lab[0]
    vc = "vcc_hi" if hi else "vcc_lo"
    if not first:
        g.valu("v_cmp_eq_u32", VCC, 1, vPoll)
        g.nop(1)
        g.raw(f"s_and_b32 {sT0}, {vc}, {opstr(mask)}")
        g.raw(f"s_cmp_eq_u32 {sT0}, {opstr(mask)}")
        g.raw(f"s_cbranch_scc1 hh_ok{n}")
    g.raw(f"s_mov_b32 {sSpin}, 0")
    g.raw(f"s_mov_b32 exec_lo, {opstr(0 if hi else mask)}")
    g.raw(f"s_mov_b32 exec_hi, {opstr(mask if hi else 0)}")
    if first:
        g.raw(f"s_branch hh_sq{n}")
    g.label(f"hh_sp{n}")
    if SLEEP:
        g.raw(f"s_sleep {SLEEP}")
    g.label(f"hh_sq{n}")
    g.raw(f"buffer_load_dword {vPoll}, {vPollA}, {srdWs}, 0 offen sc1")
    g.raw(f"s_add_u32 {sSpin}, {sSpin}, 1")
    g.raw("s_waitcnt vmcnt(0)")
    g.raw(f"s_cmp_ge_u32 {sSpin}, {hex(SPIN_MAX)}")
    g.raw(f"s_cbranch_scc1 hh_ox{n}")
    g.raw(f"v_cmp_eq_u32 vcc, 1, {vPoll}")
    g.raw("s_nop 1")
    g.raw(f"s_cmp_eq_u32 {vc}, {opstr(mask)}")
    g.raw(f"s_cbranch_scc0 hh_sp{n}")
    g.label(f"hh_ox{n}")
    g.raw("s_mov_b64 exec, -1")
    g.label(f"hh_ok{n}")


def flag_store(g, vone, vzero, soff):
    g.salu("s_mov_b64", EXEC, 1)
    g.bstore("buffer_store_dword", vone, vzero, srdWs, soff, mods=STM)
    g.salu("s_mov_b64", EXEC, -1)


class Rec:
    def __init__(self, g):
        self.g = g
        self.ops = []
        self._grp = None

    def __getattr__(self, name):
        def f(*a, **k):
            op = lambda: getattr(self.g, name)(*a, **k)
            if self._grp is not None:
                self._grp.append(op)
            else:
                self.ops.append(op)
        return f

    def begin(self):
        self._grp = []

    def end(self):
        grp, self._grp = self._grp, None
        self.ops.append(lambda: [o() for o in grp])


def gen_phase_a():
    g = Gen()
    out = []
    g.label(NAME)
    g.salu("s_cmp_ge_u32", None, sWG, 256)
    g.raw("s_cbranch_scc1 hh_exit")
    stamp(g, 0)
    stamp(g, 12, True)
    g.sload(S(4, 4), sKarg, 0)
    g.sload(S(8, 4), sKarg, 16)
    g.sload(S(12, 4), sKarg, 40)
    g.sload(S(16, 4), sKarg, 56)
    g.sload(sWs, sKarg, 72)
    vTid = V(0)
    vT = V(2)
    g.valu("v_lshrrev_b32", vT, 6, vTid)
    g.valu("v_and_b32", vLane, 63, vTid)
    g.valu("v_readfirstlane_b32", sW, vT)
    g.salu("s_and_b32", sXcd, sWG, 7)
    g.salu("s_lshr_b32", sIdx, sWG, 3)
    if MAPA == "local":
        g.salu("s_lshl_b32", sT0, sXcd, 1)
        g.salu("s_and_b32", sT1, sIdx, 1)
        g.salu("s_or_b32", sMt, sT0, sT1)
        g.salu("s_bfe_u32", sNt, sIdx, (3 << 16) | 1)
    else:
        g.salu("s_and_b32", sT0, sXcd, 1)
        g.salu("s_lshl_b32", sT0, sT0, 3)
        g.salu("s_and_b32", sT1, sIdx, 7)
        g.salu("s_or_b32", sMt, sT0, sT1)
        g.salu("s_lshr_b32", sT0, sXcd, 1)
        g.salu("s_lshl_b32", sT0, sT0, 1)
        g.salu("s_bfe_u32", sT1, sIdx, (1 << 16) | 3)
        g.salu("s_or_b32", sNt, sT0, sT1)
    g.salu("s_lshr_b32", sType, sIdx, 4)
    g.salu("s_and_b32", sI, sW, 3)
    g.salu("s_lshr_b32", sJ, sW, 2)
    g.salu("s_lshl_b32", sT0, sWG, 3)
    g.salu("s_add_u32", sGw, sT0, sW)
    g.salu("s_lshl_b32", sT0, sType, 1)
    g.salu("s_add_u32", sT0, sT0, sJ)
    g.salu("s_cmp_eq_u32", None, sT0, 1)
    g.raw("s_cbranch_scc1 hh_r1")
    g.salu("s_cmp_eq_u32", None, sT0, 2)
    g.raw("s_cbranch_scc1 hh_r2")
    g.salu("s_cmp_eq_u32", None, sT0, 3)
    g.raw("s_cbranch_scc1 hh_r3")
    out.append(g.text())
    base_state = g

    for role in range(4):
        typ, j = role >> 1, role & 1
        g = base_state.fork()
        g.label(f"hh_r{role}")
        va = VAlloc(3, 240)
        U2 = 2 if (typ == 1 and j == 0) else 1
        NU = 2 + U2
        ldw = 3584 if typ else 3072
        nB2 = 1 if (typ == 0 or j == 0) else 2
        vA = [va.get() for _ in range(2)]
        vB1 = va.get()
        vB2 = [va.get() for _ in range(nB2)]
        t0, t1, t2, t3 = va.get(), va.get(), va.get(), va.get()
        sB2m0 = sPhiOff if typ == 1 else None
        g.valu("v_lshrrev_b32", t0, 3, vLane)
        g.valu("v_lshrrev_b32", t1, 4, vLane)
        g.valu("v_and_b32", t2, 7, vLane)
        g.salu("s_lshl_b32", sT0, sW, 4)
        for e in range(2):
            g.valu("v_add_u32", t3, sT0, t0)
            if e:
                g.valu("v_add_u32", t3, 8, t3)
            g.valu("v_lshlrev_b32", vA[e], 10, t3)
            g.valu("v_xor_b32", t3, t2, t1)
            if e:
                g.valu("v_xor_b32", t3, 4, t3)
            g.valu("v_lshl_add_u32", vA[e], t3, 4, vA[e])
        g.salu("s_lshl_b32", sBm0, sW, 10)
        g.salu("s_lshl_b32", sAm0, sW, 11)
        g.salu("s_add_u32", sAm0, sAm0, A_BASE)
        g.salu("s_lshl_b32", sT0, sW, 2)
        g.valu("v_add_u32", t0, sT0, t1)
        g.valu("v_mul_u32_u24", vB1, ldw, t0)
        g.valu("v_and_b32", t2, 15, vLane)
        g.valu("v_lshlrev_b32", t3, 2, t1)
        g.valu("v_xor_b32", t2, t2, t3)
        if typ == 1:
            g.valu("v_lshl_add_u32", vB1, t2, 4, vB1)
        else:
            g.valu("v_lshrrev_b32", t3, 3, t2)
            g.valu("v_lshl_add_u32", vB1, t3, 10, vB1)
            g.valu("v_and_b32", t3, 7, t2)
            g.valu("v_lshl_add_u32", vB1, t3, 4, vB1)
            g.valu("v_add_u32", vB1, 1024, vB1)
        g.lg = []
        g.raw("s_waitcnt lgkmcnt(0)")
        g.salu("s_lshl_b32", sT0, sMt, 17)
        make_srd(g, srdX, sX, 131072, sT0)
        if typ == 0:
            g.salu("s_lshl_b32", sT0, sNt, 7)
            make_srd(g, srdW, sWqkv, 512 * 3072 - 7 * 128, sT0)
        else:
            g.salu("s_mul_i32", sT0, sNt, 448)
            make_srd(g, srdW, sW1, 512 * 3584 - 7 * 448, sT0)

        def dma_items(stage):
            b = stage % 3
            ks = stage % 8
            items = []
            for e in range(2):
                def f(e=e):
                    g.salu("s_mov_b32", sKA, ks * 128)
                    g.salu("s_add_u32", M0, sAm0, b * A_BUF + e * 1024)
                    g.dma(vA[e], srdX, sKA, tag=("dma", stage))
                items.append(f)
            if stage < 8:
                for e in range(2):
                    def f(e=e):
                        g.salu("s_mov_b32", sKB, (ks * 64 + 32 * e) * ldw)
                        g.salu("s_add_u32", M0, sBm0, b * B_BUF + e * 8192)
                        g.dma(vB1, srdW, sKB, tag=("dma", stage))
                    items.append(f)
            else:
                for e in range(nB2):
                    def f(e=e):
                        g.salu("s_mov_b32", sKB, ks * 64 * ldw)
                        if typ == 0:
                            g.salu("s_add_u32", M0, sBm0, b * B_BUF)
                        else:
                            g.salu("s_add_u32", M0, sB2m0, b * B_BUF + e * 4096)
                        g.dma(vB2[e], srdW, sKB, tag=("dma", stage))
                    items.append(f)
            return items

        def issue_dma(stage):
            for f in dma_items(stage):
                f()

        issue_dma(0)
        g.barrier()
        stamp(g, 1)
        make_srd(g, srdWs, sWs, WS_SIZE)
        make_srd(g, srdDbg, sDbg, 256)
        g.valu("v_lshlrev_b32", vL16, 4, vLane)
        vZ4 = va.get(4, 4)
        vOne = va.get()
        for q in range(4):
            g.valu("v_mov_b32", vZ4[q], 0)
        g.valu("v_mov_b32", vOne, 1)
        if typ == 0:
            g.salu("s_mul_i32", sT0, sW, 5120)
            g.salu("s_add_u32", sT0, sT0, WS_FLG)
            g.salu("s_cmp_eq_u32", None, sWG, 0)
            g.salu("s_cselect_b32", sT0, sT0, OOR)
            g.salu("s_add_u32", sT1, sT0, 4096)
            for q in range(4):
                g.bstore("buffer_store_dwordx4", vZ4, vL16, srdWs, sT0, q * 1024, mods=STM)
            g.bstore("buffer_store_dwordx4", vZ4, vL16, srdWs, sT1, 0, mods=STM)

        vXa = [va.get() for _ in range(4)]
        vW1 = [[va.get() for _ in range(2)] for _ in range(4)]
        vW2 = [va.get() for _ in range(4)]
        p2 = 192 if typ else 128
        g.valu("v_and_b32", t0, 31, vLane)
        g.salu("s_lshl_b32", sT0, sI, 5)
        g.valu("v_add_u32", t0, sT0, t0)
        g.valu("v_lshlrev_b32", t0, 7, t0)
        g.valu("v_lshrrev_b32", t1, 5, vLane)
        g.valu("v_bfe_u32", t2, vLane, 1, 3)
        g.valu("v_xor_b32", t1, t1, t2)
        g.valu("v_lshl_add_u32", t0, t1, 4, t0)
        g.valu("v_add_u32", t0, A_BASE, t0)
        vq = vW2[0]
        g.valu("v_bfe_u32", t2, vLane, 4, 1)
        g.valu("v_and_b32", t3, 3, vLane)
        g.valu("v_lshlrev_b32", t3, 3, t3)
        g.valu("v_lshl_add_u32", vq, t2, 5, t3)
        g.valu("v_lshrrev_b32", t1, 5, vLane)
        g.valu("v_bfe_u32", t2, vLane, 2, 2)
        g.valu("v_lshl_add_u32", t1, t1, 3, t2)
        g.valu("v_lshl_add_u32", t3, t1, 8, vq)
        g.valu("v_xor_b32", vW1[0][1], j, t2)
        g.valu("v_lshl_add_u32", t3, vW1[0][1], 6, t3)
        vp1 = vW1[3][1]
        g.valu("v_mov_b32", vp1, t3)
        vp2 = vW2[3]
        g.valu("v_mul_u32_u24", t1, p2, t1)
        g.valu("v_add_u32", t1, t1, vq)
        if typ == 1:
            g.valu("v_add_u32", vp2, j * 64, t1)
        else:
            g.valu("v_lshrrev_b32", t2, 1, t2)
            g.valu("v_xor_b32", t2, j, t2)
            g.valu("v_lshl_add_u32", vp2, t2, 6, t1)
        for t in range(4):
            g.salu("s_add_u32", sT0, sI, t + 2 * j)
            g.salu("s_and_b32", sT0, sT0, 3)
            g.salu("s_lshl_b32", sT1, sT0, 5)
            g.valu("v_xor_b32", vXa[t], sT1, t0)
            g.salu("s_lshl_b32", sT1, sT0, 12)
            g.valu("v_add_u32", vW1[t][0], sT1, vp1)
            g.valu("v_xor_b32", vW1[t][1], 128, vW1[t][0])
            g.salu("s_mul_i32", sT1, sT0, 16 * p2)
            g.valu("v_add_u32", vW2[t], sT1, vp2)

        issue_dma(1)
        side = []
        side += dma_items(2)
        sched = {"n": 6, "k": len(side), "i": 0}
        if typ == 1:
            g.salu("s_add_u32", sT0, sW, 8 if j == 0 else -4)
            g.salu("s_lshl_b32", sB2m0, sT0, 10)
            g.salu("s_lshl_b32", sT0, sT0, 6)
            for e in range(nB2):
                g.valu("v_add_u32", t0, sT0, vLane)
                if e:
                    g.valu("v_add_u32", t0, 256, t0)
                g.valu("v_mul_u32_u24", t1, 5462, t0)
                g.valu("v_lshrrev_b32", t1, 16, t1)
                g.valu("v_mul_u32_u24", t2, 12, t1)
                g.valu("v_sub_u32", t2, t0, t2)
                g.valu("v_mul_u32_u24", vB2[e], ldw, t1)
                g.valu("v_lshl_add_u32", vB2[e], t2, 4, vB2[e])
                g.valu("v_add_u32", vB2[e], 256, vB2[e])
        late = []
        if typ == 0:
            make_srd(g, srdPhi, sWphi, 32 * 512)
            vPh = va.get(16, 4)
            vPa, vSign = va.get(), va.get()
            g.valu("v_bfe_u32", t1, vLane, 3, 2)
            g.valu("v_and_b32", t2, 3, vLane)
            g.valu("v_lshl_add_u32", t1, t1, 2, t2)
            g.valu("v_lshlrev_b32", t1, 1, t1)
            g.valu("v_lshrrev_b32", t2, 5, vLane)
            g.valu("v_lshl_add_u32", vPa, t2, 7, t1)
            g.valu("v_bfe_u32", t1, vLane, 2, 1)
            g.salu("s_mov_b32", sT0, 0x80008000)
            g.valu("v_mul_lo_u32", vSign, t1, sT0)
            g.salu("s_lshl_b32", sT0, sNt, 2)
            g.salu("s_add_u32", sT0, sT0, 2 * j)
            g.salu("s_lshl_b32", sPhiOff, sT0, 9)
            for hl in range(2):
                for jj in range(8):
                    late.append(lambda hl=hl, jj=jj: g.bload("buffer_load_ushort", vPh[hl * 8 + jj], vPa, srdPhi, sPhiOff,
                                                             hl * 512 + (8 * (jj >> 2) + (jj & 3)) * 32))
        g.salu("s_lshl_b32", sT0, sXcd, 2)
        g.salu("s_and_b32", sT1, sIdx, 3)
        g.salu("s_or_b32", sMt2, sT0, sT1)
        g.salu("s_lshr_b32", sNt2, sIdx, 2)
        make_srd(g, srdW2, sW2, 1792 * 1024)
        make_srd(g, srdWo, sWo, 512 * 1024)
        g.salu("s_mul_i32", sW2o, sW, 224 * 1024)
        g.salu("s_lshl_b32", sT0, sNt2, 7)
        g.salu("s_add_u32", sW2o, sW2o, sT0)
        g.salu("s_lshl_b32", sRing, sW, 11)
        g.valu("v_lshrrev_b32", t1, 3, vLane)
        g.valu("v_bfe_u32", t2, vLane, 4, 1)
        g.valu("v_lshlrev_b32", t2, 2, t2)
        g.valu("v_and_b32", t3, 7, vLane)
        g.valu("v_xor_b32", t2, t2, t3)
        g.valu("v_lshlrev_b32", t2, 4, t2)
        g.valu("v_lshl_add_u32", vDma, t1, 10, t2)
        if typ == 0:
            g.salu("s_lshl_b32", sT0, sW, 3)
            g.valu("v_add_u32", t1, sT0, t1)
            g.valu("v_mul_u32_u24", vB2[0], ldw, t1)
            g.valu("v_add_u32", vB2[0], vB2[0], t2)

        acc = [va.get(16, 4) for _ in range(NU)]
        X = [va.get(4, 4) for _ in range(2)]
        Wf = [[va.get(4, 4) for _ in range(2)] for _ in range(2)]
        vSS = va.get(2, 2)
        vSum, vSq = vSS[0], vSS[1]
        vSum2, vSq2 = va.get(), va.get()
        vCsA = [va.get(4, 4) for _ in range(NU)]
        vSel = va.get(4, 4)
        vUn = [va.get() for _ in range(4)]
        vGo = va.get()
        g.valu("v_lshrrev_b32", t1, 4, vLane)
        g.valu("v_xor_b32", t1, t1, vLane)
        g.valu("v_and_b32", t1, 1, t1)
        g.valu("v_cmp_eq_u32", VCC, 0, t1)
        g.valu("v_mov_b32", t1, 0)
        g.valu("v_mov_b32", t2, ONES_BF)
        for q in range(4):
            g.valu("v_cndmask_b32", vSel[q], t1, t2, VCC)
        sHiMask = sOnes
        g.salu("s_mov_b32", sHiMask, 0xFFFF0000)
        for z in [vSum, vSq, vSum2, vSq2]:
            g.valu("v_mov_b32", z, 0)
        vRa, vCa, vRr, vCr = va.get(), va.get(), va.get(), va.get()
        g.valu("v_and_b32", t0, 31, vLane)
        g.valu("v_lshrrev_b32", t2, 5, vLane)
        g.salu("s_lshl_b32", sT0, sI, 5)
        g.valu("v_add_u32", t1, sT0, t0)
        g.valu("v_lshlrev_b32", vRr, 5, t1)
        g.valu("v_add_u32", vRr, RS, vRr)
        g.valu("v_lshl_add_u32", vRa, t2, 3, vRr)
        g.valu("v_lshlrev_b32", vCr, 2, t0)
        g.valu("v_add_u32", vCr, CS + j * 512, vCr)
        g.valu("v_and_b32", t1, 1, vLane)
        g.valu("v_lshlrev_b32", t1, 6, t1)
        g.valu("v_lshrrev_b32", t2, 4, vLane)
        g.valu("v_lshl_add_u32", vCa, t2, 4, t1)
        g.salu("s_lshl_b32", sT0, sI, 7)
        g.salu("s_add_u32", sT0, sT0, CS + j * 512)
        g.valu("v_add_u32", vCa, sT0, vCa)

        def units_of(T):
            return [0, 1] if T < 32 else list(range(2, NU))

        def rd_x(T):
            s, t = divmod(T, 4)
            g.ds_read("ds_read_b128", X[T & 1], vXa[t], (s % 3) * A_BUF)

        def rd_w(T, k):
            s, t = divmod(T, 4)
            b = s % 3
            for half in range(2):
                if T < 32:
                    g.ds_read("ds_read_b64_tr_b16", Wf[T & 1][k][2 * half:2 * half + 2], vW1[t][k], b * B_BUF + half * 1024)
                else:
                    g.ds_read("ds_read_b64_tr_b16", Wf[T & 1][k][2 * half:2 * half + 2], vW2[t],
                              b * B_BUF + half * 4 * p2 + k * 128)

        csr = [va.get(16, 4) for _ in range(2)]
        vMean, vVar, vRinv, vNr2 = va.get(), va.get(), va.get(), va.get()
        MB = va.get(4, 4)
        CA = va.get(4, 4)
        sPerm, sCst = sT1, sT2

        def cs_write(r, us):
            r.begin()
            r.salu("s_mov_b32", EXEC[0], 0x00030003)
            r.salu("s_mov_b32", EXEC[1], 0x00030003)
            for u in us:
                r.ds_write("ds_write_b128", vCa, vCsA[u], u * 1024)
            r.salu("s_mov_b64", EXEC, -1)
            r.end()

        def row_stats(r):
            rsr = csr[0][0:8]
            r.ds_read("ds_read_b128", rsr[0:4], vRr)
            r.ds_read("ds_read_b128", rsr[4:8], vRr, 16)
            r.valu("v_add_f32", rsr[0], rsr[0], rsr[2])
            r.valu("v_add_f32", rsr[1], rsr[1], rsr[3])
            r.valu("v_add_f32", rsr[4], rsr[4], rsr[6])
            r.valu("v_add_f32", rsr[5], rsr[5], rsr[7])
            r.valu("v_add_f32", rsr[0], rsr[0], rsr[4])
            r.valu("v_add_f32", rsr[1], rsr[1], rsr[5])
            r.valu("v_mul_f32", vMean, 1.0 / 512, rsr[0])
            r.valu("v_mul_f32", vVar, 1.0 / 512, rsr[1])
            r.valu("v_fma_f32", vVar, Neg(vMean), vMean, vVar)
            r.valu("v_cvt_pk_bf16_f32", MB[0], Neg(vMean), Neg(vMean))
            r.valu("v_cmp_gt_u32", VCC, 32, vLane)
            r.valu("v_mov_b32", MB[2], 0)
            r.valu("v_mov_b32", MB[3], 0)
            r.valu("v_cndmask_b32", MB[0], MB[2], MB[0], VCC)
            r.valu("v_and_b32", MB[1], 0xFFFF, MB[0])
            bf16_round(r, vVar, vVar)
            r.valu("v_add_f32", vVar, 1e-5, vVar)
            bf16_round(r, vVar, vVar)
            r.valu("v_sqrt_f32", vVar, vVar)
            bf16_round(r, vVar, vVar)
            r.valu("v_rcp_f32", vRinv, vVar)
            r.valu("v_mov_b32", CA[2], 0)
            r.valu("v_mov_b32", CA[3], 0)
            r.valu("v_mul_f32", vNr2, -LOG2E, vRinv)

        def cs_read(r, us):
            for n_, u in enumerate(us):
                for i_ in range(4):
                    r.ds_read("ds_read_b32", csr[1][4 * n_ + i_], vCr, u * 1024 + i_ * 128)

        def rank1(r, us):
            r.salu("s_mov_b32", sPerm, 0x07060302)
            for n_, u in enumerate(us):
                c = csr[1][4 * n_:4 * n_ + 4]
                r.valu("v_add_f32", c[0], c[0], c[1])
                r.valu("v_add_f32", c[2], c[2], c[3])
                r.valu("v_add_f32", c[0], c[0], c[2])
                r.valu("v_and_b32", c[1], sHiMask, c[0])
                r.valu("v_sub_f32", c[1], c[0], c[1])
                r.valu("v_and_b32", c[2], sHiMask, c[1])
                r.valu("v_sub_f32", c[2], c[1], c[2])
                r.valu("v_perm_b32", CA[0], c[1], c[0], sPerm)
                r.valu("v_lshrrev_b32", CA[1], 16, c[2])
                r.mfma(acc[u], CA, MB, acc[u])

        if typ == 1:
            e_ = csr[0]
            pk = [va.get(4, 4) for _ in range(2)]

            def silu(r, u, tag, hook=None):
                for m in range(2):
                    rr = range(8 * m, 8 * m + 8)
                    for q in rr:
                        r.valu("v_mul_f32", acc[u][q], vNr2, acc[u][q])
                    for q in rr:
                        r.valu("v_exp_f32", e_[q], acc[u][q])
                    if hook:
                        hook()
                    for q in rr:
                        r.valu("v_fma_f32", e_[q], e_[q], sCst, sCst)
                    for q in rr:
                        r.valu("v_rcp_f32", e_[q], e_[q])
                    if hook:
                        hook()
                    for q in rr:
                        r.valu("v_mul_f32", acc[u][q], acc[u][q], e_[q])
                    for q in range(4):
                        r.valu("v_cvt_pk_bf16_f32", pk[m][q], acc[u][8 * m + 2 * q], acc[u][8 * m + 2 * q + 1])
                    r.bstore("buffer_store_dwordx4", pk[m], vL16, srdWs, sOut, m * 1024, mods=STM, tag=tag)
                    if hook:
                        hook()
                r.salu("s_add_u32", sOut, sOut, 4096)

            g.salu("s_lshl_b32", sT0, sMt, 2)
            g.salu("s_add_u32", sT0, sT0, sI)
            g.salu("s_mul_i32", sT0, sT0, 112)
            g.salu("s_mul_i32", sT1, sNt, 14)
            g.salu("s_add_u32", sT0, sT0, sT1)
            g.salu("s_add_u32", sT0, sT0, 2 * j)
            g.salu("s_lshl_b32", sOut, sT0, 10)
            E1 = Rec(g)
            cs_read(E1, [0, 1])
            row_stats(E1)
            rank1(E1, [0, 1])
            E1.salu("s_mov_b32", sCst, -LOG2E)
            silu(E1, 0, "p1")
            silu(E1, 1, "p1")
            plan = [(36, 62, E1.ops)]
        else:
            PH = [va.get(4, 4) for _ in range(2)]
            QF = [va.get(4, 4) for _ in range(2)]
            pk8 = va.get(8, 4)
            D2 = csr
            vIm, vMx, vSm = va.get(), va.get(), va.get()
            g.valu("v_and_b32", t0, 31, vLane)
            g.salu("s_lshl_b32", sT0, sI, 5)
            g.valu("v_add_u32", t0, sT0, t0)
            g.valu("v_lshlrev_b32", t0, 6, t0)
            g.valu("v_lshrrev_b32", t1, 5, vLane)
            g.valu("v_lshl_add_u32", vIm, t1, 3, t0)
            g.valu("v_add_u32", vIm, PHK_IMG, vIm)

            def scale(r, u):
                for q in range(16):
                    r.valu("v_mul_f32", acc[u][q], vRinv, acc[u][q])

            def phi(r, u):
                for hl in range(2):
                    for q in range(4):
                        r.valu("v_cvt_pk_bf16_f32", QF[hl][q], acc[u][8 * hl + 2 * q], acc[u][8 * hl + 2 * q + 1])
                for hl in range(2):
                    r.mfma(D2[hl], PH[hl], QF[hl], 0)

            def softmax(r, hl, hook=None):
                D = D2[hl]
                r.valu("v_max3_f32", vMx, D[0], D[1], D[2])
                for q in range(3, 15, 2):
                    r.valu("v_max3_f32", vMx, vMx, D[q], D[q + 1])
                r.valu("v_max_f32", vMx, vMx, D[15])
                r.valu("v_mul_f32", vMx, -LOG2E, vMx)
                if hook:
                    hook()
                for q in range(16):
                    r.valu("v_fma_f32", D[q], D[q], sCst, vMx)
                if hook:
                    hook()
                for q in range(16):
                    r.valu("v_exp_f32", D[q], D[q])
                    if hook and q in (5, 11):
                        hook()
                if hook:
                    hook()
                r.valu("v_add_f32", vSm, D[0], D[1])
                for q in range(2, 16):
                    r.valu("v_add_f32", vSm, vSm, D[q])
                r.valu("v_rcp_f32", vSm, vSm)
                if hook:
                    hook()
                for q in range(16):
                    r.valu("v_mul_f32", D[q], vSm, D[q])
                if hook:
                    hook()
                for q in range(8):
                    r.valu("v_cvt_pk_bf16_f32", pk8[q], D[2 * q], D[2 * q + 1])
                if hook:
                    hook()

            E1 = Rec(g)
            cs_read(E1, [0, 1])
            row_stats(E1)
            rank1(E1, [0, 1])
            E1.salu("s_mov_b32", sCst, LOG2E)
            for hl in range(2):
                for q in range(4):
                    E1.valu("v_lshl_or_b32", PH[hl][q], vPh[hl * 8 + 2 * q + 1], 16, vPh[hl * 8 + 2 * q])
                    E1.valu("v_xor_b32", PH[hl][q], vSign, PH[hl][q])
            scale(E1, 0)
            phi(E1, 0)
            scale(E1, 1)
            for q in range(8):
                E1.valu("v_cvt_pk_bf16_f32", pk8[q], acc[1][2 * q], acc[1][2 * q + 1])
            for q in range(4):
                E1.ds_write("ds_write_b64", vIm, pk8[2 * q:2 * q + 2], V_IMG - PHK_IMG + j * 8192 + q * 16)
            for hl in range(2):
                softmax(E1, hl)
                for q in range(4):
                    E1.ds_write("ds_write_b64", vIm, pk8[2 * q:2 * q + 2], (2 * j + hl) * 8192 + q * 16)
            plan = [(36, 55, E1.ops)]
            if j == 0:
                vKa, vVa, vOnes = va.get(), va.get(), va.get()
                g.valu("v_lshrrev_b32", t1, 5, vLane)
                g.valu("v_bfe_u32", t2, vLane, 2, 2)
                g.valu("v_lshl_add_u32", t1, t1, 3, t2)
                g.valu("v_lshlrev_b32", t1, 6, t1)
                g.valu("v_and_b32", t2, 3, vLane)
                g.valu("v_lshl_add_u32", t1, t2, 3, t1)
                g.valu("v_bfe_u32", t2, vLane, 4, 1)
                g.valu("v_lshl_add_u32", t2, t2, 5, t1)
                g.salu("s_lshl_b32", sT0, sI, 13)
                g.salu("s_add_u32", sT0, sT0, PHK_IMG)
                g.valu("v_add_u32", vKa, sT0, t2)
                g.salu("s_lshr_b32", sT0, sI, 1)
                g.salu("s_lshl_b32", sT0, sT0, 13)
                g.salu("s_and_b32", sT1, sI, 1)
                g.salu("s_lshl_b32", sT1, sT1, 5)
                g.salu("s_add_u32", sT0, sT0, sT1)
                g.salu("s_add_u32", sT0, sT0, V_IMG)
                g.valu("v_add_u32", vVa, sT0, t1)
                g.valu("v_mov_b32", vOnes, ONES_BF)
                g.salu("s_mov_b32", sMask[0], 0xFFFF0000)
                g.salu("s_mov_b32", sMask[1], 0xFFFF0000)
                g.salu("s_lshl_b32", sT0, sMt, 5)
                g.salu("s_lshl_b32", sT1, sNt, 2)
                g.salu("s_add_u32", sT0, sT0, sT1)
                g.salu("s_add_u32", sT0, sT0, sI)
                g.salu("s_lshl_b32", sOut, sT0, 12)
                g.salu("s_add_u32", sOut, sOut, WS_PART)
                KA = [vPh[0:4], vPh[4:8]]
                KB = [vPh[8:12], vPh[12:16]]
                D3 = acc[1]
                E2 = Rec(g)

                def rd_kv(ks):
                    for half in range(2):
                        E2.ds_read("ds_read_b64_tr_b16", KA[ks & 1][2 * half:2 * half + 2], vKa, ks * 1024 + half * 256)
                    for half in range(2):
                        E2.ds_read("ds_read_b64_tr_b16", KB[ks & 1][2 * half:2 * half + 2], vVa, ks * 1024 + half * 256)

                rd_kv(0)
                for ks in range(8):
                    if ks + 1 < 8:
                        rd_kv(ks + 1)
                    for q in range(4):
                        E2.valu("v_cndmask_b32_e64", KB[ks & 1][q], KB[ks & 1][q], vOnes, sMask)
                    E2.mfma(D3, KA[ks & 1], KB[ks & 1], D3 if ks else 0)
                for q in range(4):
                    E2.bstore("buffer_store_dwordx4", D3[4 * q:4 * q + 4], vL16, srdWs, sOut, q * 1024, mods=STM, tag="p1")
                plan.append((56, 63, E2.ops))
        E0 = Rec(g)
        E0.valu("v_add_f32", vSum, vSum, vSum2)
        E0.valu("v_add_f32", vSq, vSq, vSq2)
        E0.ds_write("ds_write_b64", vRa, vSS, j * 16)
        cs_write(E0, [0, 1])
        plan.append((32, 34, E0.ops))

        slot_fill = {}
        for (Ta, Tb, ops) in plan:
            sl = [(T, k) for T in range(Ta, Tb) for k in range(len(units_of(T)))]
            n = len(sl)
            for i_, op in enumerate(ops):
                slot_fill.setdefault(sl[i_ * n // len(ops)], []).append(op)

        g.wait_vm_tag(("dma", 0))
        g.barrier()
        stamp(g, 2)
        rd_x(0)
        for k in range(2):
            rd_w(0, k)

        for T in range(64):
            s, t = divmod(T, 4)
            cur = T & 1
            last = (T == 63)
            us = units_of(T)
            U = len(us)
            fill = [[] for _ in range(U)]
            if T < 32:
                ops = []
                for r in (2 * j, 2 * j + 1):
                    lo, hi = vUn[2 * (r & 1)], vUn[2 * (r & 1) + 1]
                    ops += [lambda r=r, lo=lo: g.valu("v_lshlrev_b32", lo, 16, X[cur][r]),
                            lambda r=r, hi=hi: g.valu("v_and_b32", hi, sHiMask, X[cur][r]),
                            lambda lo=lo: g.valu("v_add_f32", vSum, vSum, lo),
                            lambda hi=hi: g.valu("v_add_f32", vSum2, vSum2, hi),
                            lambda lo=lo: g.valu("v_fma_f32", vSq, lo, lo, vSq),
                            lambda hi=hi: g.valu("v_fma_f32", vSq2, hi, hi, vSq2)]
                for k in range(2):
                    fill[k] += ops[k * 6:(k + 1) * 6]
            if t < U:
                fill[t].insert(0, lambda t=t: g.mfma(vCsA[us[t]], Wf[cur][t], vSel, vCsA[us[t]] if s % 8 else 0,
                                                     op="v_mfma_f32_16x16x32_bf16"))
            for k in range(U):
                fill[k] += slot_fill.pop((T, k), [])
            boundary = (t == 3 and not last)
            nU = len(units_of(T + 1))
            for k in range(U):
                u = us[k]
                g.mfma(acc[u], Wf[cur][k], X[cur], acc[u] if T % 32 else 0)
                if not boundary and not last:
                    if k == 0:
                        rd_x(T + 1)
                    rd_w(T + 1, k)
                if boundary and k == 0:
                    g.waitcnt(lg=0)
                    g.wait_vm_tag(("dma", s + 1))
                    g.barrier()
                    rd_x(T + 1)
                    for kk in range(nU):
                        rd_w(T + 1, kk)
                    assert not side
                    if s == 0 and role == 0:
                        g.salu("s_cmp_eq_u32", None, sGw, 0)
                        g.salu("s_cselect_b32", sT0, 0, OOR)
                        g.bstore("buffer_store_dword", vOne, vZ4[0], srdDbg, sT0, mods=STM)
                    if s + 3 <= 15:
                        side += dma_items(s + 3)
                        sched["n"] = (U - 1) + 3 * nU
                        sched["k"] = len(side)
                        sched["i"] = 0
                else:
                    did = 0
                    if side:
                        i0 = sched["i"]
                        for _ in range((i0 + 1) * sched["k"] // sched["n"] - i0 * sched["k"] // sched["n"]):
                            side.pop(0)()
                            did += 1
                        sched["i"] += 1
                    if not did and late and T >= 8:
                        late.pop(0)()
                for f in fill[k]:
                    f()
            if T == 31:
                assert not late
                stamp(g, 3)
            if T == 58:
                g.bload("buffer_load_dword", vGo, vZ4[0], srdDbg, 0, mods="sc1")
        assert not side and not slot_fill
        stamp(g, 4)
        us2 = list(range(2, NU))
        r_ = Rec(g)
        cs_write(r_, us2)
        for f in r_.ops:
            f()
        g.waitcnt(lg=0)
        g.barrier()
        cs_read(g, us2)
        pre = [(t, e) for t in range(NRING) for e in range(2)]

        def pf(n=1):
            for _ in range(n):
                if pre:
                    t, e = pre.pop(0)
                    ring_dma(g, t, (e,))

        pf(2)
        g.valu("v_readfirstlane_b32", sT0, vGo)
        g.salu("s_cmp_eq_u32", None, sT0, 1)
        g.raw(f"s_cbranch_scc1 hh_go{role}")
        g.raw(f"s_mov_b32 {sSpin}, 0")
        g.label(f"hh_gs{role}")
        g.raw(f"buffer_load_dword {vGo}, {vZ4[0]}, {srdDbg}, 0 offen sc1")
        g.raw(f"s_add_u32 {sSpin}, {sSpin}, 1")
        g.raw("s_waitcnt vmcnt(0)")
        g.raw(f"s_cmp_ge_u32 {sSpin}, {hex(SPIN_MAX)}")
        g.raw(f"s_cbranch_scc1 hh_go{role}")
        g.raw(f"v_readfirstlane_b32 {sT0}, {vGo}")
        g.raw("s_nop 3")
        g.raw(f"s_cmp_eq_u32 {sT0}, 1")
        g.raw(f"s_cbranch_scc0 hh_gs{role}")
        g.label(f"hh_go{role}")
        rank1(g, us2)
        sFlag = sMask[0]

        def p1_flag():
            if typ == 1:
                g.salu("s_lshl_b32", sT0, sMt, 3)
                g.salu("s_add_u32", sT0, sT0, sNt)
                g.salu("s_lshl_b32", sT0, sT0, 5)
                g.salu("s_add_u32", sT0, sT0, sW)
                g.salu("s_lshl_b32", sT0, sT0, 2)
                g.salu("s_add_u32", sT0, sT0, WS_FLG + FH)
            elif j == 0:
                g.salu("s_lshl_b32", sT0, sNt, 2)
                g.salu("s_add_u32", sT0, sT0, sI)
                g.salu("s_lshl_b32", sT0, sT0, 5)
                g.salu("s_add_u32", sT0, sT0, sMt)
                g.salu("s_lshl_b32", sT0, sT0, 2)
                g.salu("s_add_u32", sT0, sT0, WS_FLG + FP)
            else:
                return
            g.wait_vm_tag("p1")
            flag_store(g, vOne, vZ4[0], sT0)

        stamp(g, 5)

        def setup_b():
            for sb in range(2):
                g.salu("s_lshl_b32", sT0, sMt2, 1)
                if sb:
                    g.salu("s_add_u32", sT0, sT0, 1)
                g.salu("s_mul_i32", sT1, sT0, 112)
                g.salu("s_mul_i32", sT3, sW, 14)
                g.salu("s_add_u32", sT1, sT1, sT3)
                g.salu("s_lshl_b32", sH[sb], sT1, 10)
                g.salu("s_lshl_b32", sT1, sT0, 3)
                g.salu("s_add_u32", sT1, sT1, sW)
                g.salu("s_lshl_b32", sT1, sT1, 13)
                g.salu("s_add_u32", sPQ[sb], sT1, WS_PQ)
            g.salu("s_lshl_b32", sKV, sW, 13)
            g.salu("s_add_u32", sKV, sKV, WS_KV)
            g.salu("s_lshl_b32", sWoO, sW, 16)
            g.salu("s_lshl_b32", sT0, sNt2, 7)
            g.salu("s_add_u32", sWoO, sWoO, sT0)
            g.salu("s_and_b32", sT0, sMt2, 1)
            g.salu("s_lshl_b32", sT0, sT0, 1)
            g.salu("s_lshl_b32", sMj0, 0x33, sT0)
            g.salu("s_lshl_b32", sMj1, sMj0, 8)
            g.salu("s_lshl_b32", sMq, sMj0, 16)
            g.salu("s_lshr_b32", sT0, sMt2, 1)
            g.salu("s_lshl_b32", sT0, sT0, 3)
            g.salu("s_add_u32", sT0, sT0, sW)
            g.salu("s_lshl_b32", sT0, sT0, 7)
            g.salu("s_add_u32", sT0, sT0, WS_FLG + FH)
            g.valu("v_and_b32", t0, 15, vLane)
            g.valu("v_lshlrev_b32", t0, 2, t0)
            g.valu("v_bfe_u32", t1, vLane, 4, 1)
            g.valu("v_lshl_add_u32", t1, t1, 14, t0)
            g.valu("v_add_u32", vPollA, sT0, t1)
            g.salu("s_lshl_b32", sT0, sW, 7)
            g.salu("s_add_u32", sT0, sT0, WS_FLG + FK)
            g.valu("v_add_u32", t1, sT0, t0)
            g.valu("v_cmp_le_u32", VCC, 32, vLane)
            g.valu("v_cndmask_b32", vPollA, vPollA, t1, VCC)
            g.salu("s_lshl_b32", sT1, sMt, 3)
            g.salu("s_add_u32", sT1, sT1, sNt)
            g.salu("s_lshr_b32", sT0, sT1, 2)
            g.salu("s_lshl_b32", sT0, sT0, 7)
            g.salu("s_add_u32", sT0, sT0, WS_FLG + FP)
            g.valu("v_add_u32", t1, sT0, t0)
            g.valu("v_cmp_le_u32", VCC, 48, vLane)
            g.valu("v_cndmask_b32", vPollA, vPollA, t1, VCC)
            g.salu("s_lshr_b32", sT0, sT1, 1)
            g.salu("s_lshl_b32", sRoff, sT0, 11)
            g.salu("s_and_b32", sT0, sT1, 1)
            g.salu("s_lshl_b32", sT0, sT0, 9)
            g.salu("s_add_u32", sRoff, sRoff, sT0)
            g.salu("s_add_u32", sRoff, sRoff, WS_PART)
            g.salu("s_lshl_b32", sKvo, sT1, 9)
            g.salu("s_add_u32", sKvo, sKvo, WS_KV)
            g.salu("s_lshr_b32", sT0, sT1, 4)
            g.salu("s_lshl_b32", sT0, sT0, 7)
            g.salu("s_and_b32", sT3, sT1, 15)
            g.salu("s_lshl_b32", sT3, sT3, 2)
            g.salu("s_add_u32", sKvf, sT0, sT3)
            g.salu("s_add_u32", sKvf, sKvf, WS_FLG + FK)
            g.valu("v_and_b32", t0, 31, vLane)
            g.valu("v_lshlrev_b32", t0, 4, t0)
            g.valu("v_lshrrev_b32", t1, 5, vLane)
            g.valu("v_lshl_add_u32", vRa2, t1, 10, t0)
            g.valu("v_bfe_u32", t2, vLane, 2, 2)
            g.valu("v_lshl_add_u32", t0, t1, 2, t2)
            g.valu("v_lshlrev_b32", t0, 7, t0)
            g.valu("v_bfe_u32", t2, vLane, 3, 1)
            g.valu("v_lshl_add_u32", t0, t2, 6, t0)
            g.valu("v_bfe_u32", t2, vLane, 4, 1)
            g.valu("v_lshl_add_u32", t0, t2, 5, t0)
            g.valu("v_and_b32", t2, 3, vLane)
            g.valu("v_lshl_add_u32", t0, t2, 3, t0)
            g.valu("v_add_u32", vWr[0][0], sRing, t0)
            g.valu("v_xor_b32", vWr[0][1], 64, vWr[0][0])
            for b in (1, 2):
                for nb in range(2):
                    g.valu("v_add_u32", vWr[b][nb], 65536 * b, vWr[0][nb])
            g.valu("v_add_u32", vE0, sRing, vL16)
            g.valu("v_add_u32", vE1, 65536, vE0)
            g.salu("s_lshl_b32", sT0, sW, 14)
            g.valu("v_add_u32", vRd, sT0, vL16)
            g.salu("s_bfe_u32", sT0, sW, (1 << 16) | 1)
            g.salu("s_lshl_b32", sT0, sT0, 5)
            g.salu("s_lshl_b32", sT1, sMt2, 6)
            g.salu("s_add_u32", sT0, sT0, sT1)
            g.valu("v_and_b32", t0, 31, vLane)
            g.valu("v_add_u32", t0, sT0, t0)
            g.valu("v_lshlrev_b32", vXo, 10, t0)
            g.salu("s_lshr_b32", sT0, sW, 2)
            g.salu("s_lshl_b32", sT0, sT0, 6)
            g.salu("s_and_b32", sT1, sW, 1)
            g.salu("s_lshl_b32", sT1, sT1, 5)
            g.salu("s_add_u32", sT0, sT0, sT1)
            g.salu("s_lshl_b32", sT1, sNt2, 7)
            g.salu("s_add_u32", sT0, sT0, sT1)
            g.valu("v_add_u32", vXo, sT0, vXo)
            g.valu("v_lshl_add_u32", vXo, t1, 3, vXo)
            make_srd(g, srdX, sX, 2048 * 1024)
            make_srd(g, srdO, sOutp, 2048 * 1024)

        if typ == 1:
            p1_flag()
            for u in us2:
                silu(g, u, "p2", hook=lambda: pf(1 if U2 == 2 else 2))
            fbase = FH + 32
        else:
            scale(g, 2)
            pf(1)
            phi(g, 2)
            pf(1)
            g.salu("s_lshl_b32", sT0, sMt, 2)
            g.salu("s_add_u32", sT0, sT0, sI)
            g.salu("s_lshl_b32", sT0, sT0, 5)
            g.salu("s_lshl_b32", sT1, sNt, 2)
            g.salu("s_add_u32", sT0, sT0, sT1)
            g.salu("s_add_u32", sT0, sT0, 2 * j)
            g.salu("s_lshl_b32", sOut, sT0, 11)
            g.salu("s_add_u32", sOut, sOut, WS_PQ)
            p1_flag()
            for hl in range(2):
                softmax(g, hl, hook=pf)
                for m in range(2):
                    g.bstore("buffer_store_dwordx4", pk8[4 * m:4 * m + 4], vL16, srdWs, sOut, (hl * 2 + m) * 1024, mods=STM)
            fbase = FQ
        pf(100)
        stamp(g, 6)
        setup_b()
        g.salu("s_lshl_b32", sT0, sMt, 3)
        g.salu("s_add_u32", sT0, sT0, sNt)
        g.salu("s_lshl_b32", sT0, sT0, 5)
        g.salu("s_add_u32", sT0, sT0, sW)
        g.salu("s_lshl_b32", sT0, sT0, 2)
        g.salu("s_add_u32", sT0, sT0, WS_FLG + fbase)
        g.waitcnt(vm=0)
        flag_store(g, vOne, vZ4[0], sT0)
        stamp(g, 7)
        if role == 2:
            g.salu("s_cmp_eq_u32", None, sW, 0)
            g.raw("s_cbranch_scc1 hh_pb1")
        if role != 3:
            g.raw("s_branch hh_pb0")
        out.append(g.text())
        print("role", role, "vgprs", va.hi, file=sys.stderr)
    return "".join(out)


def gen_phase_b(red):
    g = Gen()
    g.label(f"hh_pb{red}")
    g.vm = [{"regs": set(), "tag": None}]
    acc = [[V(4 + 32 * nb + 16 * sb, 16) for sb in range(2)] for nb in range(2)]
    D = [V(68, 16), V(84, 16)]
    O = [V(100, 4), V(104, 4)]
    Wf = [[V(108 + 8 * b + 4 * nb, 4) for nb in range(2)] for b in range(2)]
    XR = V(124, 4)
    slots = [V(128 + 4 * k, 4) for k in range(NS)]
    top = 128 + 4 * NS
    P = [V(68 + 4 * m, 4) for m in range(10)] + [V(top + 4 * m, 4) for m in range(6)]
    assert top + 24 <= 236
    vOne, vZero = V(236), V(237)
    pkv = V(232, 4) if top + 24 <= 232 else None
    assert pkv is not None or not red or True

    def rd_w(t):
        sl = t % NRING
        b, off = sl // 4, (sl % 4) * 16384
        g.wait_vm_tag(("ring", t))
        for nb in range(2):
            for half in range(2):
                g.ds_read("ds_read_b64_tr_b16", Wf[t & 1][nb][2 * half:2 * half + 2], vWr[b][nb], off + half * 1024)

    win = {}

    def ld(dst, sreg, off):
        w0 = win.get(sreg.i, 0)
        if not (w0 <= off < w0 + 4096):
            g.salu("s_add_u32", sreg, sreg, off - w0)
            win[sreg.i] = w0 = off
        g.bload("buffer_load_dwordx4", dst, vL16, srdWs, sreg, off - w0, mods="sc1")

    reqs = []
    for kk in FFN_ORDER:
        reqs += [(sH[0], kk * 1024), (sH[1], kk * 1024)]
    for h in range(4):
        reqs += [(sPQ[0], h * 2048), (sPQ[0], h * 2048 + 1024), (sPQ[1], h * 2048), (sPQ[1], h * 2048 + 1024),
                 (sKV, h * 2048), (sKV, h * 2048 + 1024)]
    issued = [0]
    gate = [16]
    kv_open = [False]
    deferred = []

    def slot(q):
        return slots[q % NS]

    def issue_upto(n):
        n = min(n, len(reqs), gate[0])
        while issued[0] < n:
            q = issued[0]
            if reqs[q][0] is sKV and not kv_open[0]:
                deferred.append(q)
            else:
                ld(slot(q), *reqs[q])
            issued[0] += 1

    def poll():
        g.bload("buffer_load_dword", vPoll, vPollA, srdWs, 0, mods="sc1")

    def red1(first):
        spin_check(g, 0xFFFF0000, hi=True, first=first)
        for m in range(16):
            g.bload("buffer_load_dwordx4", P[m], vRa2, srdWs, sRoff, mods="sc1")
            if m < 15:
                g.salu("s_add_u32", sRoff, sRoff, 32 * 4096)

    def red2():
        for st in (1, 2, 4, 8):
            for m in range(0, 16, 2 * st):
                for r in range(4):
                    g.valu("v_add_f32", P[m][r], P[m][r], P[m + st][r])
        pk = P[1]
        g.valu("v_cvt_pk_bf16_f32", pk[0], P[0][0], P[0][1])
        g.valu("v_cvt_pk_bf16_f32", pk[1], P[0][2], P[0][3])
        g.valu("v_mov_b32", pk[2], pk[0])
        g.valu("v_mov_b32", pk[3], pk[1])
        g.valu("v_permlane32_swap_b32", [pk[0], pk[2]])
        g.valu("v_permlane32_swap_b32", [pk[1], pk[3]])
        g.salu("s_mov_b32", EXEC[1], 0)
        g.bstore("buffer_store_dwordx4", pk, vL16, srdWs, sKvo, mods=STM, tag="kv")
        g.salu("s_mov_b32", EXEC[1], -1)

    def red3():
        g.wait_vm_tag("kv")
        flag_store(g, vOne, vZero, sKvf)

    RB = os.environ.get("RB", "1") == "1"
    ALLW = os.environ.get("ALLW", "0") == "1"
    g.nop(4)
    g.valu("v_mov_b32", vOne, 1)
    g.valu("v_mov_b32", vZero, 0)
    rd_w(0)
    if red and RB:
        red1(True)
        red2()
        red3()
        red = 0
    spin_check(g, sMj0, first=True)
    if ALLW:
        spin_check(g, sMj1, first=True)
        spin_check(g, sMq, first=True)
        spin_check(g, 0xFFFF, hi=True, first=True)
        gate[0] = 10 ** 9
        kv_open[0] = True
    g.vm = []
    stamp(g, 8)
    issue_upto(NS)
    for q in range(2):
        g.bload("buffer_load_dwordx2", XR[2 * q:2 * q + 2], vXo, srdX, 0, q * 16)
    P1, C1 = (int(x) for x in os.environ.get("G1", "1,3").split(","))
    P2, C2 = (int(x) for x in os.environ.get("G2", "5,7").split(","))
    P3, C3 = (int(x) for x in os.environ.get("G3", "10,12").split(","))
    R1, R2, R3 = (int(x) for x in os.environ.get("GR", "3,6,8").split(","))
    for t in range(14):
        b = 2 * t
        H0, H1 = slot(b), slot(b + 1)
        W0, W1 = Wf[t & 1]
        g.mfma(acc[0][0], W0, H0, acc[0][0] if t else 0)
        rd_w(t + 1)
        g.mfma(acc[1][0], W1, H0, acc[1][0] if t else 0)
        issue_upto(b + 1 + NS)
        g.mfma(acc[0][1], W0, H1, acc[0][1] if t else 0)
        g.mfma(acc[1][1], W1, H1, acc[1][1] if t else 0)
        issue_upto(b + 2 + NS)
        if t + NRING < NSTEP:
            ring_dma(g, t + NRING)
        if t == C1 and not ALLW:
            spin_check(g, sMj1)
            gate[0] = 28
            issue_upto(b + 2 + NS)
        if red and t == R1:
            red1(False)
        if red and t == R2:
            red2()
        if red and t == R3:
            red3()
        if t == C2 and not ALLW:
            spin_check(g, sMq)
            gate[0] = 10 ** 9
            issue_upto(b + 2 + NS)
        if t == C3 and not ALLW:
            spin_check(g, 0xFFFF, hi=True)
            kv_open[0] = True
            for q in deferred:
                ld(slot(q), *reqs[q])
            deferred.clear()
        if t in (P1, P2, P3) and not ALLW:
            poll()
        if t == 7:
            stamp(g, 9)
    stamp(g, 10)
    for h in range(4):
        t = 14 + h
        b = 28 + 6 * h
        P00, P01, P10, P11, KV0, KV1 = (slot(b + i) for i in range(6))
        W0, W1 = Wf[t & 1]
        g.mfma(D[0], KV0, P00, 0)
        g.mfma(D[0], KV1, P01, D[0])
        if t + 1 < NSTEP:
            rd_w(t + 1)
        g.mfma(D[1], KV0, P10, 0)
        g.mfma(D[1], KV1, P11, D[1])
        issue_upto(b + 6 + NS)
        for sb in range(2):
            g.valu("v_add_f32", vRc, 1e-6, D[sb][8])
            g.valu("v_rcp_f32", vRc, vRc)
            for r in range(8):
                g.valu("v_mul_f32", D[sb][r], vRc, D[sb][r])
            for q in range(4):
                g.valu("v_cvt_pk_bf16_f32", O[sb][q], D[sb][2 * q], D[sb][2 * q + 1])
            g.mfma(acc[0][sb], W0, O[sb], acc[0][sb])
            g.mfma(acc[1][sb], W1, O[sb], acc[1][sb])
    tx = D[0]
    for r in range(8):
        src = XR[r >> 1]
        if r & 1:
            g.valu("v_and_b32", tx[r], 0xFFFF0000, src)
        else:
            g.valu("v_lshlrev_b32", tx[r], 16, src)
    for d in range(8):
        nb, sb, half = d >> 2, (d >> 1) & 1, d & 1
        base, off = (vE0, d * 16384) if d < 4 else (vE1, (d - 4) * 16384)
        for q in range(2):
            g.ds_write("ds_write_b128", base, acc[nb][sb][8 * half + 4 * q:8 * half + 4 * q + 4], off + q * 1024)
    g.waitcnt(lg=0)
    g.barrier()
    RD = [V(4 + 8 * k, 8) for k in range(8)]
    for k in range(8):
        for q in range(2):
            g.ds_read("ds_read_b128", RD[k][4 * q:4 * q + 4], vRd, k * 2048 + q * 1024)
    for k in range(0, 8, 2):
        for r in range(8):
            g.valu("v_add_f32", RD[k][r], RD[k][r], RD[k + 1][r])
    for k in (0, 4):
        for r in range(8):
            g.valu("v_add_f32", RD[k][r], RD[k][r], RD[k + 2][r])
    for r in range(8):
        g.valu("v_add_f32", RD[0][r], RD[0][r], tx[r])
    for r in range(8):
        g.valu("v_add_f32", RD[0][r], RD[0][r], RD[4][r])
    po = O[0]
    for q in range(4):
        g.valu("v_cvt_pk_bf16_f32", po[q], RD[0][2 * q], RD[0][2 * q + 1])
    g.valu("v_permlane32_swap_b32", [po[0], po[2]])
    g.valu("v_permlane32_swap_b32", [po[1], po[3]])
    g.valu("v_lshrrev_b32", vRc, 5, vLane)
    g.valu("v_lshl_add_u32", vXo, vRc, 3, vXo)
    g.bstore("buffer_store_dwordx4", po, vXo, srdO, 0)
    if STAMPS:
        g.waitcnt(vm=0)
        stamp(g, 11)
        stamp(g, 13, True)
        g.raw("s_waitcnt lgkmcnt(0)")
        g.salu("s_lshl_b32", sT0, sGw, 6)
        g.salu("s_add_u32", sT0, sT0, WS_DBG)
        for i in range(14):
            g.valu("v_mov_b32", vRc, S(72 + 2 * i))
            g.bstore("buffer_store_dword", vRc, vZero, srdWs, sT0, 4 * i)
    g.raw("s_endpgm")
    return g.text()


def main(path):
    body = gen_phase_a() + gen_phase_b(0) + gen_phase_b(1) + "hh_exit:\n    s_endpgm\n"
    s = "; hedgehog linear attention + SiLU FFN parallel block, one fused kernel (generated by my own generator script)\n"
    s += f"; @launch grid=(256,1,1) block=(512,1,1) lds={LDS_BYTES}\n"
    s += '.amdgcn_target "amdgcn-amd-amdhsa--gfx950"\n.text\n'
    s += f".globl {NAME}\n.p2align 8\n.type {NAME},@function\n" + body
    s += '.section .rodata,"a"\n.p2align 6\n'
    s += f""".amdhsa_kernel {NAME}
  .amdhsa_next_free_vgpr 256
  .amdhsa_next_free_sgpr 102
  .amdhsa_accum_offset 256
  .amdhsa_group_segment_fixed_size 0
  .amdhsa_kernarg_size 80
  .amdhsa_user_sgpr_count 2
  .amdhsa_user_sgpr_kernarg_segment_ptr 1
  .amdhsa_system_sgpr_workgroup_id_x 1
.end_amdhsa_kernel
"""
    open(path, "w").write(s)
    print("lines", s.count("\n"), file=sys.stderr)


if __name__ == "__main__":
    if len(sys.argv) > 2 and sys.argv[2].startswith("stamps"):
        STAMPS = True
    main(sys.argv[1] if len(sys.argv) > 1 else
         "parallel_sum__linear_kernel_hedgehog__dense_activation_silu__prompt.s")
```

```python
import sys
from asmlib import *

WS_HF = 0x0
WS_PQ = 0x700000
WS_WF = 0xB00000
WS_PART = 0xE00000
WS_KV = 0x1000000
WS_OF = 0x1100000
WS_SIZE = 0x1300000

LOG2E = 1.4426950408889634
ONES_BF = 0x3F803F80

A_BUF = 16384
B_BASE = 49152
B_BUF = 28672
RS = 135168
CS = RS + 4096
K1_LDS = RS + 4096 + 7 * 1024
PHK_IMG = 0
V_IMG = 32768


def make_srd(g, srd, base, nbytes, off=None):
    if off is None:
        g.salu("s_mov_b32", srd[0], base[0])
        g.salu("s_mov_b32", srd[1], base[1])
    else:
        g.salu("s_add_u32", srd[0], base[0], off)
        g.salu("s_addc_u32", srd[1], base[1], 0)
    g.salu("s_mov_b32", srd[2], nbytes)
    g.salu("s_mov_b32", srd[3], 0x20000)


STAMPS = False
import os
KR = os.environ.get("KR", "") == "1"
import os
STM = os.environ.get("STM", "sc0 sc1")
ABL = set()
WS_DBG = 0x1080000


CURK = [None]


def stamp(g, idx, real=False):
    if STAMPS == CURK[0]:
        g.raw(f"{'s_memrealtime' if real else 's_memtime'} s[{72 + 2 * idx}:{73 + 2 * idx}]")


def stamp_flush(g, n, srdWs, sGw, sT, vtmp, vtmp2):
    if STAMPS != CURK[0]:
        return
    g.raw("s_waitcnt lgkmcnt(0)")
    g.salu("s_lshl_b32", sT, sGw, 6)
    g.salu("s_add_u32", sT, sT, WS_DBG)
    g.valu("v_mov_b32", vtmp2, 0)
    for i in range(n):
        g.valu("v_mov_b32", vtmp, S(72 + 2 * i))
        g.bstore("buffer_store_dword", vtmp, vtmp2, srdWs, sT, 4 * i)


def bf16_round(g, dst, src):
    g.valu("v_cvt_pk_bf16_f32", dst, src, src)
    g.valu("v_lshlrev_b32", dst, 16, dst)


def gen_k1():
    name = "hh_k1_kernel"
    CURK[0] = "k1"
    g = Gen()
    out = []
    sKarg, sWG = S(0, 2), S(2)
    sX, sWqkv, sWphi, sWo, sW1, sW2, sWs = S(4, 2), S(6, 2), S(8, 2), S(10, 2), S(12, 2), S(14, 2), S(16, 2)
    srdX, srdW, srdWs, srdAux, srdAux2, srdPhi = S(20, 4), S(24, 4), S(28, 4), S(32, 4), S(36, 4), S(40, 4)
    sW, sI, sJ, sMt, sNt, sType, sXcd, sIdx = (S(44 + k) for k in range(8))
    sT0, sT1, sT2, sT3 = S(52), S(53), S(54), S(55)
    sKA, sKB, sAm0, sBm0, sOnes, sGw = S(56), S(57), S(58), S(59), S(60), S(61)
    sMask = S(62, 2)
    sF1, sF2, sF1d, sF2d = S(64), S(65), S(66), S(67)
    sOut = S(68)
    sPhiOff = S(69)

    g.label(name)
    g.salu("s_cmp_ge_u32", None, sWG, 256)
    g.raw("s_cbranch_scc1 hh_k1_exit")
    stamp(g, 0)
    stamp(g, 12, True)
    g.sload(S(4, 4), sKarg, 0)
    g.sload(S(8, 4), sKarg, 16)
    g.sload(S(12, 4), sKarg, 40)
    g.sload(S(16, 2), sKarg, 72)
    vTid = V(0)
    vLane, vT = V(1), V(2)
    g.valu("v_lshrrev_b32", vT, 6, vTid)
    g.valu("v_and_b32", vLane, 63, vTid)
    g.valu("v_readfirstlane_b32", sW, vT)
    g.salu("s_and_b32", sXcd, sWG, 7)
    g.salu("s_lshr_b32", sIdx, sWG, 3)
    g.salu("s_and_b32", sT0, sXcd, 1)
    g.salu("s_lshl_b32", sT0, sT0, 3)
    g.salu("s_and_b32", sT1, sIdx, 7)
    g.salu("s_or_b32", sMt, sT0, sT1)
    g.salu("s_lshr_b32", sType, sIdx, 4)
    g.salu("s_lshr_b32", sT0, sXcd, 1)
    g.salu("s_lshl_b32", sT0, sT0, 1)
    g.salu("s_bfe_u32", sT1, sIdx, (1 << 16) | 3)
    g.salu("s_or_b32", sNt, sT0, sT1)
    g.salu("s_and_b32", sI, sW, 3)
    g.salu("s_lshr_b32", sJ, sW, 2)
    g.salu("s_lshl_b32", sT0, sWG, 3)
    g.salu("s_add_u32", sGw, sT0, sW)
    g.salu("s_mov_b32", sOnes, ONES_BF)
    g.salu("s_lshl_b32", sT0, sType, 1)
    g.salu("s_add_u32", sT0, sT0, sJ)
    g.salu("s_cmp_eq_u32", None, sT0, 1)
    g.raw("s_cbranch_scc1 hh_k1_r1")
    g.salu("s_cmp_eq_u32", None, sT0, 2)
    g.raw("s_cbranch_scc1 hh_k1_r2")
    g.salu("s_cmp_eq_u32", None, sT0, 3)
    g.raw("s_cbranch_scc1 hh_k1_r3")
    out.append(g.text())
    base_state = g
    maxv = 0

    for role in range(4):
        typ, j = role >> 1, role & 1
        g = base_state.fork()
        g.label(f"hh_k1_r{role}")
        va = VAlloc(5, 256)
        U = 4 if (typ == 1 and j == 0) else 3
        ldw = 3584 if typ else 3072
        nB = 4 if j == 1 else 3
        vA = [va.get() for _ in range(2)]
        vB = [va.get() for _ in range(nB)]
        t0, t1, t2, t3 = va.get(), va.get(), va.get(), va.get()
        g.valu("v_lshrrev_b32", t0, 3, vLane)
        g.valu("v_lshrrev_b32", t1, 4, vLane)
        g.valu("v_and_b32", t2, 7, vLane)
        g.salu("s_lshl_b32", sT0, sW, 4)
        for e in range(2):
            g.valu("v_add_u32", t3, sT0, t0)
            if e:
                g.valu("v_add_u32", t3, 8, t3)
            g.valu("v_lshlrev_b32", vA[e], 10, t3)
            g.valu("v_xor_b32", t3, t2, t1)
            if e:
                g.valu("v_xor_b32", t3, 4, t3)
            g.valu("v_lshl_add_u32", vA[e], t3, 4, vA[e])
        g.salu("s_add_u32", sT1, sW, 4)
        g.salu("s_and_b32", sT1, sT1, 7)
        g.salu("s_lshl_b32", sBm0, sT1, 10)
        g.salu("s_add_u32", sBm0, sBm0, B_BASE)
        g.salu("s_lshl_b32", sAm0, sW, 11)
        g.salu("s_lshl_b32", sT1, sT1, 6)
        for e in range(nB):
            g.valu("v_add_u32", t0, sT1, vLane)
            if e:
                g.valu("v_add_u32", t0, 512 * e, t0)
            g.valu("v_mul_u32_u24", t1, 2341, t0)
            g.valu("v_lshrrev_b32", t1, 16, t1)
            g.valu("v_mul_u32_u24", t2, 28, t1)
            g.valu("v_sub_u32", t2, t0, t2)
            g.valu("v_mul_u32_u24", vB[e], ldw, t1)
            if typ == 1:
                g.valu("v_lshl_add_u32", vB[e], t2, 4, vB[e])
            else:
                g.valu("v_lshrrev_b32", t3, 3, t2)
                g.valu("v_lshl_add_u32", vB[e], t3, 10, vB[e])
                g.valu("v_and_b32", t3, 7, t2)
                g.valu("v_lshl_add_u32", vB[e], t3, 4, vB[e])
                g.valu("v_cmp_le_u32", VCC, 24, t2)
                g.valu("v_mov_b32", t3, 0x80000000)
                g.valu("v_cndmask_b32", vB[e], vB[e], t3, VCC)
        g.salu("s_mov_b32", sKA, 0)
        g.salu("s_mov_b32", sKB, 0)
        g.lg = []
        g.raw("s_waitcnt lgkmcnt(0)")
        g.salu("s_lshl_b32", sT0, sMt, 17)
        make_srd(g, srdX, sX, 131072, sT0)
        if typ == 0:
            g.salu("s_lshl_b32", sT0, sNt, 7)
            make_srd(g, srdW, sWqkv, 512 * 3072 - 7 * 128, sT0)
        else:
            g.salu("s_mul_i32", sT0, sNt, 448)
            make_srd(g, srdW, sW1, 512 * 3584 - 7 * 448, sT0)
        make_srd(g, srdWs, sWs, WS_SIZE)

        def dma_items(stage):
            b = stage % 3
            items = []
            for e in range(2):
                def f(e=e):
                    g.salu("s_mov_b32", sKA, stage * 128)
                    g.salu("s_add_u32", M0, sAm0, b * A_BUF + e * 1024)
                    g.dma(vA[e], srdX, sKA, tag=("dma", stage))
                items.append(f)
            for e in range(nB):
                def f(e=e):
                    g.salu("s_mov_b32", sKB, stage * 64 * ldw)
                    g.salu("s_add_u32", M0, sBm0, b * B_BUF + e * 8192)
                    g.dma(vB[e], srdW, sKB, tag=("dma", stage))
                items.append(f)
            return items

        def issue_dma(stage):
            for f in dma_items(stage):
                f()

        stamp(g, 1)
        issue_dma(0)
        g.barrier()
        stamp(g, 2)

        vXa = [va.get() for _ in range(4)]
        vWa = [va.get() for _ in range(4)]
        vWb = [va.get() for _ in range(4)]
        g.valu("v_and_b32", t0, 31, vLane)
        g.salu("s_lshl_b32", sT0, sI, 5)
        g.valu("v_add_u32", t0, sT0, t0)
        g.valu("v_lshlrev_b32", t0, 7, t0)
        g.valu("v_lshrrev_b32", t1, 5, vLane)
        g.valu("v_bfe_u32", t2, vLane, 1, 3)
        g.valu("v_xor_b32", t1, t1, t2)
        g.valu("v_lshl_add_u32", t0, t1, 4, t0)
        g.valu("v_lshrrev_b32", t1, 5, vLane)
        g.valu("v_bfe_u32", t2, vLane, 2, 2)
        g.valu("v_lshl_add_u32", t1, t1, 3, t2)
        g.valu("v_mul_u32_u24", t1, 448, t1)
        g.valu("v_bfe_u32", t2, vLane, 4, 1)
        g.valu("v_lshl_add_u32", t1, t2, 5, t1)
        g.valu("v_and_b32", t2, 3, vLane)
        g.valu("v_lshl_add_u32", t1, t2, 3, t1)
        g.valu("v_add_u32", t1, B_BASE + j * 64, t1)
        for t in range(4):
            g.salu("s_add_u32", sT0, sI, t + 2 * j)
            g.salu("s_and_b32", sT0, sT0, 3)
            g.salu("s_lshl_b32", sT1, sT0, 5)
            g.valu("v_xor_b32", vXa[t], sT1, t0)
            g.salu("s_mul_i32", sT1, sT0, 16 * 448)
            g.valu("v_add_u32", vWa[t], sT1, t1)
            g.valu("v_add_u32", vWb[t], 2 * B_BUF, vWa[t])

        issue_dma(1)
        side = []
        side += dma_items(2)
        sched = {"n": 3 * U, "k": len(side), "i": 0}
        vRl = [va.get(), va.get()]
        g.valu("v_lshrrev_b32", t1, 5, vLane)
        g.valu("v_and_b32", t2, 31, vLane)
        g.valu("v_lshlrev_b32", t2, 1, t2)
        g.valu("v_lshl_add_u32", vRl[0], t1, 12, t2)
        g.valu("v_add_u32", vRl[1], 8192, vRl[0])
        vL16 = va.get()
        g.valu("v_lshlrev_b32", vL16, 4, vLane)
        g.salu("s_lshr_b32", sT0, sGw, 4)
        g.salu("s_and_b32", sT1, sGw, 15)
        g.salu("s_mul_i32", sF1d, sT1, 144)
        g.salu("s_add_u32", sF1d, sF1d, sT0)
        g.salu("s_lshl_b32", sF1d, sF1d, 10)
        g.salu("s_add_u32", sF1d, sF1d, WS_WF)
        g.salu("s_add_u32", sF2d, sF1d, 128 * 1024)
        g.salu("s_cmp_lt_u32", None, sGw, 256)
        g.salu("s_cselect_b32", sF2d, sF2d, 0x7FFF0000)
        g.salu("s_cmp_ge_u32", None, sT0, 112)
        g.salu("s_cselect_b32", srdAux[0], sWo[0], sW2[0])
        g.salu("s_cselect_b32", srdAux[1], sWo[1], sW2[1])
        g.salu("s_mov_b32", sT3, 1792 * 1024)
        g.salu("s_cselect_b32", srdAux[2], 512 * 1024, sT3)
        g.salu("s_mov_b32", srdAux[3], 0x20000)
        g.salu("s_cselect_b32", sT2, 112, 0)
        g.salu("s_sub_u32", sT2, sT0, sT2)
        g.salu("s_lshl_b32", sF1, sT2, 14)
        g.salu("s_lshl_b32", sT1, sT1, 6)
        g.salu("s_add_u32", sF1, sF1, sT1)
        g.salu("s_add_u32", sT2, sT0, 16)
        g.salu("s_lshl_b32", sF2, sT2, 14)
        g.salu("s_add_u32", sF2, sF2, sT1)
        make_srd(g, srdAux2, sWo, 512 * 1024)
        vR1 = [va.get() for _ in range(8)]
        vR2 = [va.get() for _ in range(8)]
        late = []
        for jj in range(8):
            late.append(lambda jj=jj: g.bload("buffer_load_ushort", vR1[jj], vRl[jj >> 2], srdAux, sF1, (jj & 3) * 1024))
        for jj in range(8):
            late.append(lambda jj=jj: g.bload("buffer_load_ushort", vR2[jj], vRl[jj >> 2], srdAux2, sF2, (jj & 3) * 1024))
        if typ == 0:
            make_srd(g, srdPhi, sWphi, 32 * 512)
            vPh = [va.get() for _ in range(16)]
            vPa, vSign = va.get(), va.get()
            g.valu("v_bfe_u32", t1, vLane, 3, 2)
            g.valu("v_and_b32", t2, 3, vLane)
            g.valu("v_lshl_add_u32", t1, t1, 2, t2)
            g.valu("v_lshlrev_b32", t1, 1, t1)
            g.valu("v_lshrrev_b32", t2, 5, vLane)
            g.valu("v_lshl_add_u32", vPa, t2, 7, t1)
            g.valu("v_bfe_u32", t1, vLane, 2, 1)
            g.salu("s_mov_b32", sT0, 0x80008000)
            g.valu("v_mul_lo_u32", vSign, t1, sT0)
            g.salu("s_lshl_b32", sT0, sNt, 2)
            g.salu("s_add_u32", sT0, sT0, 2 * j)
            g.salu("s_lshl_b32", sPhiOff, sT0, 9)
            for hl in range(2):
                for jj in range(8):
                    late.append(lambda hl=hl, jj=jj: g.bload("buffer_load_ushort", vPh[hl * 8 + jj], vPa, srdPhi, sPhiOff,
                                                             hl * 512 + (8 * (jj >> 2) + (jj & 3)) * 32))

        acc = [va.get(16, 4) for _ in range(U)]
        X = [va.get(4, 4) for _ in range(2)]
        Wf = [[va.get(4, 4) for _ in range(U)] for _ in range(2)]
        vSS = va.get(2, 2)
        vSum, vSq = vSS[0], vSS[1]
        vSum2, vSq2 = va.get(), va.get()
        vCsA = [va.get(4, 4) for _ in range(U)]
        vSel = va.get(4, 4)
        vUn = [va.get() for _ in range(4)]
        g.valu("v_lshrrev_b32", t1, 4, vLane)
        g.valu("v_xor_b32", t1, t1, vLane)
        g.valu("v_and_b32", t1, 1, t1)
        g.valu("v_cmp_eq_u32", VCC, 0, t1)
        g.valu("v_mov_b32", t1, 0)
        g.valu("v_mov_b32", t2, ONES_BF)
        for q in range(4):
            g.valu("v_cndmask_b32", vSel[q], t1, t2, VCC)
        sHiMask = sOnes
        g.salu("s_mov_b32", sHiMask, 0xFFFF0000)
        for z in [vSum, vSq, vSum2, vSq2]:
            g.valu("v_mov_b32", z, 0)

        def rd_x(T):
            s, t = divmod(T, 4)
            g.ds_read("ds_read_b128", X[T & 1], vXa[t], (s % 3) * A_BUF)

        def rd_w(T, u):
            if "nords" in ABL and T > 0:
                return
            s, t = divmod(T, 4)
            b = s % 3
            base, off = (vWa[t], b * B_BUF) if b < 2 else (vWb[t], 0)
            for half in range(2):
                g.ds_read("ds_read_b64_tr_b16", Wf[T & 1][u][2 * half:2 * half + 2], base,
                          off + half * 4 * 448 + u * 128)

        def sent1():
            for q in range(4):
                g.valu("v_mov_b32", va_tmp[0][q], -1)
            g.salu("s_lshl_b32", sT0, sGw, 10)
            g.salu("s_add_u32", sT0, sT0, WS_OF)
            g.bstore("buffer_store_dwordx4", va_tmp[0], vL16, srdWs, sT0, mods=STM)

        def sent2():
            g.salu("s_lshl_b32", sT0, sGw, 10)
            g.salu("s_add_u32", sT0, sT0, WS_KV)
            g.salu("s_cmp_lt_u32", None, sGw, 64)
            g.salu("s_cselect_b32", sT0, sT0, 0x7FFF0000)
            g.bstore("buffer_store_dwordx4", va_tmp[0], vL16, srdWs, sT0, mods=STM)

        late.insert(0, sent1)
        late.insert(1, sent2)

        def relayout_store():
            for n_, (vr, dsto) in enumerate(((vR1, sF1d), (vR2, sF2d))):
                pk = va_tmp[n_]
                for q in range(4):
                    g.valu("v_lshl_or_b32", pk[q], vr[2 * q + 1], 16, vr[2 * q])
                g.bstore("buffer_store_dwordx4", pk, vL16, srdWs, dsto, mods=STM)

        va_tmp = [va.get(4, 4), va.get(4, 4)]

        stamp(g, 3)
        g.wait_vm_tag(("dma", 0))
        g.barrier()
        stamp(g, 4)
        rd_x(0)
        for u in range(U):
            rd_w(0, u)

        for T in range(32):
            s, t = divmod(T, 4)
            cur = T & 1
            last = (T == 31)
            fill = [[] for _ in range(U)]
            if "nodot" not in ABL:
                ops = []
                for r in (2 * j, 2 * j + 1):
                    lo, hi = vUn[2 * (r & 1)], vUn[2 * (r & 1) + 1]
                    ops += [lambda r=r, lo=lo: g.valu("v_lshlrev_b32", lo, 16, X[cur][r]),
                            lambda r=r, hi=hi: g.valu("v_and_b32", hi, sHiMask, X[cur][r]),
                            lambda lo=lo: g.valu("v_add_f32", vSum, vSum, lo),
                            lambda hi=hi: g.valu("v_add_f32", vSum2, vSum2, hi),
                            lambda lo=lo: g.valu("v_fma_f32", vSq, lo, lo, vSq),
                            lambda hi=hi: g.valu("v_fma_f32", vSq2, hi, hi, vSq2)]
                per = 12 // U
                if "nors" in ABL:
                    ops = []
                for u in range(U):
                    fill[u] += ops[u * per:(u + 1) * per]
                if t < U and "nocs" not in ABL:
                    fill[t].insert(0, lambda t=t: g.mfma(vCsA[t], Wf[cur][t], vSel, vCsA[t] if s else 0,
                                                         op="v_mfma_f32_16x16x32_bf16"))
            boundary = (t == 3 and not last)
            for u in range(U):
                if "nomfma" not in ABL or T == 0:
                    g.mfma(acc[u], Wf[cur][u], X[cur], acc[u] if T else 0)
                else:
                    g._wait_for_regs(Wf[cur][u].regs() + X[cur].regs())
                if not boundary and not last:
                    if u == 0:
                        rd_x(T + 1)
                    rd_w(T + 1, u)
                if boundary and u == 1:
                    g.waitcnt(lg=0)
                    g.wait_vm_tag(("dma", s + 1))
                    g.barrier()
                    rd_x(T + 1)
                    for uu in range(U):
                        rd_w(T + 1, uu)
                if boundary and u == 1:
                    assert not side
                    if s + 3 <= 7 and "nodma" not in ABL:
                        side += dma_items(s + 3)
                        sched["n"] = (U - 2) + 3 * U
                        sched["k"] = len(side)
                        sched["i"] = 0
                elif not (boundary and u < 2):
                    did = False
                    if side:
                        i0 = sched["i"]
                        if (i0 + 1) * sched["k"] // sched["n"] > i0 * sched["k"] // sched["n"]:
                            side.pop(0)()
                            did = True
                        sched["i"] += 1
                    if not did and late and T >= 16:
                        late.pop(0)()
                for f in fill[u]:
                    f()
            if T in (7, 15, 23, 31):
                stamp(g, 5 + T // 8)
        assert not side
        while late:
            late.pop(0)()
        vRa, vCa, vRr, vCr = va.get(), va.get(), va.get(), va.get()
        g.valu("v_and_b32", t0, 31, vLane)
        g.valu("v_lshrrev_b32", t2, 5, vLane)
        g.salu("s_lshl_b32", sT0, sI, 5)
        g.valu("v_add_u32", t1, sT0, t0)
        g.valu("v_lshlrev_b32", vRr, 5, t1)
        g.valu("v_add_u32", vRr, RS, vRr)
        g.valu("v_lshl_add_u32", vRa, t2, 3, vRr)
        g.valu("v_lshlrev_b32", vCr, 2, t0)
        g.valu("v_add_u32", vCr, CS + j * 512, vCr)
        g.valu("v_and_b32", t1, 1, vLane)
        g.valu("v_lshlrev_b32", t1, 6, t1)
        g.valu("v_lshrrev_b32", t2, 4, vLane)
        g.valu("v_lshl_add_u32", vCa, t2, 4, t1)
        g.salu("s_lshl_b32", sT0, sI, 7)
        g.salu("s_add_u32", sT0, sT0, CS + j * 512)
        g.valu("v_add_u32", vCa, sT0, vCa)
        g.valu("v_add_f32", vSum, vSum, vSum2)
        g.valu("v_add_f32", vSq, vSq, vSq2)
        g.ds_write("ds_write_b64", vRa, vSS, j * 16)
        g.salu("s_mov_b32", EXEC[0], 0x00030003)
        g.salu("s_mov_b32", EXEC[1], 0x00030003)
        for u in range(U):
            g.ds_write("ds_write_b128", vCa, vCsA[u], u * 1024)
        g.salu("s_mov_b64", EXEC, -1)
        g.waitcnt(lg=0)
        g.barrier()
        stamp(g, 9)
        csr = [va.get(16, 4) for _ in range(2)]
        rsr = csr[0][0:8]
        g.ds_read("ds_read_b128", rsr[0:4], vRr)
        g.ds_read("ds_read_b128", rsr[4:8], vRr, 16)
        cpt = [csr[1][4 * u:4 * u + 4] for u in range(U)]
        for u in range(U):
            for i_ in range(4):
                g.ds_read("ds_read_b32", cpt[u][i_], vCr, u * 1024 + i_ * 128)
        vMean, vVar, vRinv, vNr2 = va.get(), va.get(), va.get(), va.get()
        g.valu("v_add_f32", rsr[0], rsr[0], rsr[2])
        g.valu("v_add_f32", rsr[1], rsr[1], rsr[3])
        g.valu("v_add_f32", rsr[4], rsr[4], rsr[6])
        g.valu("v_add_f32", rsr[5], rsr[5], rsr[7])
        g.valu("v_add_f32", rsr[0], rsr[0], rsr[4])
        g.valu("v_add_f32", rsr[1], rsr[1], rsr[5])
        g.valu("v_mul_f32", vMean, 1.0 / 512, rsr[0])
        g.valu("v_mul_f32", vVar, 1.0 / 512, rsr[1])
        g.valu("v_fma_f32", vVar, Neg(vMean), vMean, vVar)
        MB = X[0]
        g.valu("v_cvt_pk_bf16_f32", MB[0], Neg(vMean), Neg(vMean))
        g.valu("v_cmp_gt_u32", VCC, 32, vLane)
        g.valu("v_mov_b32", MB[2], 0)
        g.valu("v_mov_b32", MB[3], 0)
        g.valu("v_cndmask_b32", MB[0], MB[2], MB[0], VCC)
        g.valu("v_and_b32", MB[1], 0xFFFF, MB[0])
        bf16_round(g, vVar, vVar)
        g.valu("v_add_f32", vVar, 1e-5, vVar)
        bf16_round(g, vVar, vVar)
        g.valu("v_sqrt_f32", vVar, vVar)
        bf16_round(g, vVar, vVar)
        g.valu("v_rcp_f32", vRinv, vVar)
        g.salu("s_mov_b32", sT3, 0x07060302)
        CA = [Wf[0][u] for u in range(U)]
        for u in range(U):
            c = cpt[u]
            g.valu("v_add_f32", c[0], c[0], c[1])
            g.valu("v_add_f32", c[2], c[2], c[3])
            g.valu("v_add_f32", c[0], c[0], c[2])
            g.valu("v_and_b32", c[1], sHiMask, c[0])
            g.valu("v_sub_f32", c[1], c[0], c[1])
            g.valu("v_and_b32", c[2], sHiMask, c[1])
            g.valu("v_sub_f32", c[2], c[1], c[2])
            g.valu("v_perm_b32", CA[u][0], c[1], c[0], sT3)
            g.valu("v_lshrrev_b32", CA[u][1], 16, c[2])
            g.valu("v_mov_b32", CA[u][2], 0)
            g.valu("v_mov_b32", CA[u][3], 0)
            g.mfma(acc[u], CA[u], MB, acc[u])
        g.valu("v_mul_f32", vNr2, -LOG2E, vRinv)
        relayout_store()

        if typ == 1:
            g.salu("s_lshl_b32", sT0, sMt, 2)
            g.salu("s_add_u32", sT0, sT0, sI)
            g.salu("s_mul_i32", sT0, sT0, 112)
            g.salu("s_mul_i32", sT1, sNt, 14)
            g.salu("s_add_u32", sT0, sT0, sT1)
            g.salu("s_add_u32", sT0, sT0, 2 * j)
            g.salu("s_lshl_b32", sOut, sT0, 10)
            e = [va.get() for _ in range(8)]
            pk = [va.get(4, 4) for _ in range(2)]
            g.salu("s_mov_b32", sT2, -LOG2E)
            for u in range(U):
                for m in range(2):
                    rr = range(8 * m, 8 * m + 8)
                    for r in rr:
                        g.valu("v_mul_f32", acc[u][r], vNr2, acc[u][r])
                    for r in rr:
                        g.valu("v_exp_f32", e[r & 7], acc[u][r])
                    for r in rr:
                        g.valu("v_fma_f32", e[r & 7], e[r & 7], sT2, sT2)
                    for r in rr:
                        g.valu("v_rcp_f32", e[r & 7], e[r & 7])
                    for r in rr:
                        g.valu("v_mul_f32", acc[u][r], acc[u][r], e[r & 7])
                    for q in range(4):
                        g.valu("v_cvt_pk_bf16_f32", pk[m][q], acc[u][8 * m + 2 * q], acc[u][8 * m + 2 * q + 1])
                    g.bstore("buffer_store_dwordx4", pk[m], vL16, srdWs, sOut, m * 1024, mods=STM)
                if u + 1 < U:
                    g.salu("s_add_u32", sOut, sOut, 4096)
        else:
            PH = [va.get(4, 4) for _ in range(2)]
            for hl in range(2):
                for q in range(4):
                    g.valu("v_lshl_or_b32", PH[hl][q], vPh[hl * 8 + 2 * q + 1], 16, vPh[hl * 8 + 2 * q])
                    g.valu("v_xor_b32", PH[hl][q], vSign, PH[hl][q])
            for u in (2, 1, 0):
                for r in range(16):
                    g.valu("v_mul_f32", acc[u][r], vRinv, acc[u][r])
            vIm = va.get()
            g.valu("v_and_b32", t0, 31, vLane)
            g.salu("s_lshl_b32", sT0, sI, 5)
            g.valu("v_add_u32", t0, sT0, t0)
            g.valu("v_lshlrev_b32", t0, 6, t0)
            g.valu("v_lshrrev_b32", t1, 5, vLane)
            g.valu("v_lshl_add_u32", vIm, t1, 3, t0)
            assert Wf[1][2].i == Wf[1][1].i + 4
            pk8 = V(Wf[1][1].i, 8)
            D2 = csr
            QF = X
            vMx, vSm = va.get(), va.get()
            for q in range(8):
                g.valu("v_cvt_pk_bf16_f32", pk8[q], acc[2][2 * q], acc[2][2 * q + 1])
            for q in range(4):
                g.ds_write("ds_write_b64", vIm, pk8[2 * q:2 * q + 2], V_IMG + j * 8192 + q * 16)

            def phi(u):
                for hl in range(2):
                    for q in range(4):
                        g.valu("v_cvt_pk_bf16_f32", QF[hl][q], acc[u][8 * hl + 2 * q], acc[u][8 * hl + 2 * q + 1])
                for hl in range(2):
                    g.mfma(D2[hl], PH[hl], QF[hl], 0)

            def softmax(hl):
                D = D2[hl]
                g.valu("v_max3_f32", vMx, D[0], D[1], D[2])
                for r in range(3, 15, 2):
                    g.valu("v_max3_f32", vMx, vMx, D[r], D[r + 1])
                g.valu("v_max_f32", vMx, vMx, D[15])
                g.valu("v_mul_f32", vMx, -LOG2E, vMx)
                for r in range(16):
                    g.valu("v_fma_f32", D[r], D[r], sLog2e, vMx)
                for r in range(16):
                    g.valu("v_exp_f32", D[r], D[r])
                g.valu("v_add_f32", vSm, D[0], D[1])
                for r in range(2, 16):
                    g.valu("v_add_f32", vSm, vSm, D[r])
                g.valu("v_rcp_f32", vSm, vSm)
                for r in range(16):
                    g.valu("v_mul_f32", D[r], vSm, D[r])
                for q in range(8):
                    g.valu("v_cvt_pk_bf16_f32", pk8[q], D[2 * q], D[2 * q + 1])

            sLog2e = sT3
            g.salu("s_mov_b32", sLog2e, LOG2E)
            phi(1)
            for hl in range(2):
                softmax(hl)
                for q in range(4):
                    g.ds_write("ds_write_b64", vIm, pk8[2 * q:2 * q + 2], PHK_IMG + (2 * j + hl) * 8192 + q * 16)
            g.waitcnt(lg=0)
            g.barrier()
            phi(0)
            g.salu("s_lshl_b32", sT0, sMt, 2)
            g.salu("s_add_u32", sT0, sT0, sI)
            g.salu("s_lshl_b32", sT0, sT0, 5)
            g.salu("s_lshl_b32", sT1, sNt, 2)
            g.salu("s_add_u32", sT0, sT0, sT1)
            g.salu("s_add_u32", sT0, sT0, 2 * j)
            g.salu("s_lshl_b32", sOut, sT0, 11)
            g.salu("s_add_u32", sOut, sOut, WS_PQ)
            for hl in range(2):
                softmax(hl)
                for m in range(2):
                    g.bstore("buffer_store_dwordx4", pk8[4 * m:4 * m + 4], vL16, srdWs, sOut, (hl * 2 + m) * 1024, mods=STM)
            if j == 0:
                vKa, vVa, vOne = va.get(), va.get(), va.get()
                g.valu("v_lshrrev_b32", t1, 5, vLane)
                g.valu("v_bfe_u32", t2, vLane, 2, 2)
                g.valu("v_lshl_add_u32", t1, t1, 3, t2)
                g.valu("v_lshlrev_b32", t1, 6, t1)
                g.valu("v_and_b32", t2, 3, vLane)
                g.valu("v_lshl_add_u32", t1, t2, 3, t1)
                g.valu("v_bfe_u32", t2, vLane, 4, 1)
                g.valu("v_lshl_add_u32", t2, t2, 5, t1)
                g.salu("s_lshl_b32", sT0, sI, 13)
                g.valu("v_add_u32", vKa, sT0, t2)
                g.salu("s_lshr_b32", sT0, sI, 1)
                g.salu("s_lshl_b32", sT0, sT0, 13)
                g.salu("s_and_b32", sT1, sI, 1)
                g.salu("s_lshl_b32", sT1, sT1, 5)
                g.salu("s_add_u32", sT0, sT0, sT1)
                g.salu("s_add_u32", sT0, sT0, V_IMG)
                g.valu("v_add_u32", vVa, sT0, t1)
                g.valu("v_mov_b32", vOne, ONES_BF)
                g.salu("s_mov_b32", sMask[0], 0xFFFF0000)
                g.salu("s_mov_b32", sMask[1], 0xFFFF0000)
                KA = [Wf[0][0], Wf[0][1]]
                KB = [Wf[0][2], Wf[1][0]]
                D3 = D2[0]

                def rd_kv(ks):
                    for half in range(2):
                        g.ds_read("ds_read_b64_tr_b16", KA[ks & 1][2 * half:2 * half + 2], vKa, ks * 1024 + half * 256)
                    for half in range(2):
                        g.ds_read("ds_read_b64_tr_b16", KB[ks & 1][2 * half:2 * half + 2], vVa, ks * 1024 + half * 256)

                rd_kv(0)
                for ks in range(8):
                    if ks + 1 < 8:
                        rd_kv(ks + 1)
                    for r in range(4):
                        g.valu("v_cndmask_b32_e64", KB[ks & 1][r], KB[ks & 1][r], vOne, sMask)
                    g.mfma(D3, KA[ks & 1], KB[ks & 1], D3 if ks else 0)
                g.salu("s_lshl_b32", sT0, sMt, 5)
                g.salu("s_lshl_b32", sT1, sNt, 2)
                g.salu("s_add_u32", sT0, sT0, sT1)
                g.salu("s_add_u32", sT0, sT0, sI)
                g.salu("s_lshl_b32", sOut, sT0, 12)
                g.salu("s_add_u32", sOut, sOut, WS_PART)
                for q in range(4):
                    g.bstore("buffer_store_dwordx4", D3[4 * q:4 * q + 4], vL16, srdWs, sOut, q * 1024, mods=STM)
        stamp(g, 10)
        g.waitcnt(vm=0)
        stamp(g, 11)
        stamp(g, 13, True)
        stamp_flush(g, 14, srdWs, sGw, sT0, t0, t1)
        g.raw("s_endpgm")
        maxv = max(maxv, va.hi)
        out.append(g.text())
    out.append("hh_k1_exit:\n    s_endpgm\n")
    return name, "".join(out), maxv


def gen_kr():
    name = "hh_kr_kernel"
    CURK[0] = "kr"
    g = Gen()
    sKarg, sWG = S(0, 2), S(2)
    sWs, srdWs = S(4, 2), S(8, 4)
    sW, sT0, sT1, sOff = S(12), S(13), S(14), S(15)
    g.label(name)
    g.salu("s_cmp_ge_u32", None, sWG, 32)
    g.raw("s_cbranch_scc1 hh_kr_exit")
    g.sload(sWs, sKarg, 72)
    vLane, vT, vL16, vL8 = V(1), V(2), V(3), V(4)
    g.valu("v_lshrrev_b32", vT, 6, V(0))
    g.valu("v_and_b32", vLane, 63, V(0))
    g.valu("v_readfirstlane_b32", sW, vT)
    g.valu("v_lshlrev_b32", vL16, 4, vLane)
    g.lg = []
    g.raw("s_waitcnt lgkmcnt(0)")
    make_srd(g, srdWs, sWs, WS_SIZE)
    g.salu("s_lshl_b32", sT0, sWG, 2)
    g.salu("s_add_u32", sT0, sT0, sW)
    g.salu("s_lshl_b32", sOff, sT0, 10)
    g.salu("s_add_u32", sOff, sOff, WS_PART)
    P = [V(8 + 4 * m, 4) for m in range(16)]
    for m in range(16):
        g.bload("buffer_load_dwordx4", P[m], vL16, srdWs, sOff)
        if m < 15:
            g.salu("s_add_u32", sOff, sOff, 32 * 4096)
    for m in range(1, 16):
        for r in range(4):
            g.valu("v_add_f32", P[0][r], P[0][r], P[m][r])
    pk = V(6, 2)
    g.valu("v_cvt_pk_bf16_f32", pk[0], P[0][0], P[0][1])
    g.valu("v_cvt_pk_bf16_f32", pk[1], P[0][2], P[0][3])
    g.salu("s_lshl_b32", sT0, sWG, 11)
    g.salu("s_lshr_b32", sT1, sW, 1)
    g.salu("s_lshl_b32", sT1, sT1, 10)
    g.salu("s_add_u32", sT0, sT0, sT1)
    g.salu("s_and_b32", sT1, sW, 1)
    g.salu("s_lshl_b32", sT1, sT1, 3)
    g.salu("s_add_u32", sT0, sT0, sT1)
    g.salu("s_add_u32", sOff, sT0, WS_KV)
    g.bstore("buffer_store_dwordx2", pk, vL16, srdWs, sOff)
    g.raw("s_endpgm")
    return name, g.text() + "hh_kr_exit:\n    s_endpgm\n", 72


K2_LDS = 48 * 1024


def gen_k2(NS=int(os.environ.get("NS", "28"))):
    name = "hh_k2_kernel"
    CURK[0] = "k2"
    g = Gen()
    out = []
    LIMIT = 0x1000
    OM = os.environ.get("OM", "")
    sKarg, sWG = S(0, 2), S(2)
    sX, sWs, sOutp, sDbg = S(4, 2), S(6, 2), S(8, 2), S(10, 2)
    srdX, srdO, srdWs = S(12, 4), S(16, 4), S(20, 4)
    sW, sMt, sNt, sT0, sT1, sT2 = (S(24 + k) for k in range(6))
    g.label(name)
    g.salu("s_cmp_ge_u32", None, sWG, 256)
    g.raw("s_cbranch_scc1 hh_k2_exit")
    stamp(g, 0)
    stamp(g, 12, True)
    g.sload(sWs, sKarg, 72)
    g.sload(sX, sKarg, 0)
    g.sload(S(8, 4), sKarg, 56)
    va = VAlloc(1, 256)
    vLane, vT, vL16 = va.get(), va.get(), va.get()
    g.valu("v_lshrrev_b32", vT, 6, V(0))
    g.valu("v_and_b32", vLane, 63, V(0))
    g.valu("v_readfirstlane_b32", sW, vT)
    g.valu("v_lshlrev_b32", vL16, 4, vLane)
    g.salu("s_and_b32", sT0, sWG, 7)
    g.salu("s_lshl_b32", sT0, sT0, 2)
    g.salu("s_bfe_u32", sT1, sWG, (2 << 16) | 3)
    g.salu("s_or_b32", sMt, sT0, sT1)
    g.salu("s_lshr_b32", sNt, sWG, 5)
    g.salu("s_cmp_ge_u32", None, sW, 4)
    g.raw("s_cbranch_scc1 hh_k2_aux")
    base_state = g
    out.append(g.text())

    def sentinel_check(g, t, regs):
        regs = list(regs)
        g.valu("v_max3_u32", t, regs[0], regs[1], regs[2])
        i = 3
        while i < len(regs):
            if i + 1 < len(regs):
                g.valu("v_max3_u32", t, t, regs[i], regs[i + 1])
                i += 2
            else:
                g.valu("v_max_u32", t, t, regs[i])
                i += 1
        g.valu("v_cmp_eq_u32", VCC, -1, t)

    g = base_state.fork()
    sH = [S(32), S(33)]
    sWn = [S(34), S(35)]
    sO = [S(36), S(37)]
    sWoN = [S(38), S(39)]
    sOb = [S(40), S(41)]
    sCnt = S(42)
    g.salu("s_mul_i32", sT2, sW, 28)
    for sb in range(2):
        g.salu("s_lshl_b32", sT0, sMt, 1)
        if sb:
            g.salu("s_add_u32", sT0, sT0, sb)
        g.salu("s_mul_i32", sT1, sT0, 112)
        g.salu("s_add_u32", sT1, sT1, sT2)
        g.salu("s_lshl_b32", sH[sb], sT1, 10)
    for nb in range(2):
        g.salu("s_lshl_b32", sT0, sNt, 1)
        if nb:
            g.salu("s_add_u32", sT0, sT0, nb)
        g.salu("s_mul_i32", sT0, sT0, 144)
        g.salu("s_add_u32", sT1, sT0, sT2)
        g.salu("s_lshl_b32", sT1, sT1, 10)
        g.salu("s_add_u32", sWn[nb], sT1, WS_WF)
    g.lg = []
    g.raw("s_waitcnt lgkmcnt(0)")
    make_srd(g, srdWs, sWs, WS_SIZE)
    win = {}

    def ld(dst, sreg, off, mods=""):
        w0 = win.get(sreg.i, 0)
        if not (w0 <= off < w0 + 4096):
            g.salu("s_add_u32", sreg, sreg, off - w0)
            win[sreg.i] = w0 = off
        g.bload("buffer_load_dwordx4", dst, vL16, srdWs, sreg, off - w0, mods=mods)

    acc = [[va.get(16, 4) for sb in range(2)] for nb in range(2)]
    vRc, vChk, vXo = va.get(), va.get(), va.get()
    XR = va.get(8, 4)
    slots = [va.get(4, 4) for _ in range(NS)]
    reqs = []
    for k in range(28):
        reqs += [(sWn[0], k * 1024), (sH[0], k * 1024), (sH[1], k * 1024), (sWn[1], k * 1024)]
    for h in range(8):
        reqs += [(sWoN[0], h * 1024), (sO[0], h * 1024, OM), (sO[1], h * 1024, OM), (sWoN[1], h * 1024)]
    issued = [0]

    def slot(q):
        return slots[q % NS]

    def issue_upto(n):
        n = min(n, len(reqs))
        while issued[0] < n:
            q = issued[0]
            ld(slot(q), *reqs[q])
            issued[0] += 1

    stamp(g, 1)
    issue_upto(NS)
    stamp(g, 2)
    make_srd(g, srdX, sX, 2048 * 1024)
    make_srd(g, srdO, sOutp, 2048 * 1024)
    for sb in range(2):
        g.salu("s_lshl_b32", sT0, sMt, 1)
        if sb:
            g.salu("s_add_u32", sT0, sT0, sb)
        g.salu("s_lshl_b32", sT1, sT0, 5)
        g.salu("s_lshl_b32", sT2, sW, 3)
        g.salu("s_add_u32", sT1, sT1, sT2)
        g.salu("s_lshl_b32", sT1, sT1, 10)
        g.salu("s_add_u32", sO[sb], sT1, WS_OF)
        g.salu("s_mov_b32", sOb[sb], sO[sb])
    for nb in range(2):
        g.salu("s_lshl_b32", sT0, sNt, 1)
        if nb:
            g.salu("s_add_u32", sT0, sT0, nb)
        g.salu("s_mul_i32", sT0, sT0, 144)
        g.salu("s_lshl_b32", sT2, sW, 3)
        g.salu("s_add_u32", sT1, sT0, sT2)
        g.salu("s_add_u32", sT1, sT1, 112)
        g.salu("s_lshl_b32", sT1, sT1, 10)
        g.salu("s_add_u32", sWoN[nb], sT1, WS_WF)
    t0, t1 = vRc, vChk
    g.salu("s_and_b32", sT0, sW, 1)
    g.salu("s_lshl_b32", sT0, sT0, 5)
    g.salu("s_lshl_b32", sT1, sMt, 6)
    g.salu("s_add_u32", sT0, sT0, sT1)
    g.valu("v_and_b32", t0, 31, vLane)
    g.valu("v_add_u32", t0, sT0, t0)
    g.valu("v_lshlrev_b32", vXo, 10, t0)
    g.salu("s_lshr_b32", sT0, sW, 1)
    g.salu("s_lshl_b32", sT0, sT0, 6)
    g.salu("s_lshl_b32", sT1, sNt, 7)
    g.salu("s_add_u32", sT0, sT0, sT1)
    g.valu("v_add_u32", vXo, sT0, vXo)
    g.valu("v_lshrrev_b32", t1, 5, vLane)
    g.valu("v_lshl_add_u32", vXo, t1, 3, vXo)

    slow = []
    for k in range(36):
        b = 4 * k
        Wn0, H0, H1, Wn1 = (slot(b + i) for i in range(4))
        if k >= 28:
            sentinel_check(g, vChk, [H0[i] for i in range(4)] + [H1[i] for i in range(4)])
            g.salu("s_cmp_eq_u64", None, VCC, 0)
            g.raw(f"s_cbranch_scc0 hh_k2_slow{k}")
            g.label(f"hh_k2_back{k}")
            h = k - 28
            gs = Gen()
            gs.label(f"hh_k2_slow{k}")
            gs.salu("s_mov_b32", sCnt, 0)
            gs.salu("s_add_u32", sT0, sOb[0], h * 1024)
            gs.salu("s_add_u32", sT1, sOb[1], h * 1024)
            gs.label(f"hh_k2_spin{k}")
            gs.raw("s_sleep 4")
            gs.bload("buffer_load_dwordx4", H0, vL16, srdWs, sT0, mods="sc1")
            gs.bload("buffer_load_dwordx4", H1, vL16, srdWs, sT1, mods="sc1")
            gs.salu("s_add_u32", sCnt, sCnt, 1)
            gs.raw("s_waitcnt vmcnt(0)")
            gs.vm = []
            sentinel_check(gs, vChk, [H0[i] for i in range(4)] + [H1[i] for i in range(4)])
            gs.salu("s_cmp_ge_u32", None, sCnt, LIMIT)
            gs.raw(f"s_cbranch_scc1 hh_k2_back{k}")
            gs.salu("s_cmp_eq_u64", None, VCC, 0)
            gs.raw(f"s_cbranch_scc0 hh_k2_spin{k}")
            gs.raw(f"s_branch hh_k2_back{k}")
            slow.append(gs.text())
        g.mfma(acc[0][0], Wn0, H0, acc[0][0] if k else 0)
        g.mfma(acc[0][1], Wn0, H1, acc[0][1] if k else 0)
        issue_upto(b + 1 + NS)
        g.mfma(acc[1][0], Wn1, H0, acc[1][0] if k else 0)
        issue_upto(b + 2 + NS)
        g.mfma(acc[1][1], Wn1, H1, acc[1][1] if k else 0)
        issue_upto(b + 4 + NS)
        if k == 29:
            for q in range(4):
                g.bload("buffer_load_dwordx2", XR[2 * q:2 * q + 2], vXo, srdX, 0, q * 16)
        if k in (0, 6, 13, 20, 27, 31, 35):
            stamp(g, 3 + (0, 6, 13, 20, 27, 31, 35).index(k))
    g.waitcnt(vm=0)
    for w in range(1, 4):
        g.salu("s_cmp_eq_u32", None, sW, w)
        g.raw(f"s_cbranch_scc1 hh_k2_ep{w}")
    out.append(g.text())
    ep_state = g
    assert NS >= 20
    for w in range(4):
        g = ep_state.fork()
        g.label(f"hh_k2_ep{w}")
        quads = [(0, 0), (0, 1), (1, 0), (1, 1)]
        for Q in range(4):
            if Q == w:
                continue
            k_ = (w - Q - 1) % 4
            nb, sb = quads[Q]
            for q in range(4):
                g.ds_write("ds_write_b128", vL16, acc[nb][sb][4 * q:4 * q + 4], (Q * 3 + k_) * 4096 + q * 1024)
        own = acc[quads[w][0]][quads[w][1]]
        g.nop(8)
        tx = V(slots[12].i, 16)
        for r in range(16):
            src = XR[r >> 1]
            if r & 1:
                g.valu("v_and_b32", tx[r], 0xFFFF0000, src)
            else:
                g.valu("v_lshlrev_b32", tx[r], 16, src)
        for r in range(16):
            g.valu("v_add_f32", own[r], own[r], tx[r])
        g.waitcnt(lg=0)
        g.barrier()
        RD = [V(slots[4 * k_].i, 16) for k_ in range(3)]
        for k_ in range(3):
            for q in range(4):
                g.ds_read("ds_read_b128", RD[k_][4 * q:4 * q + 4], vL16, (w * 3 + k_) * 4096 + q * 1024)
        for r in range(16):
            g.valu("v_add_f32", own[r], own[r], RD[0][r])
        for r in range(16):
            g.valu("v_add_f32", RD[1][r], RD[1][r], RD[2][r])
        for r in range(16):
            g.valu("v_add_f32", own[r], own[r], RD[1][r])
        po = V(slots[16].i, 8)
        for q in range(8):
            g.valu("v_cvt_pk_bf16_f32", po[q], own[2 * q], own[2 * q + 1])
        for i_ in range(2):
            g.valu("v_permlane32_swap_b32", [po[i_], po[2 + i_]])
            g.valu("v_permlane32_swap_b32", [po[4 + i_], po[6 + i_]])
        g.valu("v_lshrrev_b32", vRc, 5, vLane)
        g.valu("v_lshl_add_u32", vXo, vRc, 3, vXo)
        g.bstore("buffer_store_dwordx4", po[0:4], vXo, srdO, 0)
        g.bstore("buffer_store_dwordx4", po[4:8], vXo, srdO, 0, 32)
        stamp(g, 10)
        if STAMPS == "k2":
            g.waitcnt(vm=0)
        stamp(g, 11)
        stamp(g, 13, True)
        g.salu("s_lshl_b32", sT2, sWG, 3)
        g.salu("s_add_u32", sT2, sT2, sW)
        stamp_flush(g, 14, srdWs, sT2, sT0, vRc, vChk)
        g.raw("s_endpgm")
        out.append(g.text())
    out += slow

    g = base_state.fork()
    g.label("hh_k2_aux")
    g.raw("s_setprio 3")
    sOff, sHd, sKVh, sCnt = S(32), S(33), S(34), S(35)
    sPQ = [S(36), S(37)]
    sOo = [S(38), S(39)]
    vA, vPr, vP, vRc = V(4), V(5), V(6), V(7)
    P = [V(8 + 4 * m, 4) for m in range(8)]
    PQ = [[V(40 + 8 * sb + 4 * m, 4) for m in range(2)] for sb in range(2)]
    KV = [V(56, 4), V(60, 4)]
    D = [V(64, 16), V(80, 16)]
    O = [V(96, 4), V(100, 4)]
    pk, pc = V(104, 4), V(108, 4)
    g.salu("s_lshl_b32", sHd, sNt, 2)
    g.salu("s_add_u32", sHd, sHd, sW)
    g.salu("s_sub_u32", sHd, sHd, 4)
    for sb in range(2):
        g.salu("s_lshl_b32", sT0, sMt, 1)
        if sb:
            g.salu("s_add_u32", sT0, sT0, sb)
        g.salu("s_lshl_b32", sT0, sT0, 5)
        g.salu("s_add_u32", sT0, sT0, sHd)
        g.salu("s_lshl_b32", sT1, sT0, 11)
        g.salu("s_add_u32", sPQ[sb], sT1, WS_PQ)
        g.salu("s_lshl_b32", sT1, sT0, 10)
        g.salu("s_add_u32", sOo[sb], sT1, WS_OF)
    g.salu("s_lshl_b32", sKVh, sHd, 11)
    g.salu("s_add_u32", sKVh, sKVh, WS_KV)
    g.valu("v_lshlrev_b32", vPr, 8, vLane)
    g.valu("v_and_b32", vA, 15, vLane)
    g.valu("v_lshlrev_b32", vA, 4, vA)
    g.valu("v_bfe_u32", vT, vLane, 4, 1)
    g.valu("v_lshl_add_u32", vP, vT, 10, vA)
    g.valu("v_lshrrev_b32", vT, 5, vLane)
    g.valu("v_lshl_add_u32", vP, vT, 17, vP)
    g.salu("s_lshr_b32", sT0, sWG, 2)
    g.salu("s_lshl_b32", sOff, sT0, 11)
    g.salu("s_and_b32", sT1, sWG, 3)
    g.salu("s_lshl_b32", sT1, sT1, 8)
    g.salu("s_add_u32", sOff, sOff, sT1)
    g.salu("s_add_u32", sOff, sOff, WS_PART)
    g.lg = []
    g.raw("s_waitcnt lgkmcnt(0)")
    make_srd(g, srdWs, sWs, WS_SIZE)
    for sb in range(2):
        for m in range(2):
            g.bload("buffer_load_dwordx4", PQ[sb][m], vL16, srdWs, sPQ[sb], m * 1024)
    g.salu("s_cmp_lg_u32", None, sW, 4)
    g.raw("s_cbranch_scc1 hh_k2_await")
    for m in range(8):
        g.bload("buffer_load_dwordx4", P[m], vP, srdWs, sOff)
        if m < 7:
            g.salu("s_add_u32", sOff, sOff, 2 * 32 * 4096)
    stamp(g, 1)
    for st in (1, 2, 4):
        for m in range(0, 8, 2 * st):
            for r in range(4):
                g.valu("v_add_f32", P[m][r], P[m][r], P[m + st][r])
    for r in range(4):
        g.valu("v_mov_b32", pc[r], P[0][r])
    for r in range(4):
        g.valu("v_permlane32_swap_b32", [P[0][r], pc[r]])
    for r in range(4):
        g.valu("v_add_f32", P[0][r], P[0][r], pc[r])
    g.valu("v_cvt_pk_bf16_f32", pk[0], P[0][0], P[0][1])
    g.valu("v_cvt_pk_bf16_f32", pk[1], P[0][2], P[0][3])
    g.valu("v_mov_b32", pk[2], pk[0])
    g.valu("v_mov_b32", pk[3], pk[1])
    g.valu("v_mov_b32", pc[0], pk[0])
    g.valu("v_mov_b32", pc[1], pk[1])
    g.valu("v_permlane16_swap_b32", [pc[0], pk[2]])
    g.valu("v_permlane16_swap_b32", [pc[1], pk[3]])
    g.salu("s_lshl_b32", sOff, sWG, 8)
    g.salu("s_add_u32", sOff, sOff, WS_KV)
    g.salu("s_mov_b64", EXEC, 0xFFFF)
    g.bstore("buffer_store_dwordx4", pk, vA, srdWs, sOff, mods="sc1")
    g.salu("s_mov_b64", EXEC, -1)
    stamp(g, 2)
    g.raw(f"s_sleep {os.environ.get('ISL0', '32')}")
    g.label("hh_k2_ojob")
    g.nop(4)
    stamp(g, 3)
    g.salu("s_mov_b32", sCnt, 0)
    for m in range(2):
        g.bload("buffer_load_dwordx4", KV[m], vL16, srdWs, sKVh, m * 1024, mods=os.environ.get("KVM", ""))
    g.label("hh_k2_kvchk")
    g.salu("s_add_u32", sCnt, sCnt, 1)
    g.raw("s_waitcnt vmcnt(0)")
    g.vm = []
    sentinel_check(g, vP, [KV[0][i] for i in range(4)] + [KV[1][i] for i in range(4)])
    g.salu("s_cmp_ge_u32", None, sCnt, LIMIT)
    g.raw("s_cbranch_scc1 hh_k2_kvok")
    g.salu("s_cmp_eq_u64", None, VCC, 0)
    g.raw("s_cbranch_scc1 hh_k2_kvok")
    g.raw(f"s_sleep {os.environ.get('PSL', '8')}")
    for m in range(2):
        g.bload("buffer_load_dwordx4", KV[m], vL16, srdWs, sKVh, m * 1024, mods="sc1")
    g.raw("s_branch hh_k2_kvchk")
    g.vm = []
    g.label("hh_k2_kvok")
    stamp(g, 4)
    for sb in range(2):
        g.mfma(D[sb], KV[0], PQ[sb][0], 0)
    for sb in range(2):
        g.mfma(D[sb], KV[1], PQ[sb][1], D[sb])
    for sb in range(2):
        g.valu("v_add_f32", vRc, 1e-6, D[sb][8])
        g.valu("v_rcp_f32", vRc, vRc)
        for r in range(8):
            g.valu("v_mul_f32", D[sb][r], vRc, D[sb][r])
        for q in range(4):
            g.valu("v_cvt_pk_bf16_f32", O[sb][q], D[sb][2 * q], D[sb][2 * q + 1])
        g.bstore("buffer_store_dwordx4", O[sb], vL16, srdWs, sOo[sb], mods="sc1")
    if STAMPS == "k2":
        stamp(g, 5)
        g.waitcnt(vm=0)
        for i_ in range(6, 12):
            stamp(g, i_)
        stamp(g, 13, True)
        g.raw("s_waitcnt lgkmcnt(0)")
        g.salu("s_add_u32", S(72 + 14), S(72), sCnt)
        g.salu("s_lshl_b32", sT2, sWG, 3)
        g.salu("s_add_u32", sT2, sT2, sW)
        stamp_flush(g, 14, srdWs, sT2, sT0, V(6), V(7))
    g.raw("s_endpgm")
    g.label("hh_k2_await")
    g.raw(f"s_sleep {os.environ.get('ISL', '96')}")
    g.raw("s_branch hh_k2_ojob")
    out.append(g.text())
    return name, "".join(out) + "hh_k2_exit:\n    s_endpgm\n", max(va.hi, 112)


def descriptor(name, nv):
    nv4 = (nv + 3) // 4 * 4
    return f""".amdhsa_kernel {name}
  .amdhsa_next_free_vgpr {nv4}
  .amdhsa_next_free_sgpr 102
  .amdhsa_accum_offset {nv4}
  .amdhsa_group_segment_fixed_size 0
  .amdhsa_kernarg_size 80
  .amdhsa_user_sgpr_count 2
  .amdhsa_user_sgpr_kernarg_segment_ptr 1
  .amdhsa_system_sgpr_workgroup_id_x 1
.end_amdhsa_kernel
"""


def main(path):
    ks = [gen_k1(), gen_k2()]
    launches = [
        f"; @launch kernel=hh_k1_kernel grid=(256,1,1) block=(512,1,1) lds={K1_LDS}",
        f"; @launch kernel=hh_k2_kernel grid=(256,1,1) block=(512,1,1) lds={K2_LDS}",
    ]
    if KR:
        ks.append(gen_kr())
        launches.insert(1, "; @launch kernel=hh_kr_kernel grid=(32,1,1) block=(256,1,1) lds=0")
    s = "; hedgehog linear attention + SiLU FFN parallel block (generated by my own generator script)\n"
    s += "\n".join(launches) + "\n"
    s += '.amdgcn_target "amdgcn-amd-amdhsa--gfx950"\n.text\n'
    for name, txt, nv in ks:
        s += f".globl {name}\n.p2align 8\n.type {name},@function\n" + txt
    s += '.section .rodata,"a"\n'
    for name, txt, nv in ks:
        s += ".p2align 6\n" + descriptor(name, nv)
        print(name, "vgprs", nv, "lines", txt.count("\n"), file=sys.stderr)
    open(path, "w").write(s)


if __name__ == "__main__":
    if len(sys.argv) > 2 and sys.argv[2].startswith("stamps"):
        STAMPS = sys.argv[2][6:] or "k1"
        ABL.update(sys.argv[3:])
    main(sys.argv[1] if len(sys.argv) > 1 else
         "parallel_sum__linear_kernel_hedgehog__dense_activation_silu__prompt.s")
```

```python
import sys
from asmlib import *

WS_HF = 0x0
WS_PQ = 0x700000
WS_WF = 0xB00000
WS_PART = 0xE00000
WS_KV = 0x1000000
WS_OF = 0x1100000
WS_SIZE = 0x1300000

LOG2E = 1.4426950408889634
ONES_BF = 0x3F803F80

A_BUF = 16384
B_BASE = 49152
B_BUF = 28672
RS = 135168
CS = RS + 4096
K1_LDS = RS + 4096 + 7 * 1024
PHK_IMG = 0
V_IMG = 32768


def make_srd(g, srd, base, nbytes, off=None):
    if off is None:
        g.salu("s_mov_b32", srd[0], base[0])
        g.salu("s_mov_b32", srd[1], base[1])
    else:
        g.salu("s_add_u32", srd[0], base[0], off)
        g.salu("s_addc_u32", srd[1], base[1], 0)
    g.salu("s_mov_b32", srd[2], nbytes)
    g.salu("s_mov_b32", srd[3], 0x20000)


STAMPS = False
import os
KR = os.environ.get("KR", "") == "1"
CPF = os.environ.get("CPF", "1") == "1"
import os
STM = os.environ.get("STM", "sc0 sc1")
ABL = set()
WS_DBG = 0x1080000


CURK = [None]


def stamp(g, idx, real=False):
    if STAMPS == CURK[0]:
        g.raw(f"{'s_memrealtime' if real else 's_memtime'} s[{72 + 2 * idx}:{73 + 2 * idx}]")


def stamp_flush(g, n, srdWs, sGw, sT, vtmp, vtmp2):
    if STAMPS != CURK[0]:
        return
    g.raw("s_waitcnt lgkmcnt(0)")
    g.salu("s_lshl_b32", sT, sGw, 6)
    g.salu("s_add_u32", sT, sT, WS_DBG)
    g.valu("v_mov_b32", vtmp2, 0)
    for i in range(n):
        g.valu("v_mov_b32", vtmp, S(72 + 2 * i))
        g.bstore("buffer_store_dword", vtmp, vtmp2, srdWs, sT, 4 * i)


def bf16_round(g, dst, src):
    g.valu("v_cvt_pk_bf16_f32", dst, src, src)
    g.valu("v_lshlrev_b32", dst, 16, dst)


def gen_k1():
    name = "hh_k1_kernel"
    CURK[0] = "k1"
    g = Gen()
    out = []
    sKarg, sWG = S(0, 2), S(2)
    sX, sWqkv, sWphi, sWo, sW1, sW2, sWs = S(4, 2), S(6, 2), S(8, 2), S(10, 2), S(12, 2), S(14, 2), S(16, 2)
    srdX, srdW, srdWs, srdAux, srdAux2, srdPhi = S(20, 4), S(24, 4), S(28, 4), S(32, 4), S(36, 4), S(40, 4)
    sW, sI, sJ, sMt, sNt, sType, sXcd, sIdx = (S(44 + k) for k in range(8))
    sT0, sT1, sT2, sT3 = S(52), S(53), S(54), S(55)
    sKA, sKB, sAm0, sBm0, sOnes, sGw = S(56), S(57), S(58), S(59), S(60), S(61)
    sMask = S(62, 2)
    sF1, sF2, sF1d, sF2d = S(64), S(65), S(66), S(67)
    sOut = S(68)
    sPhiOff = S(69)

    g.label(name)
    g.salu("s_cmp_ge_u32", None, sWG, 256)
    g.raw("s_cbranch_scc1 hh_k1_exit")
    stamp(g, 0)
    stamp(g, 12, True)
    g.sload(S(4, 4), sKarg, 0)
    g.sload(S(8, 4), sKarg, 16)
    g.sload(S(12, 4), sKarg, 40)
    g.sload(S(16, 2), sKarg, 72)
    vTid = V(0)
    vLane, vT = V(1), V(2)
    g.valu("v_lshrrev_b32", vT, 6, vTid)
    g.valu("v_and_b32", vLane, 63, vTid)
    g.valu("v_readfirstlane_b32", sW, vT)
    g.salu("s_and_b32", sXcd, sWG, 7)
    g.salu("s_lshr_b32", sIdx, sWG, 3)
    if CPF:
        sPc = S(70, 2)
        g.raw(f"s_getpc_b64 {sPc}")
        g.label("hh_k1_pc")
        g.raw(f"s_sub_u32 {sPc[0]}, {sPc[0]}, hh_k1_pc-hh_k1_kernel")
        g.raw(f"s_subb_u32 {sPc[1]}, {sPc[1]}, 0")
        g.salu("s_and_b32", sT0, sIdx, 7)
        g.salu("s_lshl_b32", sT0, sT0, 13)
        g.valu("v_lshrrev_b32", V(3), 3, vTid)
        g.valu("v_lshl_add_u32", V(3), V(3), 7, sT0)
        g.raw("v_min_u32 v3, hh_code_end-hh_k1_kernel-4, v3")
        g.raw(f"global_load_dword v4, v3, {sPc}")
        g.vm.append({"regs": {("v", 4)}, "tag": "cpf"})
    g.salu("s_and_b32", sT0, sXcd, 1)
    g.salu("s_lshl_b32", sT0, sT0, 3)
    g.salu("s_and_b32", sT1, sIdx, 7)
    g.salu("s_or_b32", sMt, sT0, sT1)
    g.salu("s_lshr_b32", sType, sIdx, 4)
    g.salu("s_lshr_b32", sT0, sXcd, 1)
    g.salu("s_lshl_b32", sT0, sT0, 1)
    g.salu("s_bfe_u32", sT1, sIdx, (1 << 16) | 3)
    g.salu("s_or_b32", sNt, sT0, sT1)
    g.salu("s_and_b32", sI, sW, 3)
    g.salu("s_lshr_b32", sJ, sW, 2)
    g.salu("s_lshl_b32", sT0, sWG, 3)
    g.salu("s_add_u32", sGw, sT0, sW)
    g.salu("s_mov_b32", sOnes, ONES_BF)
    g.salu("s_lshl_b32", sT0, sType, 1)
    g.salu("s_add_u32", sT0, sT0, sJ)
    g.salu("s_cmp_eq_u32", None, sT0, 1)
    g.raw("s_cbranch_scc1 hh_k1_r1")
    g.salu("s_cmp_eq_u32", None, sT0, 2)
    g.raw("s_cbranch_scc1 hh_k1_r2")
    g.salu("s_cmp_eq_u32", None, sT0, 3)
    g.raw("s_cbranch_scc1 hh_k1_r3")
    out.append(g.text())
    base_state = g
    maxv = 0

    for role in range(4):
        typ, j = role >> 1, role & 1
        g = base_state.fork()
        g.label(f"hh_k1_r{role}")
        va = VAlloc(5, 256)
        U = 4 if (typ == 1 and j == 0) else 3
        ldw = 3584 if typ else 3072
        nB = 4 if j == 1 else 3
        vA = [va.get() for _ in range(2)]
        vB = [va.get() for _ in range(nB)]
        t0, t1, t2, t3 = va.get(), va.get(), va.get(), va.get()
        g.valu("v_lshrrev_b32", t0, 3, vLane)
        g.valu("v_lshrrev_b32", t1, 4, vLane)
        g.valu("v_and_b32", t2, 7, vLane)
        g.salu("s_lshl_b32", sT0, sW, 4)
        for e in range(2):
            g.valu("v_add_u32", t3, sT0, t0)
            if e:
                g.valu("v_add_u32", t3, 8, t3)
            g.valu("v_lshlrev_b32", vA[e], 10, t3)
            g.valu("v_xor_b32", t3, t2, t1)
            if e:
                g.valu("v_xor_b32", t3, 4, t3)
            g.valu("v_lshl_add_u32", vA[e], t3, 4, vA[e])
        g.salu("s_add_u32", sT1, sW, 4)
        g.salu("s_and_b32", sT1, sT1, 7)
        g.salu("s_lshl_b32", sBm0, sT1, 10)
        g.salu("s_add_u32", sBm0, sBm0, B_BASE)
        g.salu("s_lshl_b32", sAm0, sW, 11)
        g.salu("s_lshl_b32", sT1, sT1, 6)
        for e in range(nB):
            g.valu("v_add_u32", t0, sT1, vLane)
            if e:
                g.valu("v_add_u32", t0, 512 * e, t0)
            g.valu("v_mul_u32_u24", t1, 2341, t0)
            g.valu("v_lshrrev_b32", t1, 16, t1)
            g.valu("v_mul_u32_u24", t2, 28, t1)
            g.valu("v_sub_u32", t2, t0, t2)
            g.valu("v_mul_u32_u24", vB[e], ldw, t1)
            if typ == 1:
                g.valu("v_lshl_add_u32", vB[e], t2, 4, vB[e])
            else:
                g.valu("v_lshrrev_b32", t3, 3, t2)
                g.valu("v_lshl_add_u32", vB[e], t3, 10, vB[e])
                g.valu("v_and_b32", t3, 7, t2)
                g.valu("v_lshl_add_u32", vB[e], t3, 4, vB[e])
                g.valu("v_cmp_le_u32", VCC, 24, t2)
                g.valu("v_mov_b32", t3, 0x80000000)
                g.valu("v_cndmask_b32", vB[e], vB[e], t3, VCC)
        g.salu("s_mov_b32", sKA, 0)
        g.salu("s_mov_b32", sKB, 0)
        g.lg = []
        g.raw("s_waitcnt lgkmcnt(0)")
        g.salu("s_lshl_b32", sT0, sMt, 17)
        make_srd(g, srdX, sX, 131072, sT0)
        if typ == 0:
            g.salu("s_lshl_b32", sT0, sNt, 7)
            make_srd(g, srdW, sWqkv, 512 * 3072 - 7 * 128, sT0)
        else:
            g.salu("s_mul_i32", sT0, sNt, 448)
            make_srd(g, srdW, sW1, 512 * 3584 - 7 * 448, sT0)
        make_srd(g, srdWs, sWs, WS_SIZE)

        def dma_items(stage):
            b = stage % 3
            items = []
            for e in range(2):
                def f(e=e):
                    g.salu("s_mov_b32", sKA, stage * 128)
                    g.salu("s_add_u32", M0, sAm0, b * A_BUF + e * 1024)
                    g.dma(vA[e], srdX, sKA, tag=("dma", stage))
                items.append(f)
            for e in range(nB):
                def f(e=e):
                    g.salu("s_mov_b32", sKB, stage * 64 * ldw)
                    g.salu("s_add_u32", M0, sBm0, b * B_BUF + e * 8192)
                    g.dma(vB[e], srdW, sKB, tag=("dma", stage))
                items.append(f)
            return items

        def issue_dma(stage):
            for f in dma_items(stage):
                f()

        stamp(g, 1)
        issue_dma(0)
        g.barrier()
        stamp(g, 2)

        vXa = [va.get() for _ in range(4)]
        vWa = [va.get() for _ in range(4)]
        vWb = [va.get() for _ in range(4)]
        g.valu("v_and_b32", t0, 31, vLane)
        g.salu("s_lshl_b32", sT0, sI, 5)
        g.valu("v_add_u32", t0, sT0, t0)
        g.valu("v_lshlrev_b32", t0, 7, t0)
        g.valu("v_lshrrev_b32", t1, 5, vLane)
        g.valu("v_bfe_u32", t2, vLane, 1, 3)
        g.valu("v_xor_b32", t1, t1, t2)
        g.valu("v_lshl_add_u32", t0, t1, 4, t0)
        g.valu("v_lshrrev_b32", t1, 5, vLane)
        g.valu("v_bfe_u32", t2, vLane, 2, 2)
        g.valu("v_lshl_add_u32", t1, t1, 3, t2)
        g.valu("v_mul_u32_u24", t1, 448, t1)
        g.valu("v_bfe_u32", t2, vLane, 4, 1)
        g.valu("v_lshl_add_u32", t1, t2, 5, t1)
        g.valu("v_and_b32", t2, 3, vLane)
        g.valu("v_lshl_add_u32", t1, t2, 3, t1)
        g.valu("v_add_u32", t1, B_BASE + j * 64, t1)
        for t in range(4):
            g.salu("s_add_u32", sT0, sI, t + 2 * j)
            g.salu("s_and_b32", sT0, sT0, 3)
            g.salu("s_lshl_b32", sT1, sT0, 5)
            g.valu("v_xor_b32", vXa[t], sT1, t0)
            g.salu("s_mul_i32", sT1, sT0, 16 * 448)
            g.valu("v_add_u32", vWa[t], sT1, t1)
            g.valu("v_add_u32", vWb[t], 2 * B_BUF, vWa[t])

        issue_dma(1)
        side = []
        side += dma_items(2)
        sched = {"n": 3 * U, "k": len(side), "i": 0}
        vRl = [va.get(), va.get()]
        g.valu("v_lshrrev_b32", t1, 5, vLane)
        g.valu("v_and_b32", t2, 31, vLane)
        g.valu("v_lshlrev_b32", t2, 1, t2)
        g.valu("v_lshl_add_u32", vRl[0], t1, 12, t2)
        g.valu("v_add_u32", vRl[1], 8192, vRl[0])
        vL16 = va.get()
        g.valu("v_lshlrev_b32", vL16, 4, vLane)
        g.salu("s_lshr_b32", sT0, sGw, 4)
        g.salu("s_and_b32", sT1, sGw, 15)
        g.salu("s_mul_i32", sF1d, sT1, 144)
        g.salu("s_add_u32", sF1d, sF1d, sT0)
        g.salu("s_lshl_b32", sF1d, sF1d, 10)
        g.salu("s_add_u32", sF1d, sF1d, WS_WF)
        g.salu("s_add_u32", sF2d, sF1d, 128 * 1024)
        g.salu("s_cmp_lt_u32", None, sGw, 256)
        g.salu("s_cselect_b32", sF2d, sF2d, 0x7FFF0000)
        g.salu("s_cmp_ge_u32", None, sT0, 112)
        g.salu("s_cselect_b32", srdAux[0], sWo[0], sW2[0])
        g.salu("s_cselect_b32", srdAux[1], sWo[1], sW2[1])
        g.salu("s_mov_b32", sT3, 1792 * 1024)
        g.salu("s_cselect_b32", srdAux[2], 512 * 1024, sT3)
        g.salu("s_mov_b32", srdAux[3], 0x20000)
        g.salu("s_cselect_b32", sT2, 112, 0)
        g.salu("s_sub_u32", sT2, sT0, sT2)
        g.salu("s_lshl_b32", sF1, sT2, 14)
        g.salu("s_lshl_b32", sT1, sT1, 6)
        g.salu("s_add_u32", sF1, sF1, sT1)
        g.salu("s_add_u32", sT2, sT0, 16)
        g.salu("s_lshl_b32", sF2, sT2, 14)
        g.salu("s_add_u32", sF2, sF2, sT1)
        make_srd(g, srdAux2, sWo, 512 * 1024)
        vR1 = [va.get() for _ in range(8)]
        vR2 = [va.get() for _ in range(8)]
        late = []
        for jj in range(8):
            late.append(lambda jj=jj: g.bload("buffer_load_ushort", vR1[jj], vRl[jj >> 2], srdAux, sF1, (jj & 3) * 1024))
        for jj in range(8):
            late.append(lambda jj=jj: g.bload("buffer_load_ushort", vR2[jj], vRl[jj >> 2], srdAux2, sF2, (jj & 3) * 1024))
        if typ == 0:
            make_srd(g, srdPhi, sWphi, 32 * 512)
            vPh = [va.get() for _ in range(16)]
            vPa, vSign = va.get(), va.get()
            g.valu("v_bfe_u32", t1, vLane, 3, 2)
            g.valu("v_and_b32", t2, 3, vLane)
            g.valu("v_lshl_add_u32", t1, t1, 2, t2)
            g.valu("v_lshlrev_b32", t1, 1, t1)
            g.valu("v_lshrrev_b32", t2, 5, vLane)
            g.valu("v_lshl_add_u32", vPa, t2, 7, t1)
            g.valu("v_bfe_u32", t1, vLane, 2, 1)
            g.salu("s_mov_b32", sT0, 0x80008000)
            g.valu("v_mul_lo_u32", vSign, t1, sT0)
            g.salu("s_lshl_b32", sT0, sNt, 2)
            g.salu("s_add_u32", sT0, sT0, 2 * j)
            g.salu("s_lshl_b32", sPhiOff, sT0, 9)
            for hl in range(2):
                for jj in range(8):
                    late.append(lambda hl=hl, jj=jj: g.bload("buffer_load_ushort", vPh[hl * 8 + jj], vPa, srdPhi, sPhiOff,
                                                             hl * 512 + (8 * (jj >> 2) + (jj & 3)) * 32))

        acc = [va.get(16, 4) for _ in range(U)]
        X = [va.get(4, 4) for _ in range(2)]
        Wf = [[va.get(4, 4) for _ in range(U)] for _ in range(2)]
        vSS = va.get(2, 2)
        vSum, vSq = vSS[0], vSS[1]
        vSum2, vSq2 = va.get(), va.get()
        vCsA = [va.get(4, 4) for _ in range(U)]
        vSel = va.get(4, 4)
        vUn = [va.get() for _ in range(4)]
        g.valu("v_lshrrev_b32", t1, 4, vLane)
        g.valu("v_xor_b32", t1, t1, vLane)
        g.valu("v_and_b32", t1, 1, t1)
        g.valu("v_cmp_eq_u32", VCC, 0, t1)
        g.valu("v_mov_b32", t1, 0)
        g.valu("v_mov_b32", t2, ONES_BF)
        for q in range(4):
            g.valu("v_cndmask_b32", vSel[q], t1, t2, VCC)
        sHiMask = sOnes
        g.salu("s_mov_b32", sHiMask, 0xFFFF0000)
        for z in [vSum, vSq, vSum2, vSq2]:
            g.valu("v_mov_b32", z, 0)

        def rd_x(T):
            s, t = divmod(T, 4)
            g.ds_read("ds_read_b128", X[T & 1], vXa[t], (s % 3) * A_BUF)

        def rd_w(T, u):
            if "nords" in ABL and T > 0:
                return
            s, t = divmod(T, 4)
            b = s % 3
            base, off = (vWa[t], b * B_BUF) if b < 2 else (vWb[t], 0)
            for half in range(2):
                g.ds_read("ds_read_b64_tr_b16", Wf[T & 1][u][2 * half:2 * half + 2], base,
                          off + half * 4 * 448 + u * 128)

        def sent1():
            for q in range(4):
                g.valu("v_mov_b32", va_tmp[0][q], -1)
            g.salu("s_lshl_b32", sT0, sGw, 10)
            g.salu("s_add_u32", sT0, sT0, WS_OF)
            g.bstore("buffer_store_dwordx4", va_tmp[0], vL16, srdWs, sT0, mods=STM)

        def sent2():
            g.salu("s_lshl_b32", sT0, sGw, 10)
            g.salu("s_add_u32", sT0, sT0, WS_KV)
            g.salu("s_cmp_lt_u32", None, sGw, 64)
            g.salu("s_cselect_b32", sT0, sT0, 0x7FFF0000)
            g.bstore("buffer_store_dwordx4", va_tmp[0], vL16, srdWs, sT0, mods=STM)

        late.insert(0, sent1)
        late.insert(1, sent2)

        def relayout_store():
            for n_, (vr, dsto) in enumerate(((vR1, sF1d), (vR2, sF2d))):
                pk = va_tmp[n_]
                for q in range(4):
                    g.valu("v_lshl_or_b32", pk[q], vr[2 * q + 1], 16, vr[2 * q])
                g.bstore("buffer_store_dwordx4", pk, vL16, srdWs, dsto, mods=STM)

        va_tmp = [va.get(4, 4), va.get(4, 4)]

        stamp(g, 3)
        g.wait_vm_tag(("dma", 0))
        g.barrier()
        stamp(g, 4)
        rd_x(0)
        for u in range(U):
            rd_w(0, u)

        for T in range(32):
            s, t = divmod(T, 4)
            cur = T & 1
            last = (T == 31)
            fill = [[] for _ in range(U)]
            if "nodot" not in ABL:
                ops = []
                for r in (2 * j, 2 * j + 1):
                    lo, hi = vUn[2 * (r & 1)], vUn[2 * (r & 1) + 1]
                    ops += [lambda r=r, lo=lo: g.valu("v_lshlrev_b32", lo, 16, X[cur][r]),
                            lambda r=r, hi=hi: g.valu("v_and_b32", hi, sHiMask, X[cur][r]),
                            lambda lo=lo: g.valu("v_add_f32", vSum, vSum, lo),
                            lambda hi=hi: g.valu("v_add_f32", vSum2, vSum2, hi),
                            lambda lo=lo: g.valu("v_fma_f32", vSq, lo, lo, vSq),
                            lambda hi=hi: g.valu("v_fma_f32", vSq2, hi, hi, vSq2)]
                per = 12 // U
                if "nors" in ABL:
                    ops = []
                for u in range(U):
                    fill[u] += ops[u * per:(u + 1) * per]
                if t < U and "nocs" not in ABL:
                    fill[t].insert(0, lambda t=t: g.mfma(vCsA[t], Wf[cur][t], vSel, vCsA[t] if s else 0,
                                                         op="v_mfma_f32_16x16x32_bf16"))
            boundary = (t == 3 and not last)
            for u in range(U):
                if "nomfma" not in ABL or T == 0:
                    g.mfma(acc[u], Wf[cur][u], X[cur], acc[u] if T else 0)
                else:
                    g._wait_for_regs(Wf[cur][u].regs() + X[cur].regs())
                if not boundary and not last:
                    if u == 0:
                        rd_x(T + 1)
                    rd_w(T + 1, u)
                if boundary and u == 1:
                    g.waitcnt(lg=0)
                    g.wait_vm_tag(("dma", s + 1))
                    g.barrier()
                    rd_x(T + 1)
                    for uu in range(U):
                        rd_w(T + 1, uu)
                if boundary and u == 1:
                    assert not side
                    if s + 3 <= 7 and "nodma" not in ABL:
                        side += dma_items(s + 3)
                        sched["n"] = (U - 2) + 3 * U
                        sched["k"] = len(side)
                        sched["i"] = 0
                elif not (boundary and u < 2):
                    did = False
                    if side:
                        i0 = sched["i"]
                        if (i0 + 1) * sched["k"] // sched["n"] > i0 * sched["k"] // sched["n"]:
                            side.pop(0)()
                            did = True
                        sched["i"] += 1
                    if not did and late and T >= 16:
                        late.pop(0)()
                for f in fill[u]:
                    f()
            if T in (7, 15, 23, 31):
                stamp(g, 5 + T // 8)
        assert not side
        while late:
            late.pop(0)()
        vRa, vCa, vRr, vCr = va.get(), va.get(), va.get(), va.get()
        g.valu("v_and_b32", t0, 31, vLane)
        g.valu("v_lshrrev_b32", t2, 5, vLane)
        g.salu("s_lshl_b32", sT0, sI, 5)
        g.valu("v_add_u32", t1, sT0, t0)
        g.valu("v_lshlrev_b32", vRr, 5, t1)
        g.valu("v_add_u32", vRr, RS, vRr)
        g.valu("v_lshl_add_u32", vRa, t2, 3, vRr)
        g.valu("v_lshlrev_b32", vCr, 2, t0)
        g.valu("v_add_u32", vCr, CS + j * 512, vCr)
        g.valu("v_and_b32", t1, 1, vLane)
        g.valu("v_lshlrev_b32", t1, 6, t1)
        g.valu("v_lshrrev_b32", t2, 4, vLane)
        g.valu("v_lshl_add_u32", vCa, t2, 4, t1)
        g.salu("s_lshl_b32", sT0, sI, 7)
        g.salu("s_add_u32", sT0, sT0, CS + j * 512)
        g.valu("v_add_u32", vCa, sT0, vCa)
        g.valu("v_add_f32", vSum, vSum, vSum2)
        g.valu("v_add_f32", vSq, vSq, vSq2)
        g.ds_write("ds_write_b64", vRa, vSS, j * 16)
        g.salu("s_mov_b32", EXEC[0], 0x00030003)
        g.salu("s_mov_b32", EXEC[1], 0x00030003)
        for u in range(U):
            g.ds_write("ds_write_b128", vCa, vCsA[u], u * 1024)
        g.salu("s_mov_b64", EXEC, -1)
        g.waitcnt(lg=0)
        g.barrier()
        stamp(g, 9)
        csr = [va.get(16, 4) for _ in range(2)]
        rsr = csr[0][0:8]
        g.ds_read("ds_read_b128", rsr[0:4], vRr)
        g.ds_read("ds_read_b128", rsr[4:8], vRr, 16)
        cpt = [csr[1][4 * u:4 * u + 4] for u in range(U)]
        for u in range(U):
            for i_ in range(4):
                g.ds_read("ds_read_b32", cpt[u][i_], vCr, u * 1024 + i_ * 128)
        vMean, vVar, vRinv, vNr2 = va.get(), va.get(), va.get(), va.get()
        g.valu("v_add_f32", rsr[0], rsr[0], rsr[2])
        g.valu("v_add_f32", rsr[1], rsr[1], rsr[3])
        g.valu("v_add_f32", rsr[4], rsr[4], rsr[6])
        g.valu("v_add_f32", rsr[5], rsr[5], rsr[7])
        g.valu("v_add_f32", rsr[0], rsr[0], rsr[4])
        g.valu("v_add_f32", rsr[1], rsr[1], rsr[5])
        g.valu("v_mul_f32", vMean, 1.0 / 512, rsr[0])
        g.valu("v_mul_f32", vVar, 1.0 / 512, rsr[1])
        g.valu("v_fma_f32", vVar, Neg(vMean), vMean, vVar)
        MB = X[0]
        g.valu("v_cvt_pk_bf16_f32", MB[0], Neg(vMean), Neg(vMean))
        g.valu("v_cmp_gt_u32", VCC, 32, vLane)
        g.valu("v_mov_b32", MB[2], 0)
        g.valu("v_mov_b32", MB[3], 0)
        g.valu("v_cndmask_b32", MB[0], MB[2], MB[0], VCC)
        g.valu("v_and_b32", MB[1], 0xFFFF, MB[0])
        bf16_round(g, vVar, vVar)
        g.valu("v_add_f32", vVar, 1e-5, vVar)
        bf16_round(g, vVar, vVar)
        g.valu("v_sqrt_f32", vVar, vVar)
        bf16_round(g, vVar, vVar)
        g.valu("v_rcp_f32", vRinv, vVar)
        g.salu("s_mov_b32", sT3, 0x07060302)
        CA = [Wf[0][u] for u in range(U)]
        for u in range(U):
            c = cpt[u]
            g.valu("v_add_f32", c[0], c[0], c[1])
            g.valu("v_add_f32", c[2], c[2], c[3])
            g.valu("v_add_f32", c[0], c[0], c[2])
            g.valu("v_and_b32", c[1], sHiMask, c[0])
            g.valu("v_sub_f32", c[1], c[0], c[1])
            g.valu("v_and_b32", c[2], sHiMask, c[1])
            g.valu("v_sub_f32", c[2], c[1], c[2])
            g.valu("v_perm_b32", CA[u][0], c[1], c[0], sT3)
            g.valu("v_lshrrev_b32", CA[u][1], 16, c[2])
            g.valu("v_mov_b32", CA[u][2], 0)
            g.valu("v_mov_b32", CA[u][3], 0)
            g.mfma(acc[u], CA[u], MB, acc[u])
        g.valu("v_mul_f32", vNr2, -LOG2E, vRinv)
        relayout_store()

        if typ == 1:
            g.salu("s_lshl_b32", sT0, sMt, 2)
            g.salu("s_add_u32", sT0, sT0, sI)
            g.salu("s_mul_i32", sT0, sT0, 112)
            g.salu("s_mul_i32", sT1, sNt, 14)
            g.salu("s_add_u32", sT0, sT0, sT1)
            g.salu("s_add_u32", sT0, sT0, 2 * j)
            g.salu("s_lshl_b32", sOut, sT0, 10)
            e = [va.get() for _ in range(8)]
            pk = [va.get(4, 4) for _ in range(2)]
            g.salu("s_mov_b32", sT2, -LOG2E)
            for u in range(U):
                for m in range(2):
                    rr = range(8 * m, 8 * m + 8)
                    for r in rr:
                        g.valu("v_mul_f32", acc[u][r], vNr2, acc[u][r])
                    for r in rr:
                        g.valu("v_exp_f32", e[r & 7], acc[u][r])
                    for r in rr:
                        g.valu("v_fma_f32", e[r & 7], e[r & 7], sT2, sT2)
                    for r in rr:
                        g.valu("v_rcp_f32", e[r & 7], e[r & 7])
                    for r in rr:
                        g.valu("v_mul_f32", acc[u][r], acc[u][r], e[r & 7])
                    for q in range(4):
                        g.valu("v_cvt_pk_bf16_f32", pk[m][q], acc[u][8 * m + 2 * q], acc[u][8 * m + 2 * q + 1])
                    g.bstore("buffer_store_dwordx4", pk[m], vL16, srdWs, sOut, m * 1024, mods=STM)
                if u + 1 < U:
                    g.salu("s_add_u32", sOut, sOut, 4096)
        else:
            PH = [va.get(4, 4) for _ in range(2)]
            for hl in range(2):
                for q in range(4):
                    g.valu("v_lshl_or_b32", PH[hl][q], vPh[hl * 8 + 2 * q + 1], 16, vPh[hl * 8 + 2 * q])
                    g.valu("v_xor_b32", PH[hl][q], vSign, PH[hl][q])
            for u in (2, 1, 0):
                for r in range(16):
                    g.valu("v_mul_f32", acc[u][r], vRinv, acc[u][r])
            vIm = va.get()
            g.valu("v_and_b32", t0, 31, vLane)
            g.salu("s_lshl_b32", sT0, sI, 5)
            g.valu("v_add_u32", t0, sT0, t0)
            g.valu("v_lshlrev_b32", t0, 6, t0)
            g.valu("v_lshrrev_b32", t1, 5, vLane)
            g.valu("v_lshl_add_u32", vIm, t1, 3, t0)
            assert Wf[1][2].i == Wf[1][1].i + 4
            pk8 = V(Wf[1][1].i, 8)
            D2 = csr
            QF = X
            vMx, vSm = va.get(), va.get()
            for q in range(8):
                g.valu("v_cvt_pk_bf16_f32", pk8[q], acc[2][2 * q], acc[2][2 * q + 1])
            for q in range(4):
                g.ds_write("ds_write_b64", vIm, pk8[2 * q:2 * q + 2], V_IMG + j * 8192 + q * 16)

            def phi(u):
                for hl in range(2):
                    for q in range(4):
                        g.valu("v_cvt_pk_bf16_f32", QF[hl][q], acc[u][8 * hl + 2 * q], acc[u][8 * hl + 2 * q + 1])
                for hl in range(2):
                    g.mfma(D2[hl], PH[hl], QF[hl], 0)

            def softmax(hl):
                D = D2[hl]
                g.valu("v_max3_f32", vMx, D[0], D[1], D[2])
                for r in range(3, 15, 2):
                    g.valu("v_max3_f32", vMx, vMx, D[r], D[r + 1])
                g.valu("v_max_f32", vMx, vMx, D[15])
                g.valu("v_mul_f32", vMx, -LOG2E, vMx)
                for r in range(16):
                    g.valu("v_fma_f32", D[r], D[r], sLog2e, vMx)
                for r in range(16):
                    g.valu("v_exp_f32", D[r], D[r])
                g.valu("v_add_f32", vSm, D[0], D[1])
                for r in range(2, 16):
                    g.valu("v_add_f32", vSm, vSm, D[r])
                g.valu("v_rcp_f32", vSm, vSm)
                for r in range(16):
                    g.valu("v_mul_f32", D[r], vSm, D[r])
                for q in range(8):
                    g.valu("v_cvt_pk_bf16_f32", pk8[q], D[2 * q], D[2 * q + 1])

            sLog2e = sT3
            g.salu("s_mov_b32", sLog2e, LOG2E)
            phi(1)
            for hl in range(2):
                softmax(hl)
                for q in range(4):
                    g.ds_write("ds_write_b64", vIm, pk8[2 * q:2 * q + 2], PHK_IMG + (2 * j + hl) * 8192 + q * 16)
            g.waitcnt(lg=0)
            g.barrier()
            phi(0)
            g.salu("s_lshl_b32", sT0, sMt, 2)
            g.salu("s_add_u32", sT0, sT0, sI)
            g.salu("s_lshl_b32", sT0, sT0, 5)
            g.salu("s_lshl_b32", sT1, sNt, 2)
            g.salu("s_add_u32", sT0, sT0, sT1)
            g.salu("s_add_u32", sT0, sT0, 2 * j)
            g.salu("s_lshl_b32", sOut, sT0, 11)
            g.salu("s_add_u32", sOut, sOut, WS_PQ)
            for hl in range(2):
                softmax(hl)
                for m in range(2):
                    g.bstore("buffer_store_dwordx4", pk8[4 * m:4 * m + 4], vL16, srdWs, sOut, (hl * 2 + m) * 1024, mods=STM)
            if j == 0:
                vKa, vVa, vOne = va.get(), va.get(), va.get()
                g.valu("v_lshrrev_b32", t1, 5, vLane)
                g.valu("v_bfe_u32", t2, vLane, 2, 2)
                g.valu("v_lshl_add_u32", t1, t1, 3, t2)
                g.valu("v_lshlrev_b32", t1, 6, t1)
                g.valu("v_and_b32", t2, 3, vLane)
                g.valu("v_lshl_add_u32", t1, t2, 3, t1)
                g.valu("v_bfe_u32", t2, vLane, 4, 1)
                g.valu("v_lshl_add_u32", t2, t2, 5, t1)
                g.salu("s_lshl_b32", sT0, sI, 13)
                g.valu("v_add_u32", vKa, sT0, t2)
                g.salu("s_lshr_b32", sT0, sI, 1)
                g.salu("s_lshl_b32", sT0, sT0, 13)
                g.salu("s_and_b32", sT1, sI, 1)
                g.salu("s_lshl_b32", sT1, sT1, 5)
                g.salu("s_add_u32", sT0, sT0, sT1)
                g.salu("s_add_u32", sT0, sT0, V_IMG)
                g.valu("v_add_u32", vVa, sT0, t1)
                g.valu("v_mov_b32", vOne, ONES_BF)
                g.salu("s_mov_b32", sMask[0], 0xFFFF0000)
                g.salu("s_mov_b32", sMask[1], 0xFFFF0000)
                KA = [Wf[0][0], Wf[0][1]]
                KB = [Wf[0][2], Wf[1][0]]
                D3 = D2[0]

                def rd_kv(ks):
                    for half in range(2):
                        g.ds_read("ds_read_b64_tr_b16", KA[ks & 1][2 * half:2 * half + 2], vKa, ks * 1024 + half * 256)
                    for half in range(2):
                        g.ds_read("ds_read_b64_tr_b16", KB[ks & 1][2 * half:2 * half + 2], vVa, ks * 1024 + half * 256)

                rd_kv(0)
                for ks in range(8):
                    if ks + 1 < 8:
                        rd_kv(ks + 1)
                    for r in range(4):
                        g.valu("v_cndmask_b32_e64", KB[ks & 1][r], KB[ks & 1][r], vOne, sMask)
                    g.mfma(D3, KA[ks & 1], KB[ks & 1], D3 if ks else 0)
                g.salu("s_lshl_b32", sT0, sMt, 5)
                g.salu("s_lshl_b32", sT1, sNt, 2)
                g.salu("s_add_u32", sT0, sT0, sT1)
                g.salu("s_add_u32", sT0, sT0, sI)
                g.salu("s_lshl_b32", sOut, sT0, 12)
                g.salu("s_add_u32", sOut, sOut, WS_PART)
                for q in range(4):
                    g.bstore("buffer_store_dwordx4", D3[4 * q:4 * q + 4], vL16, srdWs, sOut, q * 1024, mods=STM)
        stamp(g, 10)
        g.waitcnt(vm=0)
        stamp(g, 11)
        stamp(g, 13, True)
        stamp_flush(g, 14, srdWs, sGw, sT0, t0, t1)
        g.raw("s_endpgm")
        maxv = max(maxv, va.hi)
        out.append(g.text())
    out.append("hh_k1_exit:\n    s_endpgm\n")
    return name, "".join(out), maxv


def gen_kr():
    name = "hh_kr_kernel"
    CURK[0] = "kr"
    g = Gen()
    sKarg, sWG = S(0, 2), S(2)
    sWs, srdWs = S(4, 2), S(8, 4)
    sW, sT0, sT1, sOff = S(12), S(13), S(14), S(15)
    g.label(name)
    g.salu("s_cmp_ge_u32", None, sWG, 32)
    g.raw("s_cbranch_scc1 hh_kr_exit")
    g.sload(sWs, sKarg, 72)
    vLane, vT, vL16, vL8 = V(1), V(2), V(3), V(4)
    g.valu("v_lshrrev_b32", vT, 6, V(0))
    g.valu("v_and_b32", vLane, 63, V(0))
    g.valu("v_readfirstlane_b32", sW, vT)
    g.valu("v_lshlrev_b32", vL16, 4, vLane)
    g.lg = []
    g.raw("s_waitcnt lgkmcnt(0)")
    make_srd(g, srdWs, sWs, WS_SIZE)
    g.salu("s_lshl_b32", sT0, sWG, 2)
    g.salu("s_add_u32", sT0, sT0, sW)
    g.salu("s_lshl_b32", sOff, sT0, 10)
    g.salu("s_add_u32", sOff, sOff, WS_PART)
    P = [V(8 + 4 * m, 4) for m in range(16)]
    for m in range(16):
        g.bload("buffer_load_dwordx4", P[m], vL16, srdWs, sOff)
        if m < 15:
            g.salu("s_add_u32", sOff, sOff, 32 * 4096)
    for m in range(1, 16):
        for r in range(4):
            g.valu("v_add_f32", P[0][r], P[0][r], P[m][r])
    pk = V(6, 2)
    g.valu("v_cvt_pk_bf16_f32", pk[0], P[0][0], P[0][1])
    g.valu("v_cvt_pk_bf16_f32", pk[1], P[0][2], P[0][3])
    g.salu("s_lshl_b32", sT0, sWG, 11)
    g.salu("s_lshr_b32", sT1, sW, 1)
    g.salu("s_lshl_b32", sT1, sT1, 10)
    g.salu("s_add_u32", sT0, sT0, sT1)
    g.salu("s_and_b32", sT1, sW, 1)
    g.salu("s_lshl_b32", sT1, sT1, 3)
    g.salu("s_add_u32", sT0, sT0, sT1)
    g.salu("s_add_u32", sOff, sT0, WS_KV)
    g.bstore("buffer_store_dwordx2", pk, vL16, srdWs, sOff)
    g.raw("s_endpgm")
    return name, g.text() + "hh_kr_exit:\n    s_endpgm\n", 72


K2_LDS = 48 * 1024


def gen_k2(NS=int(os.environ.get("NS", "28"))):
    name = "hh_k2_kernel"
    CURK[0] = "k2"
    g = Gen()
    out = []
    LIMIT = 0x1000
    K2ABL = os.environ.get("K2ABL", "")
    OM = os.environ.get("OM", "")
    sKarg, sWG = S(0, 2), S(2)
    sX, sWs, sOutp, sDbg = S(4, 2), S(6, 2), S(8, 2), S(10, 2)
    srdX, srdO, srdWs = S(12, 4), S(16, 4), S(20, 4)
    sW, sMt, sNt, sT0, sT1, sT2 = (S(24 + k) for k in range(6))
    g.label(name)
    g.salu("s_cmp_ge_u32", None, sWG, 256)
    g.raw("s_cbranch_scc1 hh_k2_exit")
    stamp(g, 0)
    stamp(g, 12, True)
    g.sload(sWs, sKarg, 72)
    g.sload(sX, sKarg, 0)
    g.sload(S(8, 4), sKarg, 56)
    va = VAlloc(1, 256)
    vLane, vT, vL16 = va.get(), va.get(), va.get()
    g.valu("v_lshrrev_b32", vT, 6, V(0))
    g.valu("v_and_b32", vLane, 63, V(0))
    g.valu("v_readfirstlane_b32", sW, vT)
    g.valu("v_lshlrev_b32", vL16, 4, vLane)
    g.salu("s_and_b32", sT0, sWG, 7)
    g.salu("s_lshl_b32", sT0, sT0, 2)
    g.salu("s_bfe_u32", sT1, sWG, (2 << 16) | 3)
    g.salu("s_or_b32", sMt, sT0, sT1)
    g.salu("s_lshr_b32", sNt, sWG, 5)
    sMtL, sNtL = sMt, sNt
    FK = os.environ.get("K2FAKE", "")
    if FK:
        sMtL, sNtL = S(48), S(49)
        g.salu("s_mov_b32", sMtL, 0 if "m" in FK else sMt)
        g.salu("s_mov_b32", sNtL, 0 if "n" in FK else sNt)
    g.salu("s_cmp_ge_u32", None, sW, 4)
    g.raw("s_cbranch_scc1 hh_k2_aux")
    base_state = g
    out.append(g.text())

    def sentinel_check(g, t, regs):
        regs = list(regs)
        g.valu("v_max3_u32", t, regs[0], regs[1], regs[2])
        i = 3
        while i < len(regs):
            if i + 1 < len(regs):
                g.valu("v_max3_u32", t, t, regs[i], regs[i + 1])
                i += 2
            else:
                g.valu("v_max_u32", t, t, regs[i])
                i += 1
        g.valu("v_cmp_eq_u32", VCC, -1, t)

    g = base_state.fork()
    sH = [S(32), S(33)]
    sWn = [S(34), S(35)]
    sO = [S(36), S(37)]
    sWoN = [S(38), S(39)]
    sOb = [S(40), S(41)]
    sCnt = S(42)
    g.salu("s_mul_i32", sT2, sW, 28)
    for sb in range(2):
        g.salu("s_lshl_b32", sT0, sMtL, 1)
        if sb:
            g.salu("s_add_u32", sT0, sT0, sb)
        g.salu("s_mul_i32", sT1, sT0, 112)
        g.salu("s_add_u32", sT1, sT1, sT2)
        g.salu("s_lshl_b32", sH[sb], sT1, 10)
    for nb in range(2):
        g.salu("s_lshl_b32", sT0, sNtL, 1)
        if nb:
            g.salu("s_add_u32", sT0, sT0, nb)
        g.salu("s_mul_i32", sT0, sT0, 144)
        g.salu("s_add_u32", sT1, sT0, sT2)
        g.salu("s_lshl_b32", sT1, sT1, 10)
        g.salu("s_add_u32", sWn[nb], sT1, WS_WF)
    g.lg = []
    g.raw("s_waitcnt lgkmcnt(0)")
    make_srd(g, srdWs, sWs, WS_SIZE)
    win = {}

    def ld(dst, sreg, off, mods=""):
        w0 = win.get(sreg.i, 0)
        if not (w0 <= off < w0 + 4096):
            g.salu("s_add_u32", sreg, sreg, off - w0)
            win[sreg.i] = w0 = off
        g.bload("buffer_load_dwordx4", dst, vL16, srdWs, sreg, off - w0, mods=mods)

    acc = [[va.get(16, 4) for sb in range(2)] for nb in range(2)]
    vRc, vChk, vXo = va.get(), va.get(), va.get()
    XR = va.get(8, 4)
    slots = [va.get(4, 4) for _ in range(NS)]
    reqs = []
    for k in range(28):
        reqs += [(sWn[0], k * 1024), (sH[0], k * 1024), (sH[1], k * 1024), (sWn[1], k * 1024)]
    for h in range(8):
        reqs += [(sWoN[0], h * 1024), (sO[0], h * 1024, OM), (sO[1], h * 1024, OM), (sWoN[1], h * 1024)]
    issued = [0]

    def slot(q):
        return slots[q % NS]

    def issue_upto(n):
        n = min(n, len(reqs))
        while issued[0] < n:
            q = issued[0]
            ld(slot(q), *reqs[q])
            issued[0] += 1

    stamp(g, 1)
    issue_upto(NS)
    stamp(g, 2)
    make_srd(g, srdX, sX, 2048 * 1024)
    make_srd(g, srdO, sOutp, 2048 * 1024)
    for sb in range(2):
        g.salu("s_lshl_b32", sT0, sMt, 1)
        if sb:
            g.salu("s_add_u32", sT0, sT0, sb)
        g.salu("s_lshl_b32", sT1, sT0, 5)
        g.salu("s_lshl_b32", sT2, sW, 3)
        g.salu("s_add_u32", sT1, sT1, sT2)
        g.salu("s_lshl_b32", sT1, sT1, 10)
        g.salu("s_add_u32", sO[sb], sT1, WS_OF)
        g.salu("s_mov_b32", sOb[sb], sO[sb])
    for nb in range(2):
        g.salu("s_lshl_b32", sT0, sNt, 1)
        if nb:
            g.salu("s_add_u32", sT0, sT0, nb)
        g.salu("s_mul_i32", sT0, sT0, 144)
        g.salu("s_lshl_b32", sT2, sW, 3)
        g.salu("s_add_u32", sT1, sT0, sT2)
        g.salu("s_add_u32", sT1, sT1, 112)
        g.salu("s_lshl_b32", sT1, sT1, 10)
        g.salu("s_add_u32", sWoN[nb], sT1, WS_WF)
    t0, t1 = vRc, vChk
    g.salu("s_and_b32", sT0, sW, 1)
    g.salu("s_lshl_b32", sT0, sT0, 5)
    g.salu("s_lshl_b32", sT1, sMt, 6)
    g.salu("s_add_u32", sT0, sT0, sT1)
    g.valu("v_and_b32", t0, 31, vLane)
    g.valu("v_add_u32", t0, sT0, t0)
    g.valu("v_lshlrev_b32", vXo, 10, t0)
    g.salu("s_lshr_b32", sT0, sW, 1)
    g.salu("s_lshl_b32", sT0, sT0, 6)
    g.salu("s_lshl_b32", sT1, sNt, 7)
    g.salu("s_add_u32", sT0, sT0, sT1)
    g.valu("v_add_u32", vXo, sT0, vXo)
    g.valu("v_lshrrev_b32", t1, 5, vLane)
    g.valu("v_lshl_add_u32", vXo, t1, 3, vXo)

    slow = []
    for k in range(36):
        b = 4 * k
        Wn0, H0, H1, Wn1 = (slot(b + i) for i in range(4))
        if k >= 28 and "noaux" not in K2ABL:
            sentinel_check(g, vChk, [H0[i] for i in range(4)] + [H1[i] for i in range(4)])
            g.salu("s_cmp_eq_u64", None, VCC, 0)
            g.raw(f"s_cbranch_scc0 hh_k2_slow{k}")
            g.label(f"hh_k2_back{k}")
            h = k - 28
            gs = Gen()
            gs.label(f"hh_k2_slow{k}")
            gs.salu("s_mov_b32", sCnt, 0)
            gs.salu("s_add_u32", sT0, sOb[0], h * 1024)
            gs.salu("s_add_u32", sT1, sOb[1], h * 1024)
            gs.label(f"hh_k2_spin{k}")
            gs.raw("s_sleep 4")
            gs.bload("buffer_load_dwordx4", H0, vL16, srdWs, sT0, mods="sc1")
            gs.bload("buffer_load_dwordx4", H1, vL16, srdWs, sT1, mods="sc1")
            gs.salu("s_add_u32", sCnt, sCnt, 1)
            gs.raw("s_waitcnt vmcnt(0)")
            gs.vm = []
            sentinel_check(gs, vChk, [H0[i] for i in range(4)] + [H1[i] for i in range(4)])
            gs.salu("s_cmp_ge_u32", None, sCnt, LIMIT)
            gs.raw(f"s_cbranch_scc1 hh_k2_back{k}")
            gs.salu("s_cmp_eq_u64", None, VCC, 0)
            gs.raw(f"s_cbranch_scc0 hh_k2_spin{k}")
            gs.raw(f"s_branch hh_k2_back{k}")
            slow.append(gs.text())
        def mf(d, a_, b_):
            if "nomfma" in K2ABL and k:
                g._wait_for_regs(a_.regs() + b_.regs())
            else:
                g.mfma(d, a_, b_, d if k else 0)
        mf(acc[0][0], Wn0, H0)
        mf(acc[0][1], Wn0, H1)
        issue_upto(b + 1 + NS)
        mf(acc[1][0], Wn1, H0)
        issue_upto(b + 2 + NS)
        mf(acc[1][1], Wn1, H1)
        issue_upto(b + 4 + NS)
        if k == 29:
            for q in range(4):
                g.bload("buffer_load_dwordx2", XR[2 * q:2 * q + 2], vXo, srdX, 0, q * 16)
        if k in (0, 6, 13, 20, 27, 31, 35):
            stamp(g, 3 + (0, 6, 13, 20, 27, 31, 35).index(k))
    g.waitcnt(vm=0)
    for w in range(1, 4):
        g.salu("s_cmp_eq_u32", None, sW, w)
        g.raw(f"s_cbranch_scc1 hh_k2_ep{w}")
    out.append(g.text())
    ep_state = g
    assert NS >= 20
    for w in range(4):
        g = ep_state.fork()
        g.label(f"hh_k2_ep{w}")
        quads = [(0, 0), (0, 1), (1, 0), (1, 1)]
        for Q in range(4):
            if Q == w:
                continue
            k_ = (w - Q - 1) % 4
            nb, sb = quads[Q]
            for q in range(4):
                g.ds_write("ds_write_b128", vL16, acc[nb][sb][4 * q:4 * q + 4], (Q * 3 + k_) * 4096 + q * 1024)
        own = acc[quads[w][0]][quads[w][1]]
        g.nop(8)
        tx = V(slots[12].i, 16)
        for r in range(16):
            src = XR[r >> 1]
            if r & 1:
                g.valu("v_and_b32", tx[r], 0xFFFF0000, src)
            else:
                g.valu("v_lshlrev_b32", tx[r], 16, src)
        for r in range(16):
            g.valu("v_add_f32", own[r], own[r], tx[r])
        g.waitcnt(lg=0)
        g.barrier()
        RD = [V(slots[4 * k_].i, 16) for k_ in range(3)]
        for k_ in range(3):
            for q in range(4):
                g.ds_read("ds_read_b128", RD[k_][4 * q:4 * q + 4], vL16, (w * 3 + k_) * 4096 + q * 1024)
        for r in range(16):
            g.valu("v_add_f32", own[r], own[r], RD[0][r])
        for r in range(16):
            g.valu("v_add_f32", RD[1][r], RD[1][r], RD[2][r])
        for r in range(16):
            g.valu("v_add_f32", own[r], own[r], RD[1][r])
        po = V(slots[16].i, 8)
        for q in range(8):
            g.valu("v_cvt_pk_bf16_f32", po[q], own[2 * q], own[2 * q + 1])
        for i_ in range(2):
            g.valu("v_permlane32_swap_b32", [po[i_], po[2 + i_]])
            g.valu("v_permlane32_swap_b32", [po[4 + i_], po[6 + i_]])
        g.valu("v_lshrrev_b32", vRc, 5, vLane)
        g.valu("v_lshl_add_u32", vXo, vRc, 3, vXo)
        g.bstore("buffer_store_dwordx4", po[0:4], vXo, srdO, 0)
        g.bstore("buffer_store_dwordx4", po[4:8], vXo, srdO, 0, 32)
        stamp(g, 10)
        if STAMPS == "k2":
            g.waitcnt(vm=0)
        stamp(g, 11)
        stamp(g, 13, True)
        g.salu("s_lshl_b32", sT2, sWG, 3)
        g.salu("s_add_u32", sT2, sT2, sW)
        stamp_flush(g, 14, srdWs, sT2, sT0, vRc, vChk)
        g.raw("s_endpgm")
        out.append(g.text())
    out += slow

    g = base_state.fork()
    g.label("hh_k2_aux")
    if "noaux" in K2ABL:
        g.raw("s_endpgm")
    g.raw("s_setprio 3")
    sOff, sHd, sKVh, sCnt = S(32), S(33), S(34), S(35)
    sPQ = [S(36), S(37)]
    sOo = [S(38), S(39)]
    vA, vPr, vP, vRc = V(4), V(5), V(6), V(7)
    P = [V(8 + 4 * m, 4) for m in range(8)]
    PQ = [[V(40 + 8 * sb + 4 * m, 4) for m in range(2)] for sb in range(2)]
    KV = [V(56, 4), V(60, 4)]
    D = [V(64, 16), V(80, 16)]
    O = [V(96, 4), V(100, 4)]
    pk, pc = V(104, 4), V(108, 4)
    g.salu("s_lshl_b32", sHd, sNt, 2)
    g.salu("s_add_u32", sHd, sHd, sW)
    g.salu("s_sub_u32", sHd, sHd, 4)
    for sb in range(2):
        g.salu("s_lshl_b32", sT0, sMt, 1)
        if sb:
            g.salu("s_add_u32", sT0, sT0, sb)
        g.salu("s_lshl_b32", sT0, sT0, 5)
        g.salu("s_add_u32", sT0, sT0, sHd)
        g.salu("s_lshl_b32", sT1, sT0, 11)
        g.salu("s_add_u32", sPQ[sb], sT1, WS_PQ)
        g.salu("s_lshl_b32", sT1, sT0, 10)
        g.salu("s_add_u32", sOo[sb], sT1, WS_OF)
    g.salu("s_lshl_b32", sKVh, sHd, 11)
    g.salu("s_add_u32", sKVh, sKVh, WS_KV)
    g.valu("v_lshlrev_b32", vPr, 8, vLane)
    g.valu("v_and_b32", vA, 15, vLane)
    g.valu("v_lshlrev_b32", vA, 4, vA)
    g.valu("v_bfe_u32", vT, vLane, 4, 1)
    g.valu("v_lshl_add_u32", vP, vT, 10, vA)
    g.valu("v_lshrrev_b32", vT, 5, vLane)
    g.valu("v_lshl_add_u32", vP, vT, 17, vP)
    g.salu("s_lshr_b32", sT0, sWG, 2)
    g.salu("s_lshl_b32", sOff, sT0, 11)
    g.salu("s_and_b32", sT1, sWG, 3)
    g.salu("s_lshl_b32", sT1, sT1, 8)
    g.salu("s_add_u32", sOff, sOff, sT1)
    g.salu("s_add_u32", sOff, sOff, WS_PART)
    g.lg = []
    g.raw("s_waitcnt lgkmcnt(0)")
    make_srd(g, srdWs, sWs, WS_SIZE)
    for sb in range(2):
        for m in range(2):
            g.bload("buffer_load_dwordx4", PQ[sb][m], vL16, srdWs, sPQ[sb], m * 1024)
    g.salu("s_cmp_lg_u32", None, sW, 4)
    g.raw("s_cbranch_scc1 hh_k2_await")
    for m in range(8):
        g.bload("buffer_load_dwordx4", P[m], vP, srdWs, sOff)
        if m < 7:
            g.salu("s_add_u32", sOff, sOff, 2 * 32 * 4096)
    stamp(g, 1)
    for st in (1, 2, 4):
        for m in range(0, 8, 2 * st):
            for r in range(4):
                g.valu("v_add_f32", P[m][r], P[m][r], P[m + st][r])
    for r in range(4):
        g.valu("v_mov_b32", pc[r], P[0][r])
    for r in range(4):
        g.valu("v_permlane32_swap_b32", [P[0][r], pc[r]])
    for r in range(4):
        g.valu("v_add_f32", P[0][r], P[0][r], pc[r])
    g.valu("v_cvt_pk_bf16_f32", pk[0], P[0][0], P[0][1])
    g.valu("v_cvt_pk_bf16_f32", pk[1], P[0][2], P[0][3])
    g.valu("v_mov_b32", pk[2], pk[0])
    g.valu("v_mov_b32", pk[3], pk[1])
    g.valu("v_mov_b32", pc[0], pk[0])
    g.valu("v_mov_b32", pc[1], pk[1])
    g.valu("v_permlane16_swap_b32", [pc[0], pk[2]])
    g.valu("v_permlane16_swap_b32", [pc[1], pk[3]])
    g.salu("s_lshl_b32", sOff, sWG, 8)
    g.salu("s_add_u32", sOff, sOff, WS_KV)
    g.salu("s_mov_b64", EXEC, 0xFFFF)
    g.bstore("buffer_store_dwordx4", pk, vA, srdWs, sOff, mods="sc1")
    g.salu("s_mov_b64", EXEC, -1)
    stamp(g, 2)
    g.raw(f"s_sleep {os.environ.get('ISL0', '32')}")
    g.label("hh_k2_ojob")
    g.nop(4)
    stamp(g, 3)
    g.salu("s_mov_b32", sCnt, 0)
    for m in range(2):
        g.bload("buffer_load_dwordx4", KV[m], vL16, srdWs, sKVh, m * 1024, mods=os.environ.get("KVM", ""))
    g.label("hh_k2_kvchk")
    g.salu("s_add_u32", sCnt, sCnt, 1)
    g.raw("s_waitcnt vmcnt(0)")
    g.vm = []
    sentinel_check(g, vP, [KV[0][i] for i in range(4)] + [KV[1][i] for i in range(4)])
    g.salu("s_cmp_ge_u32", None, sCnt, LIMIT)
    g.raw("s_cbranch_scc1 hh_k2_kvok")
    g.salu("s_cmp_eq_u64", None, VCC, 0)
    g.raw("s_cbranch_scc1 hh_k2_kvok")
    g.raw(f"s_sleep {os.environ.get('PSL', '8')}")
    for m in range(2):
        g.bload("buffer_load_dwordx4", KV[m], vL16, srdWs, sKVh, m * 1024, mods="sc1")
    g.raw("s_branch hh_k2_kvchk")
    g.vm = []
    g.label("hh_k2_kvok")
    stamp(g, 4)
    for sb in range(2):
        g.mfma(D[sb], KV[0], PQ[sb][0], 0)
    for sb in range(2):
        g.mfma(D[sb], KV[1], PQ[sb][1], D[sb])
    for sb in range(2):
        g.valu("v_add_f32", vRc, 1e-6, D[sb][8])
        g.valu("v_rcp_f32", vRc, vRc)
        for r in range(8):
            g.valu("v_mul_f32", D[sb][r], vRc, D[sb][r])
        for q in range(4):
            g.valu("v_cvt_pk_bf16_f32", O[sb][q], D[sb][2 * q], D[sb][2 * q + 1])
        g.bstore("buffer_store_dwordx4", O[sb], vL16, srdWs, sOo[sb], mods="sc1")
    if STAMPS == "k2":
        stamp(g, 5)
        g.waitcnt(vm=0)
        for i_ in range(6, 12):
            stamp(g, i_)
        stamp(g, 13, True)
        g.raw("s_waitcnt lgkmcnt(0)")
        g.salu("s_add_u32", S(72 + 14), S(72), sCnt)
        g.salu("s_lshl_b32", sT2, sWG, 3)
        g.salu("s_add_u32", sT2, sT2, sW)
        stamp_flush(g, 14, srdWs, sT2, sT0, V(6), V(7))
    g.raw("s_endpgm")
    g.label("hh_k2_await")
    g.raw(f"s_sleep {os.environ.get('ISL', '96')}")
    g.raw("s_branch hh_k2_ojob")
    out.append(g.text())
    return name, "".join(out) + "hh_k2_exit:\n    s_endpgm\n", max(va.hi, 112)


def descriptor(name, nv):
    nv4 = (nv + 3) // 4 * 4
    return f""".amdhsa_kernel {name}
  .amdhsa_next_free_vgpr {nv4}
  .amdhsa_next_free_sgpr 102
  .amdhsa_accum_offset {nv4}
  .amdhsa_group_segment_fixed_size 0
  .amdhsa_kernarg_size 80
  .amdhsa_user_sgpr_count 2
  .amdhsa_user_sgpr_kernarg_segment_ptr 1
  .amdhsa_system_sgpr_workgroup_id_x 1
.end_amdhsa_kernel
"""


def main(path):
    ks = [gen_k1(), gen_k2()]
    launches = [
        f"; @launch kernel=hh_k1_kernel grid=(256,1,1) block=(512,1,1) lds={K1_LDS}",
        f"; @launch kernel=hh_k2_kernel grid=(256,1,1) block=(512,1,1) lds={K2_LDS}",
    ]
    if KR:
        ks.append(gen_kr())
        launches.insert(1, "; @launch kernel=hh_kr_kernel grid=(32,1,1) block=(256,1,1) lds=0")
    s = "; hedgehog linear attention + SiLU FFN parallel block (generated by my own generator script)\n"
    s += "\n".join(launches) + "\n"
    s += '.amdgcn_target "amdgcn-amd-amdhsa--gfx950"\n.text\n'
    for name, txt, nv in ks:
        s += f".globl {name}\n.p2align 8\n.type {name},@function\n" + txt
    s += "hh_code_end:\n"
    s += '.section .rodata,"a"\n'
    for name, txt, nv in ks:
        s += ".p2align 6\n" + descriptor(name, nv)
        print(name, "vgprs", nv, "lines", txt.count("\n"), file=sys.stderr)
    open(path, "w").write(s)


if __name__ == "__main__":
    if len(sys.argv) > 2 and sys.argv[2].startswith("stamps"):
        STAMPS = sys.argv[2][6:] or "k1"
        ABL.update(sys.argv[3:])
    main(sys.argv[1] if len(sys.argv) > 1 else
         "parallel_sum__linear_kernel_hedgehog__dense_activation_silu__prompt.s")
```

```python
import sys
from asmlib import *

WS_HF = 0x0
WS_PQ = 0x700000
WS_WF = 0xB00000
WS_PART = 0xE00000
WS_KV = 0x1000000
WS_OF = 0x1100000
WS_SIZE = 0x1300000

LOG2E = 1.4426950408889634
ONES_BF = 0x3F803F80

A_BUF = 16384
B_BASE = 49152
B_BUF = 28672
RS = 135168
CS = RS + 4096
K1_LDS = RS + 4096 + 7 * 1024
PHK_IMG = 0
V_IMG = 32768


def make_srd(g, srd, base, nbytes, off=None):
    if off is None:
        g.salu("s_mov_b32", srd[0], base[0])
        g.salu("s_mov_b32", srd[1], base[1])
    else:
        g.salu("s_add_u32", srd[0], base[0], off)
        g.salu("s_addc_u32", srd[1], base[1], 0)
    g.salu("s_mov_b32", srd[2], nbytes)
    g.salu("s_mov_b32", srd[3], 0x20000)


STAMPS = False
import os
KR = os.environ.get("KR", "") == "1"
CPF = os.environ.get("CPF", "1") == "1"
import os
STM = os.environ.get("STM", "sc0 sc1")
ABL = set()
WS_DBG = 0x1080000


CURK = [None]


def stamp(g, idx, real=False):
    if STAMPS == CURK[0]:
        g.raw(f"{'s_memrealtime' if real else 's_memtime'} s[{72 + 2 * idx}:{73 + 2 * idx}]")


def stamp_flush(g, n, srdWs, sGw, sT, vtmp, vtmp2):
    if STAMPS != CURK[0]:
        return
    g.raw("s_waitcnt lgkmcnt(0)")
    g.salu("s_lshl_b32", sT, sGw, 6)
    g.salu("s_add_u32", sT, sT, WS_DBG)
    g.valu("v_mov_b32", vtmp2, 0)
    for i in range(n):
        g.valu("v_mov_b32", vtmp, S(72 + 2 * i))
        g.bstore("buffer_store_dword", vtmp, vtmp2, srdWs, sT, 4 * i)


AMPN = [0]


def amp(g, sGw, sT0, sT1, sT2):
    A = os.environ.get("AMP", "")
    if not A or STAMPS != CURK[0]:
        return
    a, b, sh = (int(x) for x in A.split(","))
    n = AMPN[0]
    AMPN[0] += 1
    g.raw("s_waitcnt lgkmcnt(0)")
    g.salu("s_cmp_eq_u32", None, sGw, int(os.environ.get("AMPW", "0")))
    g.raw(f"s_cbranch_scc0 hh_amp_skip{n}")
    g.salu("s_sub_u32", sT0, S(72 + 2 * b), S(72 + 2 * a))
    if sh >= 0:
        g.salu("s_lshl_b32", sT0, sT0, sh)
    else:
        g.salu("s_lshr_b32", sT0, sT0, -sh)
    g.salu("s_min_u32", sT0, sT0, 20000)
    g.raw("s_memrealtime s[100:101]")
    g.raw("s_waitcnt lgkmcnt(0)")
    g.salu("s_add_u32", sT1, S(100), sT0)
    g.label(f"hh_amp_loop{n}")
    g.raw("s_sleep 2")
    g.raw("s_memrealtime s[100:101]")
    g.raw("s_waitcnt lgkmcnt(0)")
    g.salu("s_sub_u32", sT2, sT1, S(100))
    g.salu("s_cmp_gt_i32", None, sT2, 0)
    g.raw(f"s_cbranch_scc1 hh_amp_loop{n}")
    g.label(f"hh_amp_skip{n}")


def bf16_round(g, dst, src):
    g.valu("v_cvt_pk_bf16_f32", dst, src, src)
    g.valu("v_lshlrev_b32", dst, 16, dst)


def gen_k1():
    name = "hh_k1_kernel"
    CURK[0] = "k1"
    g = Gen()
    out = []
    sKarg, sWG = S(0, 2), S(2)
    sX, sWqkv, sWphi, sWo, sW1, sW2, sWs = S(4, 2), S(6, 2), S(8, 2), S(10, 2), S(12, 2), S(14, 2), S(16, 2)
    srdX, srdW, srdWs, srdAux, srdAux2, srdPhi = S(20, 4), S(24, 4), S(28, 4), S(32, 4), S(36, 4), S(40, 4)
    sW, sI, sJ, sMt, sNt, sType, sXcd, sIdx = (S(44 + k) for k in range(8))
    sT0, sT1, sT2, sT3 = S(52), S(53), S(54), S(55)
    sKA, sKB, sAm0, sBm0, sOnes, sGw = S(56), S(57), S(58), S(59), S(60), S(61)
    sMask = S(62, 2)
    sF1, sF2, sF1d, sF2d = S(64), S(65), S(66), S(67)
    sOut = S(68)
    sPhiOff = S(69)

    g.label(name)
    g.salu("s_cmp_ge_u32", None, sWG, 256)
    g.raw("s_cbranch_scc1 hh_k1_exit")
    stamp(g, 0)
    stamp(g, 12, True)
    g.sload(S(4, 4), sKarg, 0)
    g.sload(S(8, 4), sKarg, 16)
    g.sload(S(12, 4), sKarg, 40)
    g.sload(S(16, 2), sKarg, 72)
    vTid = V(0)
    vLane, vT = V(1), V(2)
    g.valu("v_lshrrev_b32", vT, 6, vTid)
    g.valu("v_and_b32", vLane, 63, vTid)
    g.valu("v_readfirstlane_b32", sW, vT)
    g.salu("s_and_b32", sXcd, sWG, 7)
    g.salu("s_lshr_b32", sIdx, sWG, 3)
    if CPF:
        sPc = S(70, 2)
        g.raw(f"s_getpc_b64 {sPc}")
        g.label("hh_k1_pc")
        g.raw(f"s_sub_u32 {sPc[0]}, {sPc[0]}, hh_k1_pc-hh_k1_kernel")
        g.raw(f"s_subb_u32 {sPc[1]}, {sPc[1]}, 0")
        g.salu("s_and_b32", sT0, sIdx, 7)
        g.salu("s_lshl_b32", sT0, sT0, 13)
        g.valu("v_lshrrev_b32", V(3), 3, vTid)
        g.valu("v_lshl_add_u32", V(3), V(3), 7, sT0)
        g.raw("v_min_u32 v3, hh_code_end-hh_k1_kernel-4, v3")
        g.raw(f"global_load_dword v4, v3, {sPc}")
        g.vm.append({"regs": {("v", 4)}, "tag": "cpf"})
    g.salu("s_and_b32", sT0, sXcd, 1)
    g.salu("s_lshl_b32", sT0, sT0, 3)
    g.salu("s_and_b32", sT1, sIdx, 7)
    g.salu("s_or_b32", sMt, sT0, sT1)
    g.salu("s_lshr_b32", sType, sIdx, 4)
    g.salu("s_lshr_b32", sT0, sXcd, 1)
    g.salu("s_lshl_b32", sT0, sT0, 1)
    g.salu("s_bfe_u32", sT1, sIdx, (1 << 16) | 3)
    g.salu("s_or_b32", sNt, sT0, sT1)
    g.salu("s_and_b32", sI, sW, 3)
    g.salu("s_lshr_b32", sJ, sW, 2)
    g.salu("s_lshl_b32", sT0, sWG, 3)
    g.salu("s_add_u32", sGw, sT0, sW)
    g.salu("s_mov_b32", sOnes, ONES_BF)
    g.salu("s_lshl_b32", sT0, sType, 1)
    g.salu("s_add_u32", sT0, sT0, sJ)
    g.salu("s_cmp_eq_u32", None, sT0, 1)
    g.raw("s_cbranch_scc1 hh_k1_r1")
    g.salu("s_cmp_eq_u32", None, sT0, 2)
    g.raw("s_cbranch_scc1 hh_k1_r2")
    g.salu("s_cmp_eq_u32", None, sT0, 3)
    g.raw("s_cbranch_scc1 hh_k1_r3")
    out.append(g.text())
    base_state = g
    maxv = 0

    for role in range(4):
        typ, j = role >> 1, role & 1
        g = base_state.fork()
        g.label(f"hh_k1_r{role}")
        va = VAlloc(5, 256)
        U = 4 if (typ == 1 and j == 0) else 3
        ldw = 3584 if typ else 3072
        nB = 4 if j == 1 else 3
        vA = [va.get() for _ in range(2)]
        vB = [va.get() for _ in range(nB)]
        t0, t1, t2, t3 = va.get(), va.get(), va.get(), va.get()
        g.valu("v_lshrrev_b32", t0, 3, vLane)
        g.valu("v_lshrrev_b32", t1, 4, vLane)
        g.valu("v_and_b32", t2, 7, vLane)
        g.salu("s_lshl_b32", sT0, sW, 4)
        for e in range(2):
            g.valu("v_add_u32", t3, sT0, t0)
            if e:
                g.valu("v_add_u32", t3, 8, t3)
            g.valu("v_lshlrev_b32", vA[e], 10, t3)
            g.valu("v_xor_b32", t3, t2, t1)
            if e:
                g.valu("v_xor_b32", t3, 4, t3)
            g.valu("v_lshl_add_u32", vA[e], t3, 4, vA[e])
        g.salu("s_add_u32", sT1, sW, 4)
        g.salu("s_and_b32", sT1, sT1, 7)
        g.salu("s_lshl_b32", sBm0, sT1, 10)
        g.salu("s_add_u32", sBm0, sBm0, B_BASE)
        g.salu("s_lshl_b32", sAm0, sW, 11)
        g.salu("s_lshl_b32", sT1, sT1, 6)
        for e in range(nB):
            g.valu("v_add_u32", t0, sT1, vLane)
            if e:
                g.valu("v_add_u32", t0, 512 * e, t0)
            g.valu("v_mul_u32_u24", t1, 2341, t0)
            g.valu("v_lshrrev_b32", t1, 16, t1)
            g.valu("v_mul_u32_u24", t2, 28, t1)
            g.valu("v_sub_u32", t2, t0, t2)
            g.valu("v_mul_u32_u24", vB[e], ldw, t1)
            if typ == 1:
                g.valu("v_lshl_add_u32", vB[e], t2, 4, vB[e])
            else:
                g.valu("v_lshrrev_b32", t3, 3, t2)
                g.valu("v_lshl_add_u32", vB[e], t3, 10, vB[e])
                g.valu("v_and_b32", t3, 7, t2)
                g.valu("v_lshl_add_u32", vB[e], t3, 4, vB[e])
                g.valu("v_cmp_le_u32", VCC, 24, t2)
                g.valu("v_mov_b32", t3, 0x80000000)
                g.valu("v_cndmask_b32", vB[e], vB[e], t3, VCC)
        g.salu("s_mov_b32", sKA, 0)
        g.salu("s_mov_b32", sKB, 0)
        g.lg = []
        g.raw("s_waitcnt lgkmcnt(0)")
        g.salu("s_lshl_b32", sT0, sMt, 17)
        make_srd(g, srdX, sX, 131072, sT0)
        if typ == 0:
            g.salu("s_lshl_b32", sT0, sNt, 7)
            make_srd(g, srdW, sWqkv, 512 * 3072 - 7 * 128, sT0)
        else:
            g.salu("s_mul_i32", sT0, sNt, 448)
            make_srd(g, srdW, sW1, 512 * 3584 - 7 * 448, sT0)
        make_srd(g, srdWs, sWs, WS_SIZE)

        def dma_items(stage):
            b = stage % 3
            items = []
            for e in range(2):
                def f(e=e):
                    g.salu("s_mov_b32", sKA, stage * 128)
                    g.salu("s_add_u32", M0, sAm0, b * A_BUF + e * 1024)
                    g.dma(vA[e], srdX, sKA, tag=("dma", stage))
                items.append(f)
            for e in range(nB):
                def f(e=e):
                    g.salu("s_mov_b32", sKB, stage * 64 * ldw)
                    g.salu("s_add_u32", M0, sBm0, b * B_BUF + e * 8192)
                    g.dma(vB[e], srdW, sKB, tag=("dma", stage))
                items.append(f)
            return items

        def issue_dma(stage):
            for f in dma_items(stage):
                f()

        stamp(g, 1)
        issue_dma(0)
        g.barrier()
        stamp(g, 2)

        vXa = [va.get() for _ in range(4)]
        vWa = [va.get() for _ in range(4)]
        vWb = [va.get() for _ in range(4)]
        g.valu("v_and_b32", t0, 31, vLane)
        g.salu("s_lshl_b32", sT0, sI, 5)
        g.valu("v_add_u32", t0, sT0, t0)
        g.valu("v_lshlrev_b32", t0, 7, t0)
        g.valu("v_lshrrev_b32", t1, 5, vLane)
        g.valu("v_bfe_u32", t2, vLane, 1, 3)
        g.valu("v_xor_b32", t1, t1, t2)
        g.valu("v_lshl_add_u32", t0, t1, 4, t0)
        g.valu("v_lshrrev_b32", t1, 5, vLane)
        g.valu("v_bfe_u32", t2, vLane, 2, 2)
        g.valu("v_lshl_add_u32", t1, t1, 3, t2)
        g.valu("v_mul_u32_u24", t1, 448, t1)
        g.valu("v_bfe_u32", t2, vLane, 4, 1)
        g.valu("v_lshl_add_u32", t1, t2, 5, t1)
        g.valu("v_and_b32", t2, 3, vLane)
        g.valu("v_lshl_add_u32", t1, t2, 3, t1)
        g.valu("v_add_u32", t1, B_BASE + j * 64, t1)
        for t in range(4):
            g.salu("s_add_u32", sT0, sI, t + 2 * j)
            g.salu("s_and_b32", sT0, sT0, 3)
            g.salu("s_lshl_b32", sT1, sT0, 5)
            g.valu("v_xor_b32", vXa[t], sT1, t0)
            g.salu("s_mul_i32", sT1, sT0, 16 * 448)
            g.valu("v_add_u32", vWa[t], sT1, t1)
            g.valu("v_add_u32", vWb[t], 2 * B_BUF, vWa[t])

        issue_dma(1)
        side = []
        side += dma_items(2)
        sched = {"n": 3 * U, "k": len(side), "i": 0}
        vRl = [va.get(), va.get()]
        g.valu("v_lshrrev_b32", t1, 5, vLane)
        g.valu("v_and_b32", t2, 31, vLane)
        g.valu("v_lshlrev_b32", t2, 1, t2)
        g.valu("v_lshl_add_u32", vRl[0], t1, 12, t2)
        g.valu("v_add_u32", vRl[1], 8192, vRl[0])
        vL16 = va.get()
        g.valu("v_lshlrev_b32", vL16, 4, vLane)
        g.salu("s_lshr_b32", sT0, sGw, 4)
        g.salu("s_and_b32", sT1, sGw, 15)
        g.salu("s_mul_i32", sF1d, sT1, 144)
        g.salu("s_add_u32", sF1d, sF1d, sT0)
        g.salu("s_lshl_b32", sF1d, sF1d, 10)
        g.salu("s_add_u32", sF1d, sF1d, WS_WF)
        g.salu("s_add_u32", sF2d, sF1d, 128 * 1024)
        g.salu("s_cmp_lt_u32", None, sGw, 256)
        g.salu("s_cselect_b32", sF2d, sF2d, 0x7FFF0000)
        g.salu("s_cmp_ge_u32", None, sT0, 112)
        g.salu("s_cselect_b32", srdAux[0], sWo[0], sW2[0])
        g.salu("s_cselect_b32", srdAux[1], sWo[1], sW2[1])
        g.salu("s_mov_b32", sT3, 1792 * 1024)
        g.salu("s_cselect_b32", srdAux[2], 512 * 1024, sT3)
        g.salu("s_mov_b32", srdAux[3], 0x20000)
        g.salu("s_cselect_b32", sT2, 112, 0)
        g.salu("s_sub_u32", sT2, sT0, sT2)
        g.salu("s_lshl_b32", sF1, sT2, 14)
        g.salu("s_lshl_b32", sT1, sT1, 6)
        g.salu("s_add_u32", sF1, sF1, sT1)
        g.salu("s_add_u32", sT2, sT0, 16)
        g.salu("s_lshl_b32", sF2, sT2, 14)
        g.salu("s_add_u32", sF2, sF2, sT1)
        make_srd(g, srdAux2, sWo, 512 * 1024)
        vR1 = [va.get() for _ in range(8)]
        vR2 = [va.get() for _ in range(8)]
        late = []
        for jj in range(8):
            late.append(lambda jj=jj: g.bload("buffer_load_ushort", vR1[jj], vRl[jj >> 2], srdAux, sF1, (jj & 3) * 1024))
        for jj in range(8):
            late.append(lambda jj=jj: g.bload("buffer_load_ushort", vR2[jj], vRl[jj >> 2], srdAux2, sF2, (jj & 3) * 1024))
        if typ == 0:
            make_srd(g, srdPhi, sWphi, 32 * 512)
            vPh = [va.get() for _ in range(16)]
            vPa, vSign = va.get(), va.get()
            g.valu("v_bfe_u32", t1, vLane, 3, 2)
            g.valu("v_and_b32", t2, 3, vLane)
            g.valu("v_lshl_add_u32", t1, t1, 2, t2)
            g.valu("v_lshlrev_b32", t1, 1, t1)
            g.valu("v_lshrrev_b32", t2, 5, vLane)
            g.valu("v_lshl_add_u32", vPa, t2, 7, t1)
            g.valu("v_bfe_u32", t1, vLane, 2, 1)
            g.salu("s_mov_b32", sT0, 0x80008000)
            g.valu("v_mul_lo_u32", vSign, t1, sT0)
            g.salu("s_lshl_b32", sT0, sNt, 2)
            g.salu("s_add_u32", sT0, sT0, 2 * j)
            g.salu("s_lshl_b32", sPhiOff, sT0, 9)
            for hl in range(2):
                for jj in range(8):
                    late.append(lambda hl=hl, jj=jj: g.bload("buffer_load_ushort", vPh[hl * 8 + jj], vPa, srdPhi, sPhiOff,
                                                             hl * 512 + (8 * (jj >> 2) + (jj & 3)) * 32))

        acc = [va.get(16, 4) for _ in range(U)]
        X = [va.get(4, 4) for _ in range(2)]
        Wf = [[va.get(4, 4) for _ in range(U)] for _ in range(2)]
        vSS = va.get(2, 2)
        vSum, vSq = vSS[0], vSS[1]
        vSum2, vSq2 = va.get(), va.get()
        vCsA = [va.get(4, 4) for _ in range(U)]
        vSel = va.get(4, 4)
        vUn = [va.get() for _ in range(4)]
        g.valu("v_lshrrev_b32", t1, 4, vLane)
        g.valu("v_xor_b32", t1, t1, vLane)
        g.valu("v_and_b32", t1, 1, t1)
        g.valu("v_cmp_eq_u32", VCC, 0, t1)
        g.valu("v_mov_b32", t1, 0)
        g.valu("v_mov_b32", t2, ONES_BF)
        for q in range(4):
            g.valu("v_cndmask_b32", vSel[q], t1, t2, VCC)
        sHiMask = sOnes
        g.salu("s_mov_b32", sHiMask, 0xFFFF0000)
        for z in [vSum, vSq, vSum2, vSq2]:
            g.valu("v_mov_b32", z, 0)

        def rd_x(T):
            s, t = divmod(T, 4)
            g.ds_read("ds_read_b128", X[T & 1], vXa[t], (s % 3) * A_BUF)

        def rd_w(T, u):
            if "nords" in ABL and T > 0:
                return
            s, t = divmod(T, 4)
            b = s % 3
            base, off = (vWa[t], b * B_BUF) if b < 2 else (vWb[t], 0)
            for half in range(2):
                g.ds_read("ds_read_b64_tr_b16", Wf[T & 1][u][2 * half:2 * half + 2], base,
                          off + half * 4 * 448 + u * 128)

        def sent1():
            for q in range(4):
                g.valu("v_mov_b32", va_tmp[0][q], -1)
            g.salu("s_lshl_b32", sT0, sGw, 10)
            g.salu("s_add_u32", sT0, sT0, WS_OF)
            g.bstore("buffer_store_dwordx4", va_tmp[0], vL16, srdWs, sT0, mods=STM)

        def sent2():
            g.salu("s_lshl_b32", sT0, sGw, 10)
            g.salu("s_add_u32", sT0, sT0, WS_KV)
            g.salu("s_cmp_lt_u32", None, sGw, 64)
            g.salu("s_cselect_b32", sT0, sT0, 0x7FFF0000)
            g.bstore("buffer_store_dwordx4", va_tmp[0], vL16, srdWs, sT0, mods=STM)

        late.insert(0, sent1)
        late.insert(1, sent2)

        def relayout_store():
            for n_, (vr, dsto) in enumerate(((vR1, sF1d), (vR2, sF2d))):
                pk = va_tmp[n_]
                for q in range(4):
                    g.valu("v_lshl_or_b32", pk[q], vr[2 * q + 1], 16, vr[2 * q])
                g.bstore("buffer_store_dwordx4", pk, vL16, srdWs, dsto, mods=STM)

        va_tmp = [va.get(4, 4), va.get(4, 4)]

        stamp(g, 3)
        g.wait_vm_tag(("dma", 0))
        g.barrier()
        stamp(g, 4)
        rd_x(0)
        for u in range(U):
            rd_w(0, u)

        for T in range(32):
            s, t = divmod(T, 4)
            cur = T & 1
            last = (T == 31)
            fill = [[] for _ in range(U)]
            if "nodot" not in ABL:
                ops = []
                for r in (2 * j, 2 * j + 1):
                    lo, hi = vUn[2 * (r & 1)], vUn[2 * (r & 1) + 1]
                    ops += [lambda r=r, lo=lo: g.valu("v_lshlrev_b32", lo, 16, X[cur][r]),
                            lambda r=r, hi=hi: g.valu("v_and_b32", hi, sHiMask, X[cur][r]),
                            lambda lo=lo: g.valu("v_add_f32", vSum, vSum, lo),
                            lambda hi=hi: g.valu("v_add_f32", vSum2, vSum2, hi),
                            lambda lo=lo: g.valu("v_fma_f32", vSq, lo, lo, vSq),
                            lambda hi=hi: g.valu("v_fma_f32", vSq2, hi, hi, vSq2)]
                per = 12 // U
                if "nors" in ABL:
                    ops = []
                for u in range(U):
                    fill[u] += ops[u * per:(u + 1) * per]
                if t < U and "nocs" not in ABL:
                    fill[t].insert(0, lambda t=t: g.mfma(vCsA[t], Wf[cur][t], vSel, vCsA[t] if s else 0,
                                                         op="v_mfma_f32_16x16x32_bf16"))
            boundary = (t == 3 and not last)
            for u in range(U):
                if "nomfma" not in ABL or T == 0:
                    g.mfma(acc[u], Wf[cur][u], X[cur], acc[u] if T else 0)
                else:
                    g._wait_for_regs(Wf[cur][u].regs() + X[cur].regs())
                if not boundary and not last:
                    if u == 0:
                        rd_x(T + 1)
                    rd_w(T + 1, u)
                if boundary and u == 1:
                    g.waitcnt(lg=0)
                    g.wait_vm_tag(("dma", s + 1))
                    g.barrier()
                    rd_x(T + 1)
                    for uu in range(U):
                        rd_w(T + 1, uu)
                if boundary and u == 1:
                    assert not side
                    if s + 3 <= 7 and "nodma" not in ABL:
                        side += dma_items(s + 3)
                        sched["n"] = (U - 2) + 3 * U
                        sched["k"] = len(side)
                        sched["i"] = 0
                elif not (boundary and u < 2):
                    did = False
                    if side:
                        i0 = sched["i"]
                        if (i0 + 1) * sched["k"] // sched["n"] > i0 * sched["k"] // sched["n"]:
                            side.pop(0)()
                            did = True
                        sched["i"] += 1
                    if not did and late and T >= 16:
                        late.pop(0)()
                for f in fill[u]:
                    f()
            if T in (7, 15, 23, 31):
                stamp(g, 5 + T // 8)
        assert not side
        while late:
            late.pop(0)()
        vRa, vCa, vRr, vCr = va.get(), va.get(), va.get(), va.get()
        g.valu("v_and_b32", t0, 31, vLane)
        g.valu("v_lshrrev_b32", t2, 5, vLane)
        g.salu("s_lshl_b32", sT0, sI, 5)
        g.valu("v_add_u32", t1, sT0, t0)
        g.valu("v_lshlrev_b32", vRr, 5, t1)
        g.valu("v_add_u32", vRr, RS, vRr)
        g.valu("v_lshl_add_u32", vRa, t2, 3, vRr)
        g.valu("v_lshlrev_b32", vCr, 2, t0)
        g.valu("v_add_u32", vCr, CS + j * 512, vCr)
        g.valu("v_and_b32", t1, 1, vLane)
        g.valu("v_lshlrev_b32", t1, 6, t1)
        g.valu("v_lshrrev_b32", t2, 4, vLane)
        g.valu("v_lshl_add_u32", vCa, t2, 4, t1)
        g.salu("s_lshl_b32", sT0, sI, 7)
        g.salu("s_add_u32", sT0, sT0, CS + j * 512)
        g.valu("v_add_u32", vCa, sT0, vCa)
        g.valu("v_add_f32", vSum, vSum, vSum2)
        g.valu("v_add_f32", vSq, vSq, vSq2)
        g.ds_write("ds_write_b64", vRa, vSS, j * 16)
        g.salu("s_mov_b32", EXEC[0], 0x00030003)
        g.salu("s_mov_b32", EXEC[1], 0x00030003)
        for u in range(U):
            g.ds_write("ds_write_b128", vCa, vCsA[u], u * 1024)
        g.salu("s_mov_b64", EXEC, -1)
        g.waitcnt(lg=0)
        g.barrier()
        stamp(g, 9)
        csr = [va.get(16, 4) for _ in range(2)]
        rsr = csr[0][0:8]
        g.ds_read("ds_read_b128", rsr[0:4], vRr)
        g.ds_read("ds_read_b128", rsr[4:8], vRr, 16)
        cpt = [csr[1][4 * u:4 * u + 4] for u in range(U)]
        for u in range(U):
            for i_ in range(4):
                g.ds_read("ds_read_b32", cpt[u][i_], vCr, u * 1024 + i_ * 128)
        vMean, vVar, vRinv, vNr2 = va.get(), va.get(), va.get(), va.get()
        g.valu("v_add_f32", rsr[0], rsr[0], rsr[2])
        g.valu("v_add_f32", rsr[1], rsr[1], rsr[3])
        g.valu("v_add_f32", rsr[4], rsr[4], rsr[6])
        g.valu("v_add_f32", rsr[5], rsr[5], rsr[7])
        g.valu("v_add_f32", rsr[0], rsr[0], rsr[4])
        g.valu("v_add_f32", rsr[1], rsr[1], rsr[5])
        g.valu("v_mul_f32", vMean, 1.0 / 512, rsr[0])
        g.valu("v_mul_f32", vVar, 1.0 / 512, rsr[1])
        g.valu("v_fma_f32", vVar, Neg(vMean), vMean, vVar)
        MB = X[0]
        g.valu("v_cvt_pk_bf16_f32", MB[0], Neg(vMean), Neg(vMean))
        g.valu("v_cmp_gt_u32", VCC, 32, vLane)
        g.valu("v_mov_b32", MB[2], 0)
        g.valu("v_mov_b32", MB[3], 0)
        g.valu("v_cndmask_b32", MB[0], MB[2], MB[0], VCC)
        g.valu("v_and_b32", MB[1], 0xFFFF, MB[0])
        bf16_round(g, vVar, vVar)
        g.valu("v_add_f32", vVar, 1e-5, vVar)
        bf16_round(g, vVar, vVar)
        g.valu("v_sqrt_f32", vVar, vVar)
        bf16_round(g, vVar, vVar)
        g.valu("v_rcp_f32", vRinv, vVar)
        g.salu("s_mov_b32", sT3, 0x07060302)
        CA = [Wf[0][u] for u in range(U)]
        for u in range(U):
            c = cpt[u]
            g.valu("v_add_f32", c[0], c[0], c[1])
            g.valu("v_add_f32", c[2], c[2], c[3])
            g.valu("v_add_f32", c[0], c[0], c[2])
            g.valu("v_and_b32", c[1], sHiMask, c[0])
            g.valu("v_sub_f32", c[1], c[0], c[1])
            g.valu("v_and_b32", c[2], sHiMask, c[1])
            g.valu("v_sub_f32", c[2], c[1], c[2])
            g.valu("v_perm_b32", CA[u][0], c[1], c[0], sT3)
            g.valu("v_lshrrev_b32", CA[u][1], 16, c[2])
            g.valu("v_mov_b32", CA[u][2], 0)
            g.valu("v_mov_b32", CA[u][3], 0)
            g.mfma(acc[u], CA[u], MB, acc[u])
        g.valu("v_mul_f32", vNr2, -LOG2E, vRinv)
        relayout_store()

        if typ == 1:
            g.salu("s_lshl_b32", sT0, sMt, 2)
            g.salu("s_add_u32", sT0, sT0, sI)
            g.salu("s_mul_i32", sT0, sT0, 112)
            g.salu("s_mul_i32", sT1, sNt, 14)
            g.salu("s_add_u32", sT0, sT0, sT1)
            g.salu("s_add_u32", sT0, sT0, 2 * j)
            g.salu("s_lshl_b32", sOut, sT0, 10)
            e = [va.get() for _ in range(8)]
            pk = [va.get(4, 4) for _ in range(2)]
            g.salu("s_mov_b32", sT2, -LOG2E)
            for u in range(U):
                for m in range(2):
                    rr = range(8 * m, 8 * m + 8)
                    for r in rr:
                        g.valu("v_mul_f32", acc[u][r], vNr2, acc[u][r])
                    for r in rr:
                        g.valu("v_exp_f32", e[r & 7], acc[u][r])
                    for r in rr:
                        g.valu("v_fma_f32", e[r & 7], e[r & 7], sT2, sT2)
                    for r in rr:
                        g.valu("v_rcp_f32", e[r & 7], e[r & 7])
                    for r in rr:
                        g.valu("v_mul_f32", acc[u][r], acc[u][r], e[r & 7])
                    for q in range(4):
                        g.valu("v_cvt_pk_bf16_f32", pk[m][q], acc[u][8 * m + 2 * q], acc[u][8 * m + 2 * q + 1])
                    g.bstore("buffer_store_dwordx4", pk[m], vL16, srdWs, sOut, m * 1024, mods=STM)
                if u + 1 < U:
                    g.salu("s_add_u32", sOut, sOut, 4096)
        else:
            PH = [va.get(4, 4) for _ in range(2)]
            for hl in range(2):
                for q in range(4):
                    g.valu("v_lshl_or_b32", PH[hl][q], vPh[hl * 8 + 2 * q + 1], 16, vPh[hl * 8 + 2 * q])
                    g.valu("v_xor_b32", PH[hl][q], vSign, PH[hl][q])
            for u in (2, 1, 0):
                for r in range(16):
                    g.valu("v_mul_f32", acc[u][r], vRinv, acc[u][r])
            vIm = va.get()
            g.valu("v_and_b32", t0, 31, vLane)
            g.salu("s_lshl_b32", sT0, sI, 5)
            g.valu("v_add_u32", t0, sT0, t0)
            g.valu("v_lshlrev_b32", t0, 6, t0)
            g.valu("v_lshrrev_b32", t1, 5, vLane)
            g.valu("v_lshl_add_u32", vIm, t1, 3, t0)
            assert Wf[1][2].i == Wf[1][1].i + 4
            pk8 = V(Wf[1][1].i, 8)
            D2 = csr
            QF = X
            vMx, vSm = va.get(), va.get()
            for q in range(8):
                g.valu("v_cvt_pk_bf16_f32", pk8[q], acc[2][2 * q], acc[2][2 * q + 1])
            for q in range(4):
                g.ds_write("ds_write_b64", vIm, pk8[2 * q:2 * q + 2], V_IMG + j * 8192 + q * 16)

            def phi(u):
                for hl in range(2):
                    for q in range(4):
                        g.valu("v_cvt_pk_bf16_f32", QF[hl][q], acc[u][8 * hl + 2 * q], acc[u][8 * hl + 2 * q + 1])
                for hl in range(2):
                    g.mfma(D2[hl], PH[hl], QF[hl], 0)

            def softmax(hl):
                D = D2[hl]
                g.valu("v_max3_f32", vMx, D[0], D[1], D[2])
                for r in range(3, 15, 2):
                    g.valu("v_max3_f32", vMx, vMx, D[r], D[r + 1])
                g.valu("v_max_f32", vMx, vMx, D[15])
                g.valu("v_mul_f32", vMx, -LOG2E, vMx)
                for r in range(16):
                    g.valu("v_fma_f32", D[r], D[r], sLog2e, vMx)
                for r in range(16):
                    g.valu("v_exp_f32", D[r], D[r])
                g.valu("v_add_f32", vSm, D[0], D[1])
                for r in range(2, 16):
                    g.valu("v_add_f32", vSm, vSm, D[r])
                g.valu("v_rcp_f32", vSm, vSm)
                for r in range(16):
                    g.valu("v_mul_f32", D[r], vSm, D[r])
                for q in range(8):
                    g.valu("v_cvt_pk_bf16_f32", pk8[q], D[2 * q], D[2 * q + 1])

            sLog2e = sT3
            g.salu("s_mov_b32", sLog2e, LOG2E)
            phi(1)
            for hl in range(2):
                softmax(hl)
                for q in range(4):
                    g.ds_write("ds_write_b64", vIm, pk8[2 * q:2 * q + 2], PHK_IMG + (2 * j + hl) * 8192 + q * 16)
            g.waitcnt(lg=0)
            g.barrier()
            phi(0)
            g.salu("s_lshl_b32", sT0, sMt, 2)
            g.salu("s_add_u32", sT0, sT0, sI)
            g.salu("s_lshl_b32", sT0, sT0, 5)
            g.salu("s_lshl_b32", sT1, sNt, 2)
            g.salu("s_add_u32", sT0, sT0, sT1)
            g.salu("s_add_u32", sT0, sT0, 2 * j)
            g.salu("s_lshl_b32", sOut, sT0, 11)
            g.salu("s_add_u32", sOut, sOut, WS_PQ)
            for hl in range(2):
                softmax(hl)
                for m in range(2):
                    g.bstore("buffer_store_dwordx4", pk8[4 * m:4 * m + 4], vL16, srdWs, sOut, (hl * 2 + m) * 1024, mods=STM)
            if j == 0:
                vKa, vVa, vOne = va.get(), va.get(), va.get()
                g.valu("v_lshrrev_b32", t1, 5, vLane)
                g.valu("v_bfe_u32", t2, vLane, 2, 2)
                g.valu("v_lshl_add_u32", t1, t1, 3, t2)
                g.valu("v_lshlrev_b32", t1, 6, t1)
                g.valu("v_and_b32", t2, 3, vLane)
                g.valu("v_lshl_add_u32", t1, t2, 3, t1)
                g.valu("v_bfe_u32", t2, vLane, 4, 1)
                g.valu("v_lshl_add_u32", t2, t2, 5, t1)
                g.salu("s_lshl_b32", sT0, sI, 13)
                g.valu("v_add_u32", vKa, sT0, t2)
                g.salu("s_lshr_b32", sT0, sI, 1)
                g.salu("s_lshl_b32", sT0, sT0, 13)
                g.salu("s_and_b32", sT1, sI, 1)
                g.salu("s_lshl_b32", sT1, sT1, 5)
                g.salu("s_add_u32", sT0, sT0, sT1)
                g.salu("s_add_u32", sT0, sT0, V_IMG)
                g.valu("v_add_u32", vVa, sT0, t1)
                g.valu("v_mov_b32", vOne, ONES_BF)
                g.salu("s_mov_b32", sMask[0], 0xFFFF0000)
                g.salu("s_mov_b32", sMask[1], 0xFFFF0000)
                KA = [Wf[0][0], Wf[0][1]]
                KB = [Wf[0][2], Wf[1][0]]
                D3 = D2[0]

                def rd_kv(ks):
                    for half in range(2):
                        g.ds_read("ds_read_b64_tr_b16", KA[ks & 1][2 * half:2 * half + 2], vKa, ks * 1024 + half * 256)
                    for half in range(2):
                        g.ds_read("ds_read_b64_tr_b16", KB[ks & 1][2 * half:2 * half + 2], vVa, ks * 1024 + half * 256)

                rd_kv(0)
                for ks in range(8):
                    if ks + 1 < 8:
                        rd_kv(ks + 1)
                    for r in range(4):
                        g.valu("v_cndmask_b32_e64", KB[ks & 1][r], KB[ks & 1][r], vOne, sMask)
                    g.mfma(D3, KA[ks & 1], KB[ks & 1], D3 if ks else 0)
                g.salu("s_lshl_b32", sT0, sMt, 5)
                g.salu("s_lshl_b32", sT1, sNt, 2)
                g.salu("s_add_u32", sT0, sT0, sT1)
                g.salu("s_add_u32", sT0, sT0, sI)
                g.salu("s_lshl_b32", sOut, sT0, 12)
                g.salu("s_add_u32", sOut, sOut, WS_PART)
                for q in range(4):
                    g.bstore("buffer_store_dwordx4", D3[4 * q:4 * q + 4], vL16, srdWs, sOut, q * 1024, mods=STM)
        stamp(g, 10)
        g.waitcnt(vm=0)
        stamp(g, 11)
        stamp(g, 13, True)
        stamp_flush(g, 14, srdWs, sGw, sT0, t0, t1)
        amp(g, sGw, sT0, sT1, sT2)
        g.raw("s_endpgm")
        maxv = max(maxv, va.hi)
        out.append(g.text())
    out.append("hh_k1_exit:\n    s_endpgm\n")
    return name, "".join(out), maxv


def gen_kr():
    name = "hh_kr_kernel"
    CURK[0] = "kr"
    g = Gen()
    sKarg, sWG = S(0, 2), S(2)
    sWs, srdWs = S(4, 2), S(8, 4)
    sW, sT0, sT1, sOff = S(12), S(13), S(14), S(15)
    g.label(name)
    g.salu("s_cmp_ge_u32", None, sWG, 32)
    g.raw("s_cbranch_scc1 hh_kr_exit")
    g.sload(sWs, sKarg, 72)
    vLane, vT, vL16, vL8 = V(1), V(2), V(3), V(4)
    g.valu("v_lshrrev_b32", vT, 6, V(0))
    g.valu("v_and_b32", vLane, 63, V(0))
    g.valu("v_readfirstlane_b32", sW, vT)
    g.valu("v_lshlrev_b32", vL16, 4, vLane)
    g.lg = []
    g.raw("s_waitcnt lgkmcnt(0)")
    make_srd(g, srdWs, sWs, WS_SIZE)
    g.salu("s_lshl_b32", sT0, sWG, 2)
    g.salu("s_add_u32", sT0, sT0, sW)
    g.salu("s_lshl_b32", sOff, sT0, 10)
    g.salu("s_add_u32", sOff, sOff, WS_PART)
    P = [V(8 + 4 * m, 4) for m in range(16)]
    for m in range(16):
        g.bload("buffer_load_dwordx4", P[m], vL16, srdWs, sOff)
        if m < 15:
            g.salu("s_add_u32", sOff, sOff, 32 * 4096)
    for m in range(1, 16):
        for r in range(4):
            g.valu("v_add_f32", P[0][r], P[0][r], P[m][r])
    pk = V(6, 2)
    g.valu("v_cvt_pk_bf16_f32", pk[0], P[0][0], P[0][1])
    g.valu("v_cvt_pk_bf16_f32", pk[1], P[0][2], P[0][3])
    g.salu("s_lshl_b32", sT0, sWG, 11)
    g.salu("s_lshr_b32", sT1, sW, 1)
    g.salu("s_lshl_b32", sT1, sT1, 10)
    g.salu("s_add_u32", sT0, sT0, sT1)
    g.salu("s_and_b32", sT1, sW, 1)
    g.salu("s_lshl_b32", sT1, sT1, 3)
    g.salu("s_add_u32", sT0, sT0, sT1)
    g.salu("s_add_u32", sOff, sT0, WS_KV)
    g.bstore("buffer_store_dwordx2", pk, vL16, srdWs, sOff)
    g.raw("s_endpgm")
    return name, g.text() + "hh_kr_exit:\n    s_endpgm\n", 72


K2_LDS = 48 * 1024


def gen_k2(NS=int(os.environ.get("NS", "28"))):
    name = "hh_k2_kernel"
    CURK[0] = "k2"
    g = Gen()
    out = []
    LIMIT = 0x1000
    K2ABL = os.environ.get("K2ABL", "")
    OM = os.environ.get("OM", "")
    sKarg, sWG = S(0, 2), S(2)
    sX, sWs, sOutp, sDbg = S(4, 2), S(6, 2), S(8, 2), S(10, 2)
    srdX, srdO, srdWs = S(12, 4), S(16, 4), S(20, 4)
    sW, sMt, sNt, sT0, sT1, sT2 = (S(24 + k) for k in range(6))
    g.label(name)
    g.salu("s_cmp_ge_u32", None, sWG, 256)
    g.raw("s_cbranch_scc1 hh_k2_exit")
    stamp(g, 0)
    stamp(g, 12, True)
    g.sload(sWs, sKarg, 72)
    g.sload(sX, sKarg, 0)
    g.sload(S(8, 4), sKarg, 56)
    va = VAlloc(1, 256)
    vLane, vT, vL16 = va.get(), va.get(), va.get()
    g.valu("v_lshrrev_b32", vT, 6, V(0))
    g.valu("v_and_b32", vLane, 63, V(0))
    g.valu("v_readfirstlane_b32", sW, vT)
    g.valu("v_lshlrev_b32", vL16, 4, vLane)
    g.salu("s_and_b32", sT0, sWG, 7)
    g.salu("s_lshl_b32", sT0, sT0, 2)
    g.salu("s_bfe_u32", sT1, sWG, (2 << 16) | 3)
    g.salu("s_or_b32", sMt, sT0, sT1)
    g.salu("s_lshr_b32", sNt, sWG, 5)
    sMtL, sNtL = sMt, sNt
    FK = os.environ.get("K2FAKE", "")
    if FK:
        sMtL, sNtL = S(48), S(49)
        g.salu("s_mov_b32", sMtL, 0 if "m" in FK else sMt)
        g.salu("s_mov_b32", sNtL, 0 if "n" in FK else sNt)
    g.salu("s_cmp_ge_u32", None, sW, 4)
    g.raw("s_cbranch_scc1 hh_k2_aux")
    base_state = g
    out.append(g.text())

    def sentinel_check(g, t, regs):
        regs = list(regs)
        g.valu("v_max3_u32", t, regs[0], regs[1], regs[2])
        i = 3
        while i < len(regs):
            if i + 1 < len(regs):
                g.valu("v_max3_u32", t, t, regs[i], regs[i + 1])
                i += 2
            else:
                g.valu("v_max_u32", t, t, regs[i])
                i += 1
        g.valu("v_cmp_eq_u32", VCC, -1, t)

    g = base_state.fork()
    sH = [S(32), S(33)]
    sWn = [S(34), S(35)]
    sO = [S(36), S(37)]
    sWoN = [S(38), S(39)]
    sOb = [S(40), S(41)]
    sCnt = S(42)
    g.salu("s_mul_i32", sT2, sW, 28)
    for sb in range(2):
        g.salu("s_lshl_b32", sT0, sMtL, 1)
        if sb:
            g.salu("s_add_u32", sT0, sT0, sb)
        g.salu("s_mul_i32", sT1, sT0, 112)
        g.salu("s_add_u32", sT1, sT1, sT2)
        g.salu("s_lshl_b32", sH[sb], sT1, 10)
    for nb in range(2):
        g.salu("s_lshl_b32", sT0, sNtL, 1)
        if nb:
            g.salu("s_add_u32", sT0, sT0, nb)
        g.salu("s_mul_i32", sT0, sT0, 144)
        g.salu("s_add_u32", sT1, sT0, sT2)
        g.salu("s_lshl_b32", sT1, sT1, 10)
        g.salu("s_add_u32", sWn[nb], sT1, WS_WF)
    g.lg = []
    g.raw("s_waitcnt lgkmcnt(0)")
    make_srd(g, srdWs, sWs, WS_SIZE)
    win = {}

    def ld(dst, sreg, off, mods=""):
        w0 = win.get(sreg.i, 0)
        if not (w0 <= off < w0 + 4096):
            g.salu("s_add_u32", sreg, sreg, off - w0)
            win[sreg.i] = w0 = off
        g.bload("buffer_load_dwordx4", dst, vL16, srdWs, sreg, off - w0, mods=mods)

    acc = [[va.get(16, 4) for sb in range(2)] for nb in range(2)]
    vRc, vChk, vXo = va.get(), va.get(), va.get()
    XR = va.get(8, 4)
    slots = [va.get(4, 4) for _ in range(NS)]
    reqs = []
    for k in range(28):
        reqs += [(sWn[0], k * 1024), (sH[0], k * 1024), (sH[1], k * 1024), (sWn[1], k * 1024)]
    for h in range(8):
        reqs += [(sWoN[0], h * 1024), (sO[0], h * 1024, OM), (sO[1], h * 1024, OM), (sWoN[1], h * 1024)]
    issued = [0]

    def slot(q):
        return slots[q % NS]

    def issue_upto(n):
        n = min(n, len(reqs))
        while issued[0] < n:
            q = issued[0]
            ld(slot(q), *reqs[q])
            issued[0] += 1

    stamp(g, 1)
    issue_upto(NS)
    stamp(g, 2)
    make_srd(g, srdX, sX, 2048 * 1024)
    make_srd(g, srdO, sOutp, 2048 * 1024)
    for sb in range(2):
        g.salu("s_lshl_b32", sT0, sMt, 1)
        if sb:
            g.salu("s_add_u32", sT0, sT0, sb)
        g.salu("s_lshl_b32", sT1, sT0, 5)
        g.salu("s_lshl_b32", sT2, sW, 3)
        g.salu("s_add_u32", sT1, sT1, sT2)
        g.salu("s_lshl_b32", sT1, sT1, 10)
        g.salu("s_add_u32", sO[sb], sT1, WS_OF)
        g.salu("s_mov_b32", sOb[sb], sO[sb])
    for nb in range(2):
        g.salu("s_lshl_b32", sT0, sNt, 1)
        if nb:
            g.salu("s_add_u32", sT0, sT0, nb)
        g.salu("s_mul_i32", sT0, sT0, 144)
        g.salu("s_lshl_b32", sT2, sW, 3)
        g.salu("s_add_u32", sT1, sT0, sT2)
        g.salu("s_add_u32", sT1, sT1, 112)
        g.salu("s_lshl_b32", sT1, sT1, 10)
        g.salu("s_add_u32", sWoN[nb], sT1, WS_WF)
    t0, t1 = vRc, vChk
    g.salu("s_and_b32", sT0, sW, 1)
    g.salu("s_lshl_b32", sT0, sT0, 5)
    g.salu("s_lshl_b32", sT1, sMt, 6)
    g.salu("s_add_u32", sT0, sT0, sT1)
    g.valu("v_and_b32", t0, 31, vLane)
    g.valu("v_add_u32", t0, sT0, t0)
    g.valu("v_lshlrev_b32", vXo, 10, t0)
    g.salu("s_lshr_b32", sT0, sW, 1)
    g.salu("s_lshl_b32", sT0, sT0, 6)
    g.salu("s_lshl_b32", sT1, sNt, 7)
    g.salu("s_add_u32", sT0, sT0, sT1)
    g.valu("v_add_u32", vXo, sT0, vXo)
    g.valu("v_lshrrev_b32", t1, 5, vLane)
    g.valu("v_lshl_add_u32", vXo, t1, 3, vXo)

    slow = []
    for k in range(36):
        b = 4 * k
        Wn0, H0, H1, Wn1 = (slot(b + i) for i in range(4))
        if k >= 28 and "noaux" not in K2ABL:
            sentinel_check(g, vChk, [H0[i] for i in range(4)] + [H1[i] for i in range(4)])
            g.salu("s_cmp_eq_u64", None, VCC, 0)
            g.raw(f"s_cbranch_scc0 hh_k2_slow{k}")
            g.label(f"hh_k2_back{k}")
            h = k - 28
            gs = Gen()
            gs.label(f"hh_k2_slow{k}")
            gs.salu("s_mov_b32", sCnt, 0)
            gs.salu("s_add_u32", sT0, sOb[0], h * 1024)
            gs.salu("s_add_u32", sT1, sOb[1], h * 1024)
            gs.label(f"hh_k2_spin{k}")
            gs.raw("s_sleep 4")
            gs.bload("buffer_load_dwordx4", H0, vL16, srdWs, sT0, mods="sc1")
            gs.bload("buffer_load_dwordx4", H1, vL16, srdWs, sT1, mods="sc1")
            gs.salu("s_add_u32", sCnt, sCnt, 1)
            gs.raw("s_waitcnt vmcnt(0)")
            gs.vm = []
            sentinel_check(gs, vChk, [H0[i] for i in range(4)] + [H1[i] for i in range(4)])
            gs.salu("s_cmp_ge_u32", None, sCnt, LIMIT)
            gs.raw(f"s_cbranch_scc1 hh_k2_back{k}")
            gs.salu("s_cmp_eq_u64", None, VCC, 0)
            gs.raw(f"s_cbranch_scc0 hh_k2_spin{k}")
            gs.raw(f"s_branch hh_k2_back{k}")
            slow.append(gs.text())
        def mf(d, a_, b_):
            if "nomfma" in K2ABL and k:
                g._wait_for_regs(a_.regs() + b_.regs())
            else:
                g.mfma(d, a_, b_, d if k else 0)
        mf(acc[0][0], Wn0, H0)
        mf(acc[0][1], Wn0, H1)
        issue_upto(b + 1 + NS)
        mf(acc[1][0], Wn1, H0)
        issue_upto(b + 2 + NS)
        mf(acc[1][1], Wn1, H1)
        issue_upto(b + 4 + NS)
        if k == 29:
            for q in range(4):
                g.bload("buffer_load_dwordx2", XR[2 * q:2 * q + 2], vXo, srdX, 0, q * 16)
        if k in (0, 6, 13, 20, 27, 31, 35):
            stamp(g, 3 + (0, 6, 13, 20, 27, 31, 35).index(k))
    g.waitcnt(vm=0)
    for w in range(1, 4):
        g.salu("s_cmp_eq_u32", None, sW, w)
        g.raw(f"s_cbranch_scc1 hh_k2_ep{w}")
    out.append(g.text())
    ep_state = g
    assert NS >= 20
    for w in range(4):
        g = ep_state.fork()
        g.label(f"hh_k2_ep{w}")
        quads = [(0, 0), (0, 1), (1, 0), (1, 1)]
        for Q in range(4):
            if Q == w:
                continue
            k_ = (w - Q - 1) % 4
            nb, sb = quads[Q]
            for q in range(4):
                g.ds_write("ds_write_b128", vL16, acc[nb][sb][4 * q:4 * q + 4], (Q * 3 + k_) * 4096 + q * 1024)
        own = acc[quads[w][0]][quads[w][1]]
        g.nop(8)
        tx = V(slots[12].i, 16)
        for r in range(16):
            src = XR[r >> 1]
            if r & 1:
                g.valu("v_and_b32", tx[r], 0xFFFF0000, src)
            else:
                g.valu("v_lshlrev_b32", tx[r], 16, src)
        for r in range(16):
            g.valu("v_add_f32", own[r], own[r], tx[r])
        g.waitcnt(lg=0)
        g.barrier()
        RD = [V(slots[4 * k_].i, 16) for k_ in range(3)]
        for k_ in range(3):
            for q in range(4):
                g.ds_read("ds_read_b128", RD[k_][4 * q:4 * q + 4], vL16, (w * 3 + k_) * 4096 + q * 1024)
        for r in range(16):
            g.valu("v_add_f32", own[r], own[r], RD[0][r])
        for r in range(16):
            g.valu("v_add_f32", RD[1][r], RD[1][r], RD[2][r])
        for r in range(16):
            g.valu("v_add_f32", own[r], own[r], RD[1][r])
        po = V(slots[16].i, 8)
        for q in range(8):
            g.valu("v_cvt_pk_bf16_f32", po[q], own[2 * q], own[2 * q + 1])
        for i_ in range(2):
            g.valu("v_permlane32_swap_b32", [po[i_], po[2 + i_]])
            g.valu("v_permlane32_swap_b32", [po[4 + i_], po[6 + i_]])
        g.valu("v_lshrrev_b32", vRc, 5, vLane)
        g.valu("v_lshl_add_u32", vXo, vRc, 3, vXo)
        g.bstore("buffer_store_dwordx4", po[0:4], vXo, srdO, 0)
        g.bstore("buffer_store_dwordx4", po[4:8], vXo, srdO, 0, 32)
        stamp(g, 10)
        if STAMPS == "k2":
            g.waitcnt(vm=0)
        stamp(g, 11)
        stamp(g, 13, True)
        g.salu("s_lshl_b32", sT2, sWG, 3)
        g.salu("s_add_u32", sT2, sT2, sW)
        stamp_flush(g, 14, srdWs, sT2, sT0, vRc, vChk)
        amp(g, sT2, sT0, sT1, S(43))
        g.raw("s_endpgm")
        out.append(g.text())
    out += slow

    g = base_state.fork()
    g.label("hh_k2_aux")
    if "noaux" in K2ABL:
        g.raw("s_endpgm")
    g.raw("s_setprio 3")
    sOff, sHd, sKVh, sCnt = S(32), S(33), S(34), S(35)
    sPQ = [S(36), S(37)]
    sOo = [S(38), S(39)]
    vA, vPr, vP, vRc = V(4), V(5), V(6), V(7)
    P = [V(8 + 4 * m, 4) for m in range(8)]
    PQ = [[V(40 + 8 * sb + 4 * m, 4) for m in range(2)] for sb in range(2)]
    KV = [V(56, 4), V(60, 4)]
    D = [V(64, 16), V(80, 16)]
    O = [V(96, 4), V(100, 4)]
    pk, pc = V(104, 4), V(108, 4)
    g.salu("s_lshl_b32", sHd, sNt, 2)
    g.salu("s_add_u32", sHd, sHd, sW)
    g.salu("s_sub_u32", sHd, sHd, 4)
    for sb in range(2):
        g.salu("s_lshl_b32", sT0, sMt, 1)
        if sb:
            g.salu("s_add_u32", sT0, sT0, sb)
        g.salu("s_lshl_b32", sT0, sT0, 5)
        g.salu("s_add_u32", sT0, sT0, sHd)
        g.salu("s_lshl_b32", sT1, sT0, 11)
        g.salu("s_add_u32", sPQ[sb], sT1, WS_PQ)
        g.salu("s_lshl_b32", sT1, sT0, 10)
        g.salu("s_add_u32", sOo[sb], sT1, WS_OF)
    g.salu("s_lshl_b32", sKVh, sHd, 11)
    g.salu("s_add_u32", sKVh, sKVh, WS_KV)
    g.valu("v_lshlrev_b32", vPr, 8, vLane)
    g.valu("v_and_b32", vA, 15, vLane)
    g.valu("v_lshlrev_b32", vA, 4, vA)
    g.valu("v_bfe_u32", vT, vLane, 4, 1)
    g.valu("v_lshl_add_u32", vP, vT, 10, vA)
    g.valu("v_lshrrev_b32", vT, 5, vLane)
    g.valu("v_lshl_add_u32", vP, vT, 17, vP)
    g.salu("s_lshr_b32", sT0, sWG, 2)
    g.salu("s_lshl_b32", sOff, sT0, 11)
    g.salu("s_and_b32", sT1, sWG, 3)
    g.salu("s_lshl_b32", sT1, sT1, 8)
    g.salu("s_add_u32", sOff, sOff, sT1)
    g.salu("s_add_u32", sOff, sOff, WS_PART)
    g.lg = []
    g.raw("s_waitcnt lgkmcnt(0)")
    make_srd(g, srdWs, sWs, WS_SIZE)
    for sb in range(2):
        for m in range(2):
            g.bload("buffer_load_dwordx4", PQ[sb][m], vL16, srdWs, sPQ[sb], m * 1024)
    g.salu("s_cmp_lg_u32", None, sW, 4)
    g.raw("s_cbranch_scc1 hh_k2_await")
    for m in range(8):
        g.bload("buffer_load_dwordx4", P[m], vP, srdWs, sOff)
        if m < 7:
            g.salu("s_add_u32", sOff, sOff, 2 * 32 * 4096)
    stamp(g, 1)
    for st in (1, 2, 4):
        for m in range(0, 8, 2 * st):
            for r in range(4):
                g.valu("v_add_f32", P[m][r], P[m][r], P[m + st][r])
    for r in range(4):
        g.valu("v_mov_b32", pc[r], P[0][r])
    for r in range(4):
        g.valu("v_permlane32_swap_b32", [P[0][r], pc[r]])
    for r in range(4):
        g.valu("v_add_f32", P[0][r], P[0][r], pc[r])
    g.valu("v_cvt_pk_bf16_f32", pk[0], P[0][0], P[0][1])
    g.valu("v_cvt_pk_bf16_f32", pk[1], P[0][2], P[0][3])
    g.valu("v_mov_b32", pk[2], pk[0])
    g.valu("v_mov_b32", pk[3], pk[1])
    g.valu("v_mov_b32", pc[0], pk[0])
    g.valu("v_mov_b32", pc[1], pk[1])
    g.valu("v_permlane16_swap_b32", [pc[0], pk[2]])
    g.valu("v_permlane16_swap_b32", [pc[1], pk[3]])
    g.salu("s_lshl_b32", sOff, sWG, 8)
    g.salu("s_add_u32", sOff, sOff, WS_KV)
    g.salu("s_mov_b64", EXEC, 0xFFFF)
    g.bstore("buffer_store_dwordx4", pk, vA, srdWs, sOff, mods="sc1")
    g.salu("s_mov_b64", EXEC, -1)
    stamp(g, 2)
    g.raw(f"s_sleep {os.environ.get('ISL0', '32')}")
    g.label("hh_k2_ojob")
    g.nop(4)
    stamp(g, 3)
    g.salu("s_mov_b32", sCnt, 0)
    for m in range(2):
        g.bload("buffer_load_dwordx4", KV[m], vL16, srdWs, sKVh, m * 1024, mods=os.environ.get("KVM", ""))
    g.label("hh_k2_kvchk")
    g.salu("s_add_u32", sCnt, sCnt, 1)
    g.raw("s_waitcnt vmcnt(0)")
    g.vm = []
    sentinel_check(g, vP, [KV[0][i] for i in range(4)] + [KV[1][i] for i in range(4)])
    g.salu("s_cmp_ge_u32", None, sCnt, LIMIT)
    g.raw("s_cbranch_scc1 hh_k2_kvok")
    g.salu("s_cmp_eq_u64", None, VCC, 0)
    g.raw("s_cbranch_scc1 hh_k2_kvok")
    g.raw(f"s_sleep {os.environ.get('PSL', '8')}")
    for m in range(2):
        g.bload("buffer_load_dwordx4", KV[m], vL16, srdWs, sKVh, m * 1024, mods="sc1")
    g.raw("s_branch hh_k2_kvchk")
    g.vm = []
    g.label("hh_k2_kvok")
    stamp(g, 4)
    for sb in range(2):
        g.mfma(D[sb], KV[0], PQ[sb][0], 0)
    for sb in range(2):
        g.mfma(D[sb], KV[1], PQ[sb][1], D[sb])
    for sb in range(2):
        g.valu("v_add_f32", vRc, 1e-6, D[sb][8])
        g.valu("v_rcp_f32", vRc, vRc)
        for r in range(8):
            g.valu("v_mul_f32", D[sb][r], vRc, D[sb][r])
        for q in range(4):
            g.valu("v_cvt_pk_bf16_f32", O[sb][q], D[sb][2 * q], D[sb][2 * q + 1])
        g.bstore("buffer_store_dwordx4", O[sb], vL16, srdWs, sOo[sb], mods="sc1")
    if STAMPS == "k2":
        stamp(g, 5)
        g.waitcnt(vm=0)
        for i_ in range(6, 12):
            stamp(g, i_)
        stamp(g, 13, True)
        g.raw("s_waitcnt lgkmcnt(0)")
        g.salu("s_add_u32", S(72 + 14), S(72), sCnt)
        g.salu("s_lshl_b32", sT2, sWG, 3)
        g.salu("s_add_u32", sT2, sT2, sW)
        stamp_flush(g, 14, srdWs, sT2, sT0, V(6), V(7))
    g.raw("s_endpgm")
    g.label("hh_k2_await")
    g.raw(f"s_sleep {os.environ.get('ISL', '96')}")
    g.raw("s_branch hh_k2_ojob")
    out.append(g.text())
    return name, "".join(out) + "hh_k2_exit:\n    s_endpgm\n", max(va.hi, 112)


def descriptor(name, nv):
    nv4 = (nv + 3) // 4 * 4
    return f""".amdhsa_kernel {name}
  .amdhsa_next_free_vgpr {nv4}
  .amdhsa_next_free_sgpr 102
  .amdhsa_accum_offset {nv4}
  .amdhsa_group_segment_fixed_size 0
  .amdhsa_kernarg_size 80
  .amdhsa_user_sgpr_count 2
  .amdhsa_user_sgpr_kernarg_segment_ptr 1
  .amdhsa_system_sgpr_workgroup_id_x 1
.end_amdhsa_kernel
"""


def main(path):
    ks = [gen_k1(), gen_k2()]
    launches = [
        f"; @launch kernel=hh_k1_kernel grid=(256,1,1) block=(512,1,1) lds={K1_LDS}",
        f"; @launch kernel=hh_k2_kernel grid=(256,1,1) block=(512,1,1) lds={K2_LDS}",
    ]
    if KR:
        ks.append(gen_kr())
        launches.insert(1, "; @launch kernel=hh_kr_kernel grid=(32,1,1) block=(256,1,1) lds=0")
    s = "; hedgehog linear attention + SiLU FFN parallel block (generated by my own generator script)\n"
    s += "\n".join(launches) + "\n"
    s += '.amdgcn_target "amdgcn-amd-amdhsa--gfx950"\n.text\n'
    for name, txt, nv in ks:
        s += f".globl {name}\n.p2align 8\n.type {name},@function\n" + txt
    s += "hh_code_end:\n"
    s += '.section .rodata,"a"\n'
    for name, txt, nv in ks:
        s += ".p2align 6\n" + descriptor(name, nv)
        print(name, "vgprs", nv, "lines", txt.count("\n"), file=sys.stderr)
    open(path, "w").write(s)


if __name__ == "__main__":
    if len(sys.argv) > 2 and sys.argv[2].startswith("stamps"):
        STAMPS = sys.argv[2][6:] or "k1"
        ABL.update(sys.argv[3:])
    main(sys.argv[1] if len(sys.argv) > 1 else
         "parallel_sum__linear_kernel_hedgehog__dense_activation_silu__prompt.s")
```

```python
import sys
from asmlib import *

WS_HF = 0x0
WS_PQ = 0x700000
WS_WF = 0xB00000
WS_PART = 0xE00000
WS_KV = 0x1000000
WS_OF = 0x1100000
WS_SIZE = 0x1300000

LOG2E = 1.4426950408889634
ONES_BF = 0x3F803F80

A_BUF = 16384
B_BASE = 49152
B_BUF = 28672
RS = 135168
CS = RS + 4096
PHI_L = RS + 4096 + 7 * 1024
RL_L = PHI_L + 2048
K1_LDS = RL_L + 8192
PHK_IMG = 0
V_IMG = 32768


def make_srd(g, srd, base, nbytes, off=None):
    if off is None:
        g.salu("s_mov_b32", srd[0], base[0])
        g.salu("s_mov_b32", srd[1], base[1])
    else:
        g.salu("s_add_u32", srd[0], base[0], off)
        g.salu("s_addc_u32", srd[1], base[1], 0)
    g.salu("s_mov_b32", srd[2], nbytes)
    g.salu("s_mov_b32", srd[3], 0x20000)


STAMPS = False
import os
KR = os.environ.get("KR", "") == "1"
CPF = os.environ.get("CPF", "1") == "1"
TCH = os.environ.get("TCH", "1") == "1"
TSCH = [int(x) for x in os.environ.get("TSCH", "-9,-1,1,4,8,12").split(",")]
GT = os.environ.get("GT", "")
GP = int(os.environ.get("GP", "1"))
ROT = int(os.environ.get("ROT", "0"))
EARLY = os.environ.get("EARLY", "1") == "1"
LATE_T = int(os.environ.get("LATE_T", "28" if EARLY else "16"))
import os
STM = os.environ.get("STM", "sc0 sc1")
ABL = set()
WS_DBG = 0x1080000


CURK = [None]


def STREG(idx):
    return {12: 100, 13: 70}.get(idx, 72 + 2 * idx)


def stamp(g, idx, real=False):
    if STAMPS == CURK[0]:
        g.raw(f"{'s_memrealtime' if real else 's_memtime'} s[{STREG(idx)}:{STREG(idx) + 1}]")


def stamp_flush(g, n, srdWs, sGw, sT, vtmp, vtmp2):
    if STAMPS != CURK[0]:
        return
    g.raw("s_waitcnt lgkmcnt(0)")
    g.salu("s_lshl_b32", sT, sGw, 6)
    g.salu("s_add_u32", sT, sT, WS_DBG)
    g.valu("v_mov_b32", vtmp2, 0)
    for i in range(n):
        g.valu("v_mov_b32", vtmp, S(STREG(i)))
        g.bstore("buffer_store_dword", vtmp, vtmp2, srdWs, sT, 4 * i)


AMPN = [0]


def amp(g, sGw, sT0, sT1, sT2):
    A = os.environ.get("AMP", "")
    if not A or STAMPS != CURK[0]:
        return
    a, b, sh = (int(x) for x in A.split(","))
    n = AMPN[0]
    AMPN[0] += 1
    g.raw("s_waitcnt lgkmcnt(0)")
    if int(os.environ.get("AMPW", "0")) >= 0:
        g.salu("s_cmp_eq_u32", None, sGw, int(os.environ.get("AMPW", "0")))
        g.raw(f"s_cbranch_scc0 hh_amp_skip{n}")
    elif int(os.environ.get("AMPW", "0")) == -2:
        g.salu("s_cmp_lt_u32", None, sGw, 1024)
        g.raw(f"s_cbranch_scc0 hh_amp_skip{n}")
    g.salu("s_sub_u32", sT0, S(STREG(b)), S(STREG(a)))
    if sh >= 0:
        g.salu("s_lshl_b32", sT0, sT0, sh)
    else:
        g.salu("s_lshr_b32", sT0, sT0, -sh)
    g.salu("s_min_u32", sT0, sT0, 20000)
    g.raw("s_memrealtime s[100:101]")
    g.raw("s_waitcnt lgkmcnt(0)")
    g.salu("s_add_u32", sT1, S(100), sT0)
    g.label(f"hh_amp_loop{n}")
    g.raw("s_sleep 2")
    g.raw("s_memrealtime s[100:101]")
    g.raw("s_waitcnt lgkmcnt(0)")
    g.salu("s_sub_u32", sT2, sT1, S(100))
    g.salu("s_cmp_gt_i32", None, sT2, 0)
    g.raw(f"s_cbranch_scc1 hh_amp_loop{n}")
    g.label(f"hh_amp_skip{n}")


def bf16_round(g, dst, src):
    g.valu("v_cvt_pk_bf16_f32", dst, src, src)
    g.valu("v_lshlrev_b32", dst, 16, dst)


def gen_k1():
    name = "hh_k1_kernel"
    CURK[0] = "k1"
    g = Gen()
    out = []
    sKarg, sWG = S(0, 2), S(2)
    sX, sWqkv, sWphi, sWo, sW1, sW2, sWs = S(4, 2), S(6, 2), S(8, 2), S(10, 2), S(12, 2), S(14, 2), S(16, 2)
    srdX, srdW, srdWs, srdAux, srdAux2, srdPhi = S(20, 4), S(24, 4), S(28, 4), S(32, 4), S(36, 4), S(40, 4)
    sW, sI, sJ, sMt, sNt, sType, sXcd, sIdx = (S(44 + k) for k in range(8))
    sT0, sT1, sT2, sT3 = S(52), S(53), S(54), S(55)
    sKA, sKB, sAm0, sBm0, sOnes, sGw = S(56), S(57), S(58), S(59), S(60), S(61)
    sMask = S(62, 2)
    sF1, sF2, sF1d, sF2d = S(64), S(65), S(66), S(67)
    sOut = S(68)
    sPhiOff = S(69)
    sRm0 = S(18)

    g.label(name)
    g.salu("s_cmp_ge_u32", None, sWG, 256)
    g.raw("s_cbranch_scc1 hh_k1_exit")
    stamp(g, 0)
    stamp(g, 12, True)
    g.sload(S(4, 4), sKarg, 0)
    g.sload(S(8, 4), sKarg, 16)
    g.sload(S(12, 4), sKarg, 40)
    g.sload(S(16, 2), sKarg, 72)
    vTid = V(0)
    vLane, vT = V(1), V(2)
    g.valu("v_lshrrev_b32", vT, 6, vTid)
    g.valu("v_and_b32", vLane, 63, vTid)
    g.valu("v_readfirstlane_b32", sW, vT)
    g.salu("s_and_b32", sXcd, sWG, 7)
    g.salu("s_lshr_b32", sIdx, sWG, 3)
    if CPF:
        sPc = S(70, 2)
        g.raw(f"s_getpc_b64 {sPc}")
        g.label("hh_k1_pc")
        g.raw(f"s_sub_u32 {sPc[0]}, {sPc[0]}, hh_k1_pc-hh_k1_kernel")
        g.raw(f"s_subb_u32 {sPc[1]}, {sPc[1]}, 0")
        g.salu("s_and_b32", sT0, sIdx, 7)
        g.salu("s_lshl_b32", sT0, sT0, 13)
        g.valu("v_lshrrev_b32", V(3), 3, vTid)
        g.valu("v_lshl_add_u32", V(3), V(3), 7, sT0)
        g.raw("v_min_u32 v3, hh_code_end-hh_k1_kernel-4, v3")
        g.raw(f"global_load_dword v4, v3, {sPc}")
        g.vm.append({"regs": {("v", 4)}, "tag": "cpf"})
    g.salu("s_and_b32", sT0, sXcd, 1)
    g.salu("s_lshl_b32", sT0, sT0, 3)
    g.salu("s_and_b32", sT1, sIdx, 7)
    g.salu("s_or_b32", sMt, sT0, sT1)
    g.salu("s_lshr_b32", sType, sIdx, 4)
    g.salu("s_lshr_b32", sT0, sXcd, 1)
    g.salu("s_lshl_b32", sT0, sT0, 1)
    g.salu("s_bfe_u32", sT1, sIdx, (1 << 16) | 3)
    g.salu("s_or_b32", sNt, sT0, sT1)
    g.salu("s_and_b32", sI, sW, 3)
    g.salu("s_lshr_b32", sJ, sW, 2)
    g.salu("s_lshl_b32", sT0, sWG, 3)
    g.salu("s_add_u32", sGw, sT0, sW)
    g.salu("s_mov_b32", sOnes, ONES_BF)
    sRot = S(3)
    if ROT == 1:
        g.salu("s_lshl_b32", sT0, sXcd, 2)
        g.salu("s_and_b32", sRot, sXcd, 6)
        g.salu("s_add_u32", sRot, sRot, sT0)
    elif ROT == 2:
        g.salu("s_and_b32", sRot, sXcd, 6)
    elif ROT == 3:
        g.salu("s_and_b32", sRot, sXcd, 1)
        g.salu("s_lshl_b32", sRot, sRot, 2)
    elif ROT == 4:
        g.salu("s_and_b32", sRot, sXcd, 4)
    g.salu("s_lshl_b32", sT0, sType, 1)
    g.salu("s_add_u32", sT0, sT0, sJ)
    g.salu("s_cmp_eq_u32", None, sT0, 1)
    g.raw("s_cbranch_scc1 hh_k1_r1")
    g.salu("s_cmp_eq_u32", None, sT0, 2)
    g.raw("s_cbranch_scc1 hh_k1_r2")
    g.salu("s_cmp_eq_u32", None, sT0, 3)
    g.raw("s_cbranch_scc1 hh_k1_r3")
    out.append(g.text())
    base_state = g
    maxv = 0

    for role in range(4):
        typ, j = role >> 1, role & 1
        g = base_state.fork()
        g.label(f"hh_k1_r{role}")
        va = VAlloc(5, 256)
        U = 4 if (typ == 1 and j == 0) else 3
        ldw = 3584 if typ else 3072
        nB = 4 if j == 1 else 3
        vA = [va.get() for _ in range(2)]
        vB = [va.get() for _ in range(nB)]
        t0, t1, t2, t3 = va.get(), va.get(), va.get(), va.get()
        g.valu("v_lshrrev_b32", t0, 3, vLane)
        g.valu("v_lshrrev_b32", t1, 4, vLane)
        g.valu("v_and_b32", t2, 7, vLane)
        g.salu("s_lshl_b32", sT0, sW, 4)
        for e in range(2):
            g.valu("v_add_u32", t3, sT0, t0)
            if e:
                g.valu("v_add_u32", t3, 8, t3)
            g.valu("v_lshlrev_b32", vA[e], 10, t3)
            g.valu("v_xor_b32", t3, t2, t1)
            if e:
                g.valu("v_xor_b32", t3, 4, t3)
            g.valu("v_lshl_add_u32", vA[e], t3, 4, vA[e])
        g.salu("s_add_u32", sT1, sW, 4)
        g.salu("s_and_b32", sT1, sT1, 7)
        g.salu("s_lshl_b32", sBm0, sT1, 10)
        g.salu("s_add_u32", sBm0, sBm0, B_BASE)
        g.salu("s_lshl_b32", sAm0, sW, 11)
        g.salu("s_lshl_b32", sT1, sT1, 6)
        for e in range(nB):
            g.valu("v_add_u32", t0, sT1, vLane)
            if e:
                g.valu("v_add_u32", t0, 512 * e, t0)
            g.valu("v_mul_u32_u24", t1, 2341, t0)
            g.valu("v_lshrrev_b32", t1, 16, t1)
            g.valu("v_mul_u32_u24", t2, 28, t1)
            g.valu("v_sub_u32", t2, t0, t2)
            g.valu("v_mul_u32_u24", vB[e], ldw, t1)
            if typ == 1:
                g.valu("v_lshl_add_u32", vB[e], t2, 4, vB[e])
            else:
                g.valu("v_lshrrev_b32", t3, 3, t2)
                g.valu("v_lshl_add_u32", vB[e], t3, 10, vB[e])
                g.valu("v_and_b32", t3, 7, t2)
                g.valu("v_lshl_add_u32", vB[e], t3, 4, vB[e])
                g.valu("v_cmp_le_u32", VCC, 24, t2)
                g.valu("v_mov_b32", t3, 0x80000000)
                g.valu("v_cndmask_b32", vB[e], vB[e], t3, VCC)
        g.salu("s_mov_b32", sKA, 0)
        g.salu("s_mov_b32", sKB, 0)
        g.lg = []
        g.raw("s_waitcnt lgkmcnt(0)")
        g.salu("s_lshl_b32", sT0, sMt, 17)
        make_srd(g, srdX, sX, 131072, sT0)
        if typ == 0:
            g.salu("s_lshl_b32", sT0, sNt, 7)
            make_srd(g, srdW, sWqkv, 512 * 3072 - 7 * 128, sT0)
        else:
            g.salu("s_mul_i32", sT0, sNt, 448)
            make_srd(g, srdW, sW1, 512 * 3584 - 7 * 448, sT0)
        make_srd(g, srdWs, sWs, WS_SIZE)

        def dma_items(stage):
            b = stage % 3
            items = []
            for e in range(2):
                def f(e=e):
                    if not ROT:
                        g.salu("s_mov_b32", sKA, stage * 128)
                    elif e == 0:
                        g.salu("s_add_u32", sKB, sRot, stage)
                        g.salu("s_and_b32", sKB, sKB, 7)
                        g.salu("s_lshl_b32", sKA, sKB, 7)
                        g.salu("s_mul_i32", sKB, sKB, 64 * ldw)
                    g.salu("s_add_u32", M0, sAm0, b * A_BUF + e * 1024)
                    g.dma(vA[e], srdX, sKA, tag=("dma", stage))
                items.append(f)
            for e in range(nB):
                def f(e=e):
                    if not ROT:
                        g.salu("s_mov_b32", sKB, stage * 64 * ldw)
                    g.salu("s_add_u32", M0, sBm0, b * B_BUF + e * 8192)
                    g.dma(vB[e], srdW, sKB, tag=("dma", stage))
                items.append(f)
            return items

        def issue_dma(stage):
            for f in dma_items(stage):
                f()

        def gtouch():
            srdT, sBy = srdAux, S(19)
            tens = [(sX, 8192, "x"), (sWqkv, 6144, "w"), (sW1, 7168, "w"), (sW2, 7168, "f")] if j == 0 else \
                   [(sWo, 2048, "f")]
            g.salu("s_mov_b32", sBy, 0)
            g.salu("s_mov_b32", srdT[0], sX[0])
            g.salu("s_mov_b32", srdT[1], sX[1])
            for i_, (bs, by, fl) in enumerate(tens):
                if fl not in GT:
                    continue
                g.salu("s_cmp_eq_u32", None, sI, i_)
                g.salu("s_cselect_b32", srdT[0], bs[0], srdT[0])
                g.salu("s_cselect_b32", srdT[1], bs[1], srdT[1])
                g.salu("s_cselect_b32", sBy, by, sBy)
            g.salu("s_lshl_b32", srdT[2], sBy, 8)
            g.salu("s_mov_b32", srdT[3], 0x20000)
            g.valu("v_lshlrev_b32", V(3), 7, vLane)
            g.valu("v_cmp_le_u32", VCC, sBy, V(3))
            g.valu("v_mov_b32", t3, 0x80000000)
            g.valu("v_cndmask_b32", V(3), V(3), t3, VCC)
            g.salu("s_mul_i32", sBy, sBy, sWG)
            g.raw(f"buffer_load_dword v4, v3, {srdT}, {sBy} offen")
            g.vm.append({"regs": set(), "tag": "touch"})

        stamp(g, 1)
        issue_dma(0)
        if GT and GP == 0:
            gtouch()
        g.barrier()
        stamp(g, 2)

        vXa = [va.get() for _ in range(4)]
        vWa = [va.get() for _ in range(4)]
        vWb = [va.get() for _ in range(4)]
        g.valu("v_and_b32", t0, 31, vLane)
        g.salu("s_lshl_b32", sT0, sI, 5)
        g.valu("v_add_u32", t0, sT0, t0)
        g.valu("v_lshlrev_b32", t0, 7, t0)
        g.valu("v_lshrrev_b32", t1, 5, vLane)
        g.valu("v_bfe_u32", t2, vLane, 1, 3)
        g.valu("v_xor_b32", t1, t1, t2)
        g.valu("v_lshl_add_u32", t0, t1, 4, t0)
        g.valu("v_lshrrev_b32", t1, 5, vLane)
        g.valu("v_bfe_u32", t2, vLane, 2, 2)
        g.valu("v_lshl_add_u32", t1, t1, 3, t2)
        g.valu("v_mul_u32_u24", t1, 448, t1)
        g.valu("v_bfe_u32", t2, vLane, 4, 1)
        g.valu("v_lshl_add_u32", t1, t2, 5, t1)
        g.valu("v_and_b32", t2, 3, vLane)
        g.valu("v_lshl_add_u32", t1, t2, 3, t1)
        g.valu("v_add_u32", t1, B_BASE + j * 64, t1)
        for t in range(4):
            g.salu("s_add_u32", sT0, sI, t + 2 * j)
            g.salu("s_and_b32", sT0, sT0, 3)
            g.salu("s_lshl_b32", sT1, sT0, 5)
            g.valu("v_xor_b32", vXa[t], sT1, t0)
            g.salu("s_mul_i32", sT1, sT0, 16 * 448)
            g.valu("v_add_u32", vWa[t], sT1, t1)
            g.valu("v_add_u32", vWb[t], 2 * B_BUF, vWa[t])

        issue_dma(1)
        if GT and GP == 1:
            gtouch()
        TCHr = TCH and j == 0
        if TCHr:
            vTo, vTd = va.get(), V(4)
            srdT, sCh = S(96, 4), S(19)
            tens = [(sX, 2048 * 1024, 8, 1024, 8192, 128),
                    (sWqkv, 512 * 3072, 6, 128, 768, 64 * 3072),
                    (sW1, 512 * 3584, 7, 128, 896, 64 * 3584)]
            g.salu("s_mov_b32", srdT[0], sX[0])
            g.salu("s_mov_b32", srdT[1], sX[1])
            g.salu("s_mov_b32", srdT[2], 0)
            g.salu("s_mov_b32", srdT[3], 0x20000)
            g.salu("s_mov_b32", sCh, 0)
            g.salu("s_mov_b32", sT0, 0)
            g.salu("s_mov_b32", sT1, 0)
            g.salu("s_mov_b32", sT2, 7)
            for i_, (bs, sz, nl, ls, pc_, ch) in enumerate(tens):
                g.salu("s_cmp_eq_u32", None, sI, i_)
                if i_:
                    g.salu("s_cselect_b32", srdT[0], bs[0], srdT[0])
                    g.salu("s_cselect_b32", srdT[1], bs[1], srdT[1])
                else:
                    g.salu("s_cselect_b32", sT2, 10, sT2)
                g.salu("s_cselect_b32", srdT[2], sz, srdT[2])
                g.salu("s_cselect_b32", sCh, ch, sCh)
                g.salu("s_cselect_b32", sT0, nl, sT0)
                g.salu("s_cselect_b32", sT1, pc_, sT1)
            g.salu("s_mul_i32", sT1, sT1, sWG)
            g.valu("v_lshlrev_b32", vTo, sT2, vLane)
            g.valu("v_add_u32", vTo, sT1, vTo)
            g.valu("v_cmp_le_u32", VCC, sT0, vLane)
            g.valu("v_mov_b32", t1, 0x80000000)
            g.valu("v_cndmask_b32", vTo, vTo, t1, VCC)

            def touch(st0):
                g.salu("s_mul_i32", sT2, sCh, st0)
                g.raw(f"buffer_load_dword {vTd}, {vTo}, {srdT}, {sT2} offen")
                g.vm.append({"regs": set(), "tag": "touch"})
            for st_, T_ in enumerate(TSCH):
                if T_ == -2:
                    touch(2 + st_)
        side = []
        side += dma_items(2)
        sched = {"n": 3 * U, "k": len(side), "i": 0}
        vRl = va.get()
        g.valu("v_lshrrev_b32", t1, 2, vLane)
        g.valu("v_and_b32", t2, 3, vLane)
        g.valu("v_lshlrev_b32", t2, 4, t2)
        g.valu("v_lshl_add_u32", vRl, t1, 10, t2)
        vL16 = va.get()
        g.valu("v_lshlrev_b32", vL16, 4, vLane)
        g.salu("s_lshr_b32", sT0, sGw, 4)
        g.salu("s_and_b32", sT1, sGw, 15)
        g.salu("s_mul_i32", sF1d, sT1, 144)
        g.salu("s_add_u32", sF1d, sF1d, sT0)
        g.salu("s_lshl_b32", sF1d, sF1d, 10)
        g.salu("s_add_u32", sF1d, sF1d, WS_WF)
        g.salu("s_add_u32", sF2d, sF1d, 128 * 1024)
        g.salu("s_cmp_lt_u32", None, sGw, 256)
        g.salu("s_cselect_b32", sF2d, sF2d, 0x7FFF0000)
        g.salu("s_cmp_ge_u32", None, sT0, 112)
        g.salu("s_cselect_b32", srdAux[0], sWo[0], sW2[0])
        g.salu("s_cselect_b32", srdAux[1], sWo[1], sW2[1])
        g.salu("s_mov_b32", sT3, 1792 * 1024)
        g.salu("s_cselect_b32", srdAux[2], 512 * 1024, sT3)
        g.salu("s_mov_b32", srdAux[3], 0x20000)
        g.salu("s_cselect_b32", sT2, 112, 0)
        g.salu("s_sub_u32", sT2, sT0, sT2)
        g.salu("s_lshl_b32", sF1, sT2, 14)
        g.salu("s_lshl_b32", sT1, sT1, 6)
        g.salu("s_add_u32", sF1, sF1, sT1)
        g.salu("s_add_u32", sT2, sT0, 16)
        g.salu("s_lshl_b32", sF2, sT2, 14)
        g.salu("s_add_u32", sF2, sF2, sT1)
        make_srd(g, srdAux2, sWo, 512 * 1024)
        g.salu("s_lshl_b32", sRm0, sW, 10)
        g.salu("s_add_u32", sRm0, sRm0, RS)
        vF = [va.get(4, 4), va.get(4, 4)]
        vFa = va.get()
        g.valu("v_lshrrev_b32", t1, 5, vLane)
        g.valu("v_bfe_u32", t2, vLane, 2, 2)
        g.valu("v_lshl_add_u32", t1, t1, 2, t2)
        g.valu("v_bfe_u32", t2, vLane, 4, 1)
        g.valu("v_and_b32", t3, 3, vLane)
        g.valu("v_lshl_add_u32", vFa, t2, 2, t3)
        g.valu("v_lshlrev_b32", vFa, 3, vFa)
        g.valu("v_lshl_add_u32", vFa, t1, 6, vFa)
        g.valu("v_add_u32", vFa, sRm0, vFa)

        def frag_dma(n_):
            g.salu("s_add_u32", M0, sRm0, 0 if n_ else RL_L - RS)
            g.dma(vRl, (srdAux, srdAux2)[n_], (sF1, sF2)[n_], tag=("aux", n_))

        def frag_rd(n_):
            g.wait_vm_tag(("aux", n_))
            for half in range(2):
                g.ds_read("ds_read_b64_tr_b16", vF[n_][2 * half:2 * half + 2], vFa, half * 512 + (0 if n_ else RL_L - RS))

        late = []
        if typ == 0:
            make_srd(g, srdPhi, sWphi, 32 * 512)
            vPa, vSign = va.get(), va.get()
            PH = [va.get(4, 4) for _ in range(2)]
            g.valu("v_lshrrev_b32", t3, 1, t3)
            g.valu("v_lshl_add_u32", vPa, t2, 1, t3)
            g.valu("v_lshlrev_b32", vPa, 3, vPa)
            g.valu("v_lshl_add_u32", vPa, t1, 5, vPa)
            g.valu("v_bfe_u32", t1, vLane, 2, 1)
            g.salu("s_mov_b32", sT0, 0x80008000)
            g.valu("v_mul_lo_u32", vSign, t1, sT0)
            g.salu("s_lshl_b32", sT0, sNt, 2)
            g.salu("s_add_u32", sT0, sT0, 2 * j)
            g.salu("s_lshl_b32", sPhiOff, sT0, 9)

            def phi_dma():
                g.salu("s_mov_b32", M0, PHI_L + j * 1024)
                g.dma(vL16, srdPhi, sPhiOff, tag=("aux", 2))

            def phi_rd():
                g.wait_vm_tag(("aux", 2))
                for hl in range(2):
                    for half in range(2):
                        g.ds_read("ds_read_b64_tr_b16", PH[hl][2 * half:2 * half + 2], vPa,
                                  PHI_L + j * 1024 + hl * 512 + half * 256 - 65536 * 2)
        at_T = {}

        def at(T_, f):
            at_T.setdefault(T_, []).append(f)
        F0 = int(os.environ.get("F0", "16"))
        assert F0 + 8 <= 27
        if "norl" not in ABL:
            at(F0, lambda: frag_dma(0))
            at(F0 + 1, lambda: frag_dma(1))
            at(F0 + 8, lambda: frag_rd(0))
            at(F0 + 9, lambda: frag_rd(1))
        if TCHr:
            for st_, T_ in enumerate(TSCH):
                if T_ >= 0:
                    at(T_, lambda st_=st_: touch(2 + st_))
        if typ == 0:
            g.valu("v_add_u32", vPa, 65536 * 2, vPa)
            at(F0 + 2, phi_dma)
            at(F0 + 10, phi_rd)

        acc = [va.get(16, 4) for _ in range(U)]
        X = [va.get(4, 4) for _ in range(2)]
        Wf = [[va.get(4, 4) for _ in range(U)] for _ in range(2)]
        vSS = va.get(2, 2)
        vSum, vSq = vSS[0], vSS[1]
        vSum2, vSq2 = va.get(), va.get()
        vCsA = [va.get(4, 4) for _ in range(U)]
        vSel = va.get(4, 4)
        vUn = [va.get() for _ in range(4)]
        g.valu("v_lshrrev_b32", t1, 4, vLane)
        g.valu("v_xor_b32", t1, t1, vLane)
        g.valu("v_and_b32", t1, 1, t1)
        g.valu("v_cmp_eq_u32", VCC, 0, t1)
        g.valu("v_mov_b32", t1, 0)
        g.valu("v_mov_b32", t2, ONES_BF)
        for q in range(4):
            g.valu("v_cndmask_b32", vSel[q], t1, t2, VCC)
        sHiMask = sOnes
        g.salu("s_mov_b32", sHiMask, 0xFFFF0000)
        for z in [vSum, vSq, vSum2, vSq2]:
            g.valu("v_mov_b32", z, 0)

        def rd_x(T):
            s, t = divmod(T, 4)
            g.ds_read("ds_read_b128", X[T & 1], vXa[t], (s % 3) * A_BUF)

        def rd_w(T, u):
            if "nords" in ABL and T > 0:
                return
            s, t = divmod(T, 4)
            b = s % 3
            base, off = (vWa[t], b * B_BUF) if b < 2 else (vWb[t], 0)
            for half in range(2):
                g.ds_read("ds_read_b64_tr_b16", Wf[T & 1][u][2 * half:2 * half + 2], base,
                          off + half * 4 * 448 + u * 128)

        def sent1():
            for q in range(4):
                g.valu("v_mov_b32", va_tmp[0][q], -1)
            g.salu("s_lshl_b32", sT0, sGw, 10)
            g.salu("s_add_u32", sT0, sT0, WS_OF)
            g.bstore("buffer_store_dwordx4", va_tmp[0], vL16, srdWs, sT0, mods=STM)

        def sent2():
            g.salu("s_lshl_b32", sT0, sGw, 10)
            g.salu("s_add_u32", sT0, sT0, WS_KV)
            g.salu("s_cmp_lt_u32", None, sGw, 64)
            g.salu("s_cselect_b32", sT0, sT0, 0x7FFF0000)
            g.bstore("buffer_store_dwordx4", va_tmp[0], vL16, srdWs, sT0, mods=STM)

        if "nosent" not in ABL:
            late.insert(0, sent1)
            late.insert(1, sent2)

        if "norl" not in ABL:
            late.append(lambda: g.bstore("buffer_store_dwordx4", vF[0], vL16, srdWs, sF1d, mods=STM))
            late.append(lambda: g.bstore("buffer_store_dwordx4", vF[1], vL16, srdWs, sF2d, mods=STM))

        va_tmp = [va.get(4, 4)]

        if TCHr:
            for st_, T_ in enumerate(TSCH):
                if T_ == -1:
                    touch(2 + st_)
        stamp(g, 3)
        g.wait_vm_tag(("dma", 0))
        g.barrier()
        stamp(g, 4)
        rd_x(0)
        for u in range(U):
            rd_w(0, u)

        for T in range(32):
            s, t = divmod(T, 4)
            cur = T & 1
            last = (T == 31)
            fill = [[] for _ in range(U)]
            if "nodot" not in ABL:
                ops = []
                for r in (2 * j, 2 * j + 1):
                    lo, hi = vUn[2 * (r & 1)], vUn[2 * (r & 1) + 1]
                    ops += [lambda r=r, lo=lo: g.valu("v_lshlrev_b32", lo, 16, X[cur][r]),
                            lambda r=r, hi=hi: g.valu("v_and_b32", hi, sHiMask, X[cur][r]),
                            lambda lo=lo: g.valu("v_add_f32", vSum, vSum, lo),
                            lambda hi=hi: g.valu("v_add_f32", vSum2, vSum2, hi),
                            lambda lo=lo: g.valu("v_fma_f32", vSq, lo, lo, vSq),
                            lambda hi=hi: g.valu("v_fma_f32", vSq2, hi, hi, vSq2)]
                per = 12 // U
                if "nors" in ABL:
                    ops = []
                for u in range(U):
                    fill[u] += ops[u * per:(u + 1) * per]
                if t < U and "nocs" not in ABL:
                    fill[t].insert(0, lambda t=t: g.mfma(vCsA[t], Wf[cur][t], vSel, vCsA[t] if s else 0,
                                                         op="v_mfma_f32_16x16x32_bf16"))
            boundary = (t == 3 and not last)
            for u in range(U):
                if "nomfma" not in ABL or T == 0:
                    g.mfma(acc[u], Wf[cur][u], X[cur], acc[u] if T else 0)
                else:
                    g._wait_for_regs(Wf[cur][u].regs() + X[cur].regs())
                if not boundary and not last:
                    if u == 0:
                        rd_x(T + 1)
                    rd_w(T + 1, u)
                if boundary and u == 1:
                    g.waitcnt(lg=0)
                    g.wait_vm_tag(("dma", s + 1))
                    g.barrier()
                    rd_x(T + 1)
                    for uu in range(U):
                        rd_w(T + 1, uu)
                if boundary and u == 1:
                    assert not side
                    if s + 3 <= 7 and "nodma" not in ABL:
                        side += dma_items(s + 3)
                        sched["n"] = (U - 2) + 3 * U
                        sched["k"] = len(side)
                        sched["i"] = 0
                elif not (boundary and u < 2):
                    did = False
                    if side:
                        i0 = sched["i"]
                        if (i0 + 1) * sched["k"] // sched["n"] > i0 * sched["k"] // sched["n"]:
                            side.pop(0)()
                            did = True
                        sched["i"] += 1
                    if not did and late and T >= LATE_T:
                        f_ = late.pop(0)
                        if f_:
                            f_()
                if u == 0 and T in at_T:
                    for f in at_T[T]:
                        f()
                for f in fill[u]:
                    f()
            if T in (7, 15, 23, 31):
                stamp(g, 5 + T // 8)
        assert not side
        while late:
            f_ = late.pop(0)
            if f_:
                f_()
        vRa, vCa, vRr, vCr = va.get(), va.get(), va.get(), va.get()
        g.valu("v_and_b32", t0, 31, vLane)
        g.valu("v_lshrrev_b32", t2, 5, vLane)
        g.salu("s_lshl_b32", sT0, sI, 5)
        g.valu("v_add_u32", t1, sT0, t0)
        g.valu("v_lshlrev_b32", vRr, 5, t1)
        g.valu("v_add_u32", vRr, RS, vRr)
        g.valu("v_lshl_add_u32", vRa, t2, 3, vRr)
        g.valu("v_lshlrev_b32", vCr, 2, t0)
        g.valu("v_add_u32", vCr, CS + j * 512, vCr)
        g.valu("v_and_b32", t1, 1, vLane)
        g.valu("v_lshlrev_b32", t1, 6, t1)
        g.valu("v_lshrrev_b32", t2, 4, vLane)
        g.valu("v_lshl_add_u32", vCa, t2, 4, t1)
        g.salu("s_lshl_b32", sT0, sI, 7)
        g.salu("s_add_u32", sT0, sT0, CS + j * 512)
        g.valu("v_add_u32", vCa, sT0, vCa)
        g.valu("v_add_f32", vSum, vSum, vSum2)
        g.valu("v_add_f32", vSq, vSq, vSq2)
        g.ds_write("ds_write_b64", vRa, vSS, j * 16)
        g.salu("s_mov_b32", EXEC[0], 0x00030003)
        g.salu("s_mov_b32", EXEC[1], 0x00030003)
        for u in range(U):
            g.ds_write("ds_write_b128", vCa, vCsA[u], u * 1024)
        g.salu("s_mov_b64", EXEC, -1)
        g.waitcnt(lg=0)
        g.barrier()
        stamp(g, 9)
        csr = [va.get(16, 4) for _ in range(2)]
        rsr = csr[0][0:8]
        g.ds_read("ds_read_b128", rsr[0:4], vRr)
        g.ds_read("ds_read_b128", rsr[4:8], vRr, 16)
        cpt = [csr[1][4 * u:4 * u + 4] for u in range(U)]
        for u in range(U):
            for i_ in range(4):
                g.ds_read("ds_read_b32", cpt[u][i_], vCr, u * 1024 + i_ * 128)
        vMean, vVar, vRinv, vNr2 = va.get(), va.get(), va.get(), va.get()
        g.valu("v_add_f32", rsr[0], rsr[0], rsr[2])
        g.valu("v_add_f32", rsr[1], rsr[1], rsr[3])
        g.valu("v_add_f32", rsr[4], rsr[4], rsr[6])
        g.valu("v_add_f32", rsr[5], rsr[5], rsr[7])
        g.valu("v_add_f32", rsr[0], rsr[0], rsr[4])
        g.valu("v_add_f32", rsr[1], rsr[1], rsr[5])
        g.valu("v_mul_f32", vMean, 1.0 / 512, rsr[0])
        g.valu("v_mul_f32", vVar, 1.0 / 512, rsr[1])
        g.valu("v_fma_f32", vVar, Neg(vMean), vMean, vVar)
        MB = X[0]
        g.valu("v_cvt_pk_bf16_f32", MB[0], Neg(vMean), Neg(vMean))
        g.valu("v_cmp_gt_u32", VCC, 32, vLane)
        g.valu("v_mov_b32", MB[2], 0)
        g.valu("v_mov_b32", MB[3], 0)
        g.valu("v_cndmask_b32", MB[0], MB[2], MB[0], VCC)
        g.valu("v_and_b32", MB[1], 0xFFFF, MB[0])
        bf16_round(g, vVar, vVar)
        g.valu("v_add_f32", vVar, 1e-5, vVar)
        bf16_round(g, vVar, vVar)
        g.valu("v_sqrt_f32", vVar, vVar)
        bf16_round(g, vVar, vVar)
        g.valu("v_rcp_f32", vRinv, vVar)
        g.salu("s_mov_b32", sT3, 0x07060302)
        CA = [Wf[0][u] for u in range(U)]
        for u in range(U):
            c = cpt[u]
            g.valu("v_add_f32", c[0], c[0], c[1])
            g.valu("v_add_f32", c[2], c[2], c[3])
            g.valu("v_add_f32", c[0], c[0], c[2])
            g.valu("v_and_b32", c[1], sHiMask, c[0])
            g.valu("v_sub_f32", c[1], c[0], c[1])
            g.valu("v_and_b32", c[2], sHiMask, c[1])
            g.valu("v_sub_f32", c[2], c[1], c[2])
            g.valu("v_perm_b32", CA[u][0], c[1], c[0], sT3)
            g.valu("v_lshrrev_b32", CA[u][1], 16, c[2])
            g.valu("v_mov_b32", CA[u][2], 0)
            g.valu("v_mov_b32", CA[u][3], 0)
            g.mfma(acc[u], CA[u], MB, acc[u])
        g.valu("v_mul_f32", vNr2, -LOG2E, vRinv)

        if typ == 1:
            g.salu("s_lshl_b32", sT0, sMt, 2)
            g.salu("s_add_u32", sT0, sT0, sI)
            g.salu("s_mul_i32", sT0, sT0, 112)
            g.salu("s_mul_i32", sT1, sNt, 14)
            g.salu("s_add_u32", sT0, sT0, sT1)
            g.salu("s_add_u32", sT0, sT0, 2 * j)
            g.salu("s_lshl_b32", sOut, sT0, 10)
            e = [va.get() for _ in range(8)]
            pk = [va.get(4, 4) for _ in range(2)]
            g.salu("s_mov_b32", sT2, -LOG2E)
            for u in range(U):
                for m in range(2):
                    rr = range(8 * m, 8 * m + 8)
                    for r in rr:
                        g.valu("v_mul_f32", acc[u][r], vNr2, acc[u][r])
                    for r in rr:
                        g.valu("v_exp_f32", e[r & 7], acc[u][r])
                    for r in rr:
                        g.valu("v_fma_f32", e[r & 7], e[r & 7], sT2, sT2)
                    for r in rr:
                        g.valu("v_rcp_f32", e[r & 7], e[r & 7])
                    for r in rr:
                        g.valu("v_mul_f32", acc[u][r], acc[u][r], e[r & 7])
                    for q in range(4):
                        g.valu("v_cvt_pk_bf16_f32", pk[m][q], acc[u][8 * m + 2 * q], acc[u][8 * m + 2 * q + 1])
                    g.bstore("buffer_store_dwordx4", pk[m], vL16, srdWs, sOut, m * 1024, mods=STM)
                if u + 1 < U:
                    g.salu("s_add_u32", sOut, sOut, 4096)
        else:
            for hl in range(2):
                for q in range(4):
                    g.valu("v_xor_b32", PH[hl][q], vSign, PH[hl][q])
            for u in (2, 1, 0):
                for r in range(16):
                    g.valu("v_mul_f32", acc[u][r], vRinv, acc[u][r])
            vIm = va.get()
            g.valu("v_and_b32", t0, 31, vLane)
            g.salu("s_lshl_b32", sT0, sI, 5)
            g.valu("v_add_u32", t0, sT0, t0)
            g.valu("v_lshlrev_b32", t0, 6, t0)
            g.valu("v_lshrrev_b32", t1, 5, vLane)
            g.valu("v_lshl_add_u32", vIm, t1, 3, t0)
            assert Wf[1][2].i == Wf[1][1].i + 4
            pk8 = V(Wf[1][1].i, 8)
            D2 = csr
            QF = X
            vMx, vSm = va.get(), va.get()
            for q in range(8):
                g.valu("v_cvt_pk_bf16_f32", pk8[q], acc[2][2 * q], acc[2][2 * q + 1])
            for q in range(4):
                g.ds_write("ds_write_b64", vIm, pk8[2 * q:2 * q + 2], V_IMG + j * 8192 + q * 16)

            def phi(u):
                for hl in range(2):
                    for q in range(4):
                        g.valu("v_cvt_pk_bf16_f32", QF[hl][q], acc[u][8 * hl + 2 * q], acc[u][8 * hl + 2 * q + 1])
                for hl in range(2):
                    g.mfma(D2[hl], PH[hl], QF[hl], 0)

            def softmax(hl):
                D = D2[hl]
                g.valu("v_max3_f32", vMx, D[0], D[1], D[2])
                for r in range(3, 15, 2):
                    g.valu("v_max3_f32", vMx, vMx, D[r], D[r + 1])
                g.valu("v_max_f32", vMx, vMx, D[15])
                g.valu("v_mul_f32", vMx, -LOG2E, vMx)
                for r in range(16):
                    g.valu("v_fma_f32", D[r], D[r], sLog2e, vMx)
                for r in range(16):
                    g.valu("v_exp_f32", D[r], D[r])
                g.valu("v_add_f32", vSm, D[0], D[1])
                for r in range(2, 16):
                    g.valu("v_add_f32", vSm, vSm, D[r])
                g.valu("v_rcp_f32", vSm, vSm)
                for r in range(16):
                    g.valu("v_mul_f32", D[r], vSm, D[r])
                for q in range(8):
                    g.valu("v_cvt_pk_bf16_f32", pk8[q], D[2 * q], D[2 * q + 1])

            sLog2e = sT3
            g.salu("s_mov_b32", sLog2e, LOG2E)
            phi(1)
            for hl in range(2):
                softmax(hl)
                for q in range(4):
                    g.ds_write("ds_write_b64", vIm, pk8[2 * q:2 * q + 2], PHK_IMG + (2 * j + hl) * 8192 + q * 16)
            g.waitcnt(lg=0)
            g.barrier()
            phi(0)
            g.salu("s_lshl_b32", sT0, sMt, 2)
            g.salu("s_add_u32", sT0, sT0, sI)
            g.salu("s_lshl_b32", sT0, sT0, 5)
            g.salu("s_lshl_b32", sT1, sNt, 2)
            g.salu("s_add_u32", sT0, sT0, sT1)
            g.salu("s_add_u32", sT0, sT0, 2 * j)
            g.salu("s_lshl_b32", sOut, sT0, 11)
            g.salu("s_add_u32", sOut, sOut, WS_PQ)
            for hl in range(2):
                softmax(hl)
                for m in range(2):
                    g.bstore("buffer_store_dwordx4", pk8[4 * m:4 * m + 4], vL16, srdWs, sOut, (hl * 2 + m) * 1024, mods=STM)
            if j == 0:
                vKa, vVa, vOne = va.get(), va.get(), va.get()
                g.valu("v_lshrrev_b32", t1, 5, vLane)
                g.valu("v_bfe_u32", t2, vLane, 2, 2)
                g.valu("v_lshl_add_u32", t1, t1, 3, t2)
                g.valu("v_lshlrev_b32", t1, 6, t1)
                g.valu("v_and_b32", t2, 3, vLane)
                g.valu("v_lshl_add_u32", t1, t2, 3, t1)
                g.valu("v_bfe_u32", t2, vLane, 4, 1)
                g.valu("v_lshl_add_u32", t2, t2, 5, t1)
                g.salu("s_lshl_b32", sT0, sI, 13)
                g.valu("v_add_u32", vKa, sT0, t2)
                g.salu("s_lshr_b32", sT0, sI, 1)
                g.salu("s_lshl_b32", sT0, sT0, 13)
                g.salu("s_and_b32", sT1, sI, 1)
                g.salu("s_lshl_b32", sT1, sT1, 5)
                g.salu("s_add_u32", sT0, sT0, sT1)
                g.salu("s_add_u32", sT0, sT0, V_IMG)
                g.valu("v_add_u32", vVa, sT0, t1)
                g.valu("v_mov_b32", vOne, ONES_BF)
                g.salu("s_mov_b32", sMask[0], 0xFFFF0000)
                g.salu("s_mov_b32", sMask[1], 0xFFFF0000)
                KA = [Wf[0][0], Wf[0][1]]
                KB = [Wf[0][2], Wf[1][0]]
                D3 = D2[0]

                def rd_kv(ks):
                    for half in range(2):
                        g.ds_read("ds_read_b64_tr_b16", KA[ks & 1][2 * half:2 * half + 2], vKa, ks * 1024 + half * 256)
                    for half in range(2):
                        g.ds_read("ds_read_b64_tr_b16", KB[ks & 1][2 * half:2 * half + 2], vVa, ks * 1024 + half * 256)

                rd_kv(0)
                for ks in range(8):
                    if ks + 1 < 8:
                        rd_kv(ks + 1)
                    for r in range(4):
                        g.valu("v_cndmask_b32_e64", KB[ks & 1][r], KB[ks & 1][r], vOne, sMask)
                    g.mfma(D3, KA[ks & 1], KB[ks & 1], D3 if ks else 0)
                g.salu("s_lshl_b32", sT0, sMt, 5)
                g.salu("s_lshl_b32", sT1, sNt, 2)
                g.salu("s_add_u32", sT0, sT0, sT1)
                g.salu("s_add_u32", sT0, sT0, sI)
                g.salu("s_lshl_b32", sOut, sT0, 12)
                g.salu("s_add_u32", sOut, sOut, WS_PART)
                for q in range(4):
                    g.bstore("buffer_store_dwordx4", D3[4 * q:4 * q + 4], vL16, srdWs, sOut, q * 1024, mods=STM)
        stamp(g, 10)
        g.waitcnt(vm=0)
        stamp(g, 11)
        stamp(g, 13, True)
        stamp_flush(g, 14, srdWs, sGw, sT0, t0, t1)
        amp(g, sGw, sT0, sT1, sT2)
        g.raw("s_endpgm")
        maxv = max(maxv, va.hi)
        out.append(g.text())
    out.append("hh_k1_exit:\n    s_endpgm\n")
    return name, "".join(out), maxv


def gen_kr():
    name = "hh_kr_kernel"
    CURK[0] = "kr"
    g = Gen()
    sKarg, sWG = S(0, 2), S(2)
    sWs, srdWs = S(4, 2), S(8, 4)
    sW, sT0, sT1, sOff = S(12), S(13), S(14), S(15)
    g.label(name)
    g.salu("s_cmp_ge_u32", None, sWG, 32)
    g.raw("s_cbranch_scc1 hh_kr_exit")
    g.sload(sWs, sKarg, 72)
    vLane, vT, vL16, vL8 = V(1), V(2), V(3), V(4)
    g.valu("v_lshrrev_b32", vT, 6, V(0))
    g.valu("v_and_b32", vLane, 63, V(0))
    g.valu("v_readfirstlane_b32", sW, vT)
    g.valu("v_lshlrev_b32", vL16, 4, vLane)
    g.lg = []
    g.raw("s_waitcnt lgkmcnt(0)")
    make_srd(g, srdWs, sWs, WS_SIZE)
    g.salu("s_lshl_b32", sT0, sWG, 2)
    g.salu("s_add_u32", sT0, sT0, sW)
    g.salu("s_lshl_b32", sOff, sT0, 10)
    g.salu("s_add_u32", sOff, sOff, WS_PART)
    P = [V(8 + 4 * m, 4) for m in range(16)]
    for m in range(16):
        g.bload("buffer_load_dwordx4", P[m], vL16, srdWs, sOff)
        if m < 15:
            g.salu("s_add_u32", sOff, sOff, 32 * 4096)
    for m in range(1, 16):
        for r in range(4):
            g.valu("v_add_f32", P[0][r], P[0][r], P[m][r])
    pk = V(6, 2)
    g.valu("v_cvt_pk_bf16_f32", pk[0], P[0][0], P[0][1])
    g.valu("v_cvt_pk_bf16_f32", pk[1], P[0][2], P[0][3])
    g.salu("s_lshl_b32", sT0, sWG, 11)
    g.salu("s_lshr_b32", sT1, sW, 1)
    g.salu("s_lshl_b32", sT1, sT1, 10)
    g.salu("s_add_u32", sT0, sT0, sT1)
    g.salu("s_and_b32", sT1, sW, 1)
    g.salu("s_lshl_b32", sT1, sT1, 3)
    g.salu("s_add_u32", sT0, sT0, sT1)
    g.salu("s_add_u32", sOff, sT0, WS_KV)
    g.bstore("buffer_store_dwordx2", pk, vL16, srdWs, sOff)
    g.raw("s_endpgm")
    return name, g.text() + "hh_kr_exit:\n    s_endpgm\n", 72


K2_LDS = 48 * 1024


def gen_k2(NS=int(os.environ.get("NS", "28"))):
    name = "hh_k2_kernel"
    CURK[0] = "k2"
    g = Gen()
    out = []
    LIMIT = 0x1000
    K2ABL = os.environ.get("K2ABL", "")
    OM = os.environ.get("OM", "")
    sKarg, sWG = S(0, 2), S(2)
    sX, sWs, sOutp, sDbg = S(4, 2), S(6, 2), S(8, 2), S(10, 2)
    srdX, srdO, srdWs = S(12, 4), S(16, 4), S(20, 4)
    sW, sMt, sNt, sT0, sT1, sT2 = (S(24 + k) for k in range(6))
    g.label(name)
    g.salu("s_cmp_ge_u32", None, sWG, 256)
    g.raw("s_cbranch_scc1 hh_k2_exit")
    stamp(g, 0)
    stamp(g, 12, True)
    g.sload(sWs, sKarg, 72)
    g.sload(sX, sKarg, 0)
    g.sload(S(8, 4), sKarg, 56)
    va = VAlloc(1, 256)
    vLane, vT, vL16 = va.get(), va.get(), va.get()
    g.valu("v_lshrrev_b32", vT, 6, V(0))
    g.valu("v_and_b32", vLane, 63, V(0))
    g.valu("v_readfirstlane_b32", sW, vT)
    g.valu("v_lshlrev_b32", vL16, 4, vLane)
    g.salu("s_and_b32", sT0, sWG, 7)
    g.salu("s_lshl_b32", sT0, sT0, 2)
    g.salu("s_bfe_u32", sT1, sWG, (2 << 16) | 3)
    g.salu("s_or_b32", sMt, sT0, sT1)
    g.salu("s_lshr_b32", sNt, sWG, 5)
    sMtL, sNtL = sMt, sNt
    FK = os.environ.get("K2FAKE", "")
    if FK:
        sMtL, sNtL = S(48), S(49)
        g.salu("s_mov_b32", sMtL, 0 if "m" in FK else sMt)
        g.salu("s_mov_b32", sNtL, 0 if "n" in FK else sNt)
    g.salu("s_cmp_ge_u32", None, sW, 4)
    g.raw("s_cbranch_scc1 hh_k2_aux")
    base_state = g
    out.append(g.text())

    def sentinel_check(g, t, regs):
        regs = list(regs)
        g.valu("v_max3_u32", t, regs[0], regs[1], regs[2])
        i = 3
        while i < len(regs):
            if i + 1 < len(regs):
                g.valu("v_max3_u32", t, t, regs[i], regs[i + 1])
                i += 2
            else:
                g.valu("v_max_u32", t, t, regs[i])
                i += 1
        g.valu("v_cmp_eq_u32", VCC, -1, t)

    g = base_state.fork()
    sH = [S(32), S(33)]
    sWn = [S(34), S(35)]
    sO = [S(36), S(37)]
    sWoN = [S(38), S(39)]
    sOb = [S(40), S(41)]
    sCnt = S(42)
    g.salu("s_mul_i32", sT2, sW, 28)
    for sb in range(2):
        g.salu("s_lshl_b32", sT0, sMtL, 1)
        if sb:
            g.salu("s_add_u32", sT0, sT0, sb)
        g.salu("s_mul_i32", sT1, sT0, 112)
        g.salu("s_add_u32", sT1, sT1, sT2)
        g.salu("s_lshl_b32", sH[sb], sT1, 10)
    for nb in range(2):
        g.salu("s_lshl_b32", sT0, sNtL, 1)
        if nb:
            g.salu("s_add_u32", sT0, sT0, nb)
        g.salu("s_mul_i32", sT0, sT0, 144)
        g.salu("s_add_u32", sT1, sT0, sT2)
        g.salu("s_lshl_b32", sT1, sT1, 10)
        g.salu("s_add_u32", sWn[nb], sT1, WS_WF)
    g.lg = []
    g.raw("s_waitcnt lgkmcnt(0)")
    make_srd(g, srdWs, sWs, WS_SIZE)
    win = {}

    def ld(dst, sreg, off, mods=""):
        w0 = win.get(sreg.i, 0)
        if not (w0 <= off < w0 + 4096):
            g.salu("s_add_u32", sreg, sreg, off - w0)
            win[sreg.i] = w0 = off
        g.bload("buffer_load_dwordx4", dst, vL16, srdWs, sreg, off - w0, mods=mods)

    acc = [[va.get(16, 4) for sb in range(2)] for nb in range(2)]
    vRc, vChk, vXo = va.get(), va.get(), va.get()
    XR = va.get(8, 4)
    slots = [va.get(4, 4) for _ in range(NS)]
    reqs = []
    for k in range(28):
        reqs += [(sWn[0], k * 1024), (sH[0], k * 1024), (sH[1], k * 1024), (sWn[1], k * 1024)]
    for h in range(8):
        reqs += [(sWoN[0], h * 1024), (sO[0], h * 1024, OM), (sO[1], h * 1024, OM), (sWoN[1], h * 1024)]
    issued = [0]

    def slot(q):
        return slots[q % NS]

    def issue_upto(n):
        n = min(n, len(reqs))
        while issued[0] < n:
            q = issued[0]
            ld(slot(q), *reqs[q])
            issued[0] += 1

    stamp(g, 1)
    issue_upto(NS)
    stamp(g, 2)
    make_srd(g, srdX, sX, 2048 * 1024)
    make_srd(g, srdO, sOutp, 2048 * 1024)
    for sb in range(2):
        g.salu("s_lshl_b32", sT0, sMt, 1)
        if sb:
            g.salu("s_add_u32", sT0, sT0, sb)
        g.salu("s_lshl_b32", sT1, sT0, 5)
        g.salu("s_lshl_b32", sT2, sW, 3)
        g.salu("s_add_u32", sT1, sT1, sT2)
        g.salu("s_lshl_b32", sT1, sT1, 10)
        g.salu("s_add_u32", sO[sb], sT1, WS_OF)
        g.salu("s_mov_b32", sOb[sb], sO[sb])
    for nb in range(2):
        g.salu("s_lshl_b32", sT0, sNt, 1)
        if nb:
            g.salu("s_add_u32", sT0, sT0, nb)
        g.salu("s_mul_i32", sT0, sT0, 144)
        g.salu("s_lshl_b32", sT2, sW, 3)
        g.salu("s_add_u32", sT1, sT0, sT2)
        g.salu("s_add_u32", sT1, sT1, 112)
        g.salu("s_lshl_b32", sT1, sT1, 10)
        g.salu("s_add_u32", sWoN[nb], sT1, WS_WF)
    t0, t1 = vRc, vChk
    g.salu("s_and_b32", sT0, sW, 1)
    g.salu("s_lshl_b32", sT0, sT0, 5)
    g.salu("s_lshl_b32", sT1, sMt, 6)
    g.salu("s_add_u32", sT0, sT0, sT1)
    g.valu("v_and_b32", t0, 31, vLane)
    g.valu("v_add_u32", t0, sT0, t0)
    g.valu("v_lshlrev_b32", vXo, 10, t0)
    g.salu("s_lshr_b32", sT0, sW, 1)
    g.salu("s_lshl_b32", sT0, sT0, 6)
    g.salu("s_lshl_b32", sT1, sNt, 7)
    g.salu("s_add_u32", sT0, sT0, sT1)
    g.valu("v_add_u32", vXo, sT0, vXo)
    g.valu("v_lshrrev_b32", t1, 5, vLane)
    g.valu("v_lshl_add_u32", vXo, t1, 3, vXo)

    slow = []
    for k in range(36):
        b = 4 * k
        Wn0, H0, H1, Wn1 = (slot(b + i) for i in range(4))
        if k >= 28 and "noaux" not in K2ABL:
            sentinel_check(g, vChk, [H0[i] for i in range(4)] + [H1[i] for i in range(4)])
            g.salu("s_cmp_eq_u64", None, VCC, 0)
            g.raw(f"s_cbranch_scc0 hh_k2_slow{k}")
            g.label(f"hh_k2_back{k}")
            h = k - 28
            gs = Gen()
            gs.label(f"hh_k2_slow{k}")
            gs.salu("s_mov_b32", sCnt, 0)
            gs.salu("s_add_u32", sT0, sOb[0], h * 1024)
            gs.salu("s_add_u32", sT1, sOb[1], h * 1024)
            gs.label(f"hh_k2_spin{k}")
            gs.raw("s_sleep 4")
            gs.bload("buffer_load_dwordx4", H0, vL16, srdWs, sT0, mods="sc1")
            gs.bload("buffer_load_dwordx4", H1, vL16, srdWs, sT1, mods="sc1")
            gs.salu("s_add_u32", sCnt, sCnt, 1)
            gs.raw("s_waitcnt vmcnt(0)")
            gs.vm = []
            sentinel_check(gs, vChk, [H0[i] for i in range(4)] + [H1[i] for i in range(4)])
            gs.salu("s_cmp_ge_u32", None, sCnt, LIMIT)
            gs.raw(f"s_cbranch_scc1 hh_k2_back{k}")
            gs.salu("s_cmp_eq_u64", None, VCC, 0)
            gs.raw(f"s_cbranch_scc0 hh_k2_spin{k}")
            gs.raw(f"s_branch hh_k2_back{k}")
            slow.append(gs.text())
        def mf(d, a_, b_):
            if "nomfma" in K2ABL and k:
                g._wait_for_regs(a_.regs() + b_.regs())
            else:
                g.mfma(d, a_, b_, d if k else 0)
        mf(acc[0][0], Wn0, H0)
        mf(acc[0][1], Wn0, H1)
        issue_upto(b + 1 + NS)
        mf(acc[1][0], Wn1, H0)
        issue_upto(b + 2 + NS)
        mf(acc[1][1], Wn1, H1)
        issue_upto(b + 4 + NS)
        if k == 29:
            for q in range(4):
                g.bload("buffer_load_dwordx2", XR[2 * q:2 * q + 2], vXo, srdX, 0, q * 16)
        if k in (0, 6, 13, 20, 27, 31, 35):
            stamp(g, 3 + (0, 6, 13, 20, 27, 31, 35).index(k))
    g.waitcnt(vm=0)
    for w in range(1, 4):
        g.salu("s_cmp_eq_u32", None, sW, w)
        g.raw(f"s_cbranch_scc1 hh_k2_ep{w}")
    out.append(g.text())
    ep_state = g
    assert NS >= 20
    for w in range(4):
        g = ep_state.fork()
        g.label(f"hh_k2_ep{w}")
        quads = [(0, 0), (0, 1), (1, 0), (1, 1)]
        for Q in range(4):
            if Q == w:
                continue
            k_ = (w - Q - 1) % 4
            nb, sb = quads[Q]
            for q in range(4):
                g.ds_write("ds_write_b128", vL16, acc[nb][sb][4 * q:4 * q + 4], (Q * 3 + k_) * 4096 + q * 1024)
        own = acc[quads[w][0]][quads[w][1]]
        g.nop(8)
        tx = V(slots[12].i, 16)
        for r in range(16):
            src = XR[r >> 1]
            if r & 1:
                g.valu("v_and_b32", tx[r], 0xFFFF0000, src)
            else:
                g.valu("v_lshlrev_b32", tx[r], 16, src)
        for r in range(16):
            g.valu("v_add_f32", own[r], own[r], tx[r])
        g.waitcnt(lg=0)
        g.barrier()
        RD = [V(slots[4 * k_].i, 16) for k_ in range(3)]
        for k_ in range(3):
            for q in range(4):
                g.ds_read("ds_read_b128", RD[k_][4 * q:4 * q + 4], vL16, (w * 3 + k_) * 4096 + q * 1024)
        for r in range(16):
            g.valu("v_add_f32", own[r], own[r], RD[0][r])
        for r in range(16):
            g.valu("v_add_f32", RD[1][r], RD[1][r], RD[2][r])
        for r in range(16):
            g.valu("v_add_f32", own[r], own[r], RD[1][r])
        po = V(slots[16].i, 8)
        for q in range(8):
            g.valu("v_cvt_pk_bf16_f32", po[q], own[2 * q], own[2 * q + 1])
        for i_ in range(2):
            g.valu("v_permlane32_swap_b32", [po[i_], po[2 + i_]])
            g.valu("v_permlane32_swap_b32", [po[4 + i_], po[6 + i_]])
        g.valu("v_lshrrev_b32", vRc, 5, vLane)
        g.valu("v_lshl_add_u32", vXo, vRc, 3, vXo)
        g.bstore("buffer_store_dwordx4", po[0:4], vXo, srdO, 0)
        g.bstore("buffer_store_dwordx4", po[4:8], vXo, srdO, 0, 32)
        stamp(g, 10)
        if STAMPS == "k2":
            g.waitcnt(vm=0)
        stamp(g, 11)
        stamp(g, 13, True)
        g.salu("s_lshl_b32", sT2, sWG, 3)
        g.salu("s_add_u32", sT2, sT2, sW)
        stamp_flush(g, 14, srdWs, sT2, sT0, vRc, vChk)
        amp(g, sT2, sT0, sT1, S(43))
        g.raw("s_endpgm")
        out.append(g.text())
    out += slow

    g = base_state.fork()
    g.label("hh_k2_aux")
    if "noaux" in K2ABL:
        g.raw("s_endpgm")
    g.raw("s_setprio 3")
    sOff, sHd, sKVh, sCnt = S(32), S(33), S(34), S(35)
    sPQ = [S(36), S(37)]
    sOo = [S(38), S(39)]
    vA, vPr, vP, vRc = V(4), V(5), V(6), V(7)
    P = [V(8 + 4 * m, 4) for m in range(8)]
    PQ = [[V(40 + 8 * sb + 4 * m, 4) for m in range(2)] for sb in range(2)]
    KV = [V(56, 4), V(60, 4)]
    D = [V(64, 16), V(80, 16)]
    O = [V(96, 4), V(100, 4)]
    pk, pc = V(104, 4), V(108, 4)
    g.salu("s_lshl_b32", sHd, sNt, 2)
    g.salu("s_add_u32", sHd, sHd, sW)
    g.salu("s_sub_u32", sHd, sHd, 4)
    for sb in range(2):
        g.salu("s_lshl_b32", sT0, sMt, 1)
        if sb:
            g.salu("s_add_u32", sT0, sT0, sb)
        g.salu("s_lshl_b32", sT0, sT0, 5)
        g.salu("s_add_u32", sT0, sT0, sHd)
        g.salu("s_lshl_b32", sT1, sT0, 11)
        g.salu("s_add_u32", sPQ[sb], sT1, WS_PQ)
        g.salu("s_lshl_b32", sT1, sT0, 10)
        g.salu("s_add_u32", sOo[sb], sT1, WS_OF)
    g.salu("s_lshl_b32", sKVh, sHd, 11)
    g.salu("s_add_u32", sKVh, sKVh, WS_KV)
    g.valu("v_lshlrev_b32", vPr, 8, vLane)
    g.valu("v_and_b32", vA, 15, vLane)
    g.valu("v_lshlrev_b32", vA, 4, vA)
    g.valu("v_bfe_u32", vT, vLane, 4, 1)
    g.valu("v_lshl_add_u32", vP, vT, 10, vA)
    g.valu("v_lshrrev_b32", vT, 5, vLane)
    g.valu("v_lshl_add_u32", vP, vT, 17, vP)
    g.salu("s_lshr_b32", sT0, sWG, 2)
    g.salu("s_lshl_b32", sOff, sT0, 11)
    g.salu("s_and_b32", sT1, sWG, 3)
    g.salu("s_lshl_b32", sT1, sT1, 8)
    g.salu("s_add_u32", sOff, sOff, sT1)
    g.salu("s_add_u32", sOff, sOff, WS_PART)
    g.lg = []
    g.raw("s_waitcnt lgkmcnt(0)")
    make_srd(g, srdWs, sWs, WS_SIZE)
    for sb in range(2):
        for m in range(2):
            g.bload("buffer_load_dwordx4", PQ[sb][m], vL16, srdWs, sPQ[sb], m * 1024)
    g.salu("s_cmp_lg_u32", None, sW, 4)
    g.raw("s_cbranch_scc1 hh_k2_await")
    for m in range(8):
        g.bload("buffer_load_dwordx4", P[m], vP, srdWs, sOff)
        if m < 7:
            g.salu("s_add_u32", sOff, sOff, 2 * 32 * 4096)
    stamp(g, 1)
    for st in (1, 2, 4):
        for m in range(0, 8, 2 * st):
            for r in range(4):
                g.valu("v_add_f32", P[m][r], P[m][r], P[m + st][r])
    for r in range(4):
        g.valu("v_mov_b32", pc[r], P[0][r])
    for r in range(4):
        g.valu("v_permlane32_swap_b32", [P[0][r], pc[r]])
    for r in range(4):
        g.valu("v_add_f32", P[0][r], P[0][r], pc[r])
    g.valu("v_cvt_pk_bf16_f32", pk[0], P[0][0], P[0][1])
    g.valu("v_cvt_pk_bf16_f32", pk[1], P[0][2], P[0][3])
    g.valu("v_mov_b32", pk[2], pk[0])
    g.valu("v_mov_b32", pk[3], pk[1])
    g.valu("v_mov_b32", pc[0], pk[0])
    g.valu("v_mov_b32", pc[1], pk[1])
    g.valu("v_permlane16_swap_b32", [pc[0], pk[2]])
    g.valu("v_permlane16_swap_b32", [pc[1], pk[3]])
    g.salu("s_lshl_b32", sOff, sWG, 8)
    g.salu("s_add_u32", sOff, sOff, WS_KV)
    g.salu("s_mov_b64", EXEC, 0xFFFF)
    g.bstore("buffer_store_dwordx4", pk, vA, srdWs, sOff, mods="sc1")
    g.salu("s_mov_b64", EXEC, -1)
    stamp(g, 2)
    g.raw(f"s_sleep {os.environ.get('ISL0', '32')}")
    g.label("hh_k2_ojob")
    g.nop(4)
    stamp(g, 3)
    g.salu("s_mov_b32", sCnt, 0)
    for m in range(2):
        g.bload("buffer_load_dwordx4", KV[m], vL16, srdWs, sKVh, m * 1024, mods=os.environ.get("KVM", ""))
    g.label("hh_k2_kvchk")
    g.salu("s_add_u32", sCnt, sCnt, 1)
    g.raw("s_waitcnt vmcnt(0)")
    g.vm = []
    sentinel_check(g, vP, [KV[0][i] for i in range(4)] + [KV[1][i] for i in range(4)])
    g.salu("s_cmp_ge_u32", None, sCnt, LIMIT)
    g.raw("s_cbranch_scc1 hh_k2_kvok")
    g.salu("s_cmp_eq_u64", None, VCC, 0)
    g.raw("s_cbranch_scc1 hh_k2_kvok")
    g.raw(f"s_sleep {os.environ.get('PSL', '8')}")
    for m in range(2):
        g.bload("buffer_load_dwordx4", KV[m], vL16, srdWs, sKVh, m * 1024, mods="sc1")
    g.raw("s_branch hh_k2_kvchk")
    g.vm = []
    g.label("hh_k2_kvok")
    stamp(g, 4)
    for sb in range(2):
        g.mfma(D[sb], KV[0], PQ[sb][0], 0)
    for sb in range(2):
        g.mfma(D[sb], KV[1], PQ[sb][1], D[sb])
    for sb in range(2):
        g.valu("v_add_f32", vRc, 1e-6, D[sb][8])
        g.valu("v_rcp_f32", vRc, vRc)
        for r in range(8):
            g.valu("v_mul_f32", D[sb][r], vRc, D[sb][r])
        for q in range(4):
            g.valu("v_cvt_pk_bf16_f32", O[sb][q], D[sb][2 * q], D[sb][2 * q + 1])
        g.bstore("buffer_store_dwordx4", O[sb], vL16, srdWs, sOo[sb], mods="sc1")
    if STAMPS == "k2":
        stamp(g, 5)
        g.waitcnt(vm=0)
        for i_ in range(6, 12):
            stamp(g, i_)
        stamp(g, 13, True)
        g.raw("s_waitcnt lgkmcnt(0)")
        g.salu("s_add_u32", S(72 + 14), S(72), sCnt)
        g.salu("s_lshl_b32", sT2, sWG, 3)
        g.salu("s_add_u32", sT2, sT2, sW)
        stamp_flush(g, 14, srdWs, sT2, sT0, V(6), V(7))
    g.raw("s_endpgm")
    g.label("hh_k2_await")
    g.raw(f"s_sleep {os.environ.get('ISL', '96')}")
    g.raw("s_branch hh_k2_ojob")
    out.append(g.text())
    return name, "".join(out) + "hh_k2_exit:\n    s_endpgm\n", max(va.hi, 112)


def descriptor(name, nv):
    nv4 = (nv + 3) // 4 * 4
    return f""".amdhsa_kernel {name}
  .amdhsa_next_free_vgpr {nv4}
  .amdhsa_next_free_sgpr 102
  .amdhsa_accum_offset {nv4}
  .amdhsa_group_segment_fixed_size 0
  .amdhsa_kernarg_size 80
  .amdhsa_user_sgpr_count 2
  .amdhsa_user_sgpr_kernarg_segment_ptr 1
  .amdhsa_system_sgpr_workgroup_id_x 1
.end_amdhsa_kernel
"""


def main(path):
    ks = [gen_k1(), gen_k2()]
    launches = [
        f"; @launch kernel=hh_k1_kernel grid=(256,1,1) block=(512,1,1) lds={K1_LDS}",
        f"; @launch kernel=hh_k2_kernel grid=(256,1,1) block=(512,1,1) lds={K2_LDS}",
    ]
    if KR:
        ks.append(gen_kr())
        launches.insert(1, "; @launch kernel=hh_kr_kernel grid=(32,1,1) block=(256,1,1) lds=0")
    s = "; hedgehog linear attention + SiLU FFN parallel block (generated by my own generator script)\n"
    s += "\n".join(launches) + "\n"
    s += '.amdgcn_target "amdgcn-amd-amdhsa--gfx950"\n.text\n'
    for name, txt, nv in ks:
        s += f".globl {name}\n.p2align 8\n.type {name},@function\n" + txt
    s += "hh_code_end:\n"
    s += '.section .rodata,"a"\n'
    for name, txt, nv in ks:
        s += ".p2align 6\n" + descriptor(name, nv)
        print(name, "vgprs", nv, "lines", txt.count("\n"), file=sys.stderr)
    open(path, "w").write(s)


if __name__ == "__main__":
    if len(sys.argv) > 2 and sys.argv[2].startswith("stamps"):
        STAMPS = sys.argv[2][6:] or "k1"
    ABL.update(sys.argv[3:])
    main(sys.argv[1] if len(sys.argv) > 1 else
         "parallel_sum__linear_kernel_hedgehog__dense_activation_silu__prompt.s")
```

```python
import sys
from asmlib import *

WS_HF = 0x0
WS_PQ = 0x700000
WS_WF = 0xB00000
WS_PART = 0xE00000
WS_KV = 0x1000000
WS_OF = 0x1100000
WS_SIZE = 0x1300000

LOG2E = 1.4426950408889634
ONES_BF = 0x3F803F80

A_BUF = 16384
B_BASE = 49152
B_BUF = 28672
RS = 135168
CS = RS + 4096
PHI_L = RS + 4096 + 7 * 1024
RL_L = PHI_L + 2048
K1_LDS = RL_L + 8192
PHK_IMG = 0
V_IMG = 32768


def make_srd(g, srd, base, nbytes, off=None):
    if off is None:
        g.salu("s_mov_b32", srd[0], base[0])
        g.salu("s_mov_b32", srd[1], base[1])
    else:
        g.salu("s_add_u32", srd[0], base[0], off)
        g.salu("s_addc_u32", srd[1], base[1], 0)
    g.salu("s_mov_b32", srd[2], nbytes)
    g.salu("s_mov_b32", srd[3], 0x20000)


STAMPS = False
import os
KR = os.environ.get("KR", "") == "1"
CPF = os.environ.get("CPF", "1") == "1"
TCH = os.environ.get("TCH", "1") == "1"
TSCH = [int(x) for x in os.environ.get("TSCH", "-9,-1,1,4,8,12").split(",")]
GT = os.environ.get("GT", "")
GP = int(os.environ.get("GP", "1"))
ROT = int(os.environ.get("ROT", "0"))
EARLY = os.environ.get("EARLY", "1") == "1"
LATE_T = int(os.environ.get("LATE_T", "28" if EARLY else "16"))
import os
STM = os.environ.get("STM", "sc0 sc1")
ABL = set()
WS_DBG = 0x1080000


CURK = [None]


def STREG(idx):
    return {12: 100, 13: 70}.get(idx, 72 + 2 * idx)


def stamp(g, idx, real=False):
    if STAMPS == CURK[0]:
        g.raw(f"{'s_memrealtime' if real else 's_memtime'} s[{STREG(idx)}:{STREG(idx) + 1}]")


def stamp_flush(g, n, srdWs, sGw, sT, vtmp, vtmp2):
    if STAMPS != CURK[0]:
        return
    g.raw("s_waitcnt lgkmcnt(0)")
    g.salu("s_lshl_b32", sT, sGw, 6)
    g.salu("s_add_u32", sT, sT, WS_DBG)
    g.valu("v_mov_b32", vtmp2, 0)
    for i in range(n):
        g.valu("v_mov_b32", vtmp, S(STREG(i)))
        g.bstore("buffer_store_dword", vtmp, vtmp2, srdWs, sT, 4 * i)


AMPN = [0]


def amp(g, sGw, sT0, sT1, sT2):
    A = os.environ.get("AMP", "")
    if not A or STAMPS != CURK[0]:
        return
    a, b, sh = (int(x) for x in A.split(","))
    n = AMPN[0]
    AMPN[0] += 1
    g.raw("s_waitcnt lgkmcnt(0)")
    if int(os.environ.get("AMPW", "0")) >= 0:
        g.salu("s_cmp_eq_u32", None, sGw, int(os.environ.get("AMPW", "0")))
        g.raw(f"s_cbranch_scc0 hh_amp_skip{n}")
    elif int(os.environ.get("AMPW", "0")) == -2:
        g.salu("s_cmp_lt_u32", None, sGw, 1024)
        g.raw(f"s_cbranch_scc0 hh_amp_skip{n}")
    g.salu("s_sub_u32", sT0, S(STREG(b)), S(STREG(a)))
    if sh >= 0:
        g.salu("s_lshl_b32", sT0, sT0, sh)
    else:
        g.salu("s_lshr_b32", sT0, sT0, -sh)
    g.salu("s_min_u32", sT0, sT0, 20000)
    g.raw("s_memrealtime s[100:101]")
    g.raw("s_waitcnt lgkmcnt(0)")
    g.salu("s_add_u32", sT1, S(100), sT0)
    g.label(f"hh_amp_loop{n}")
    g.raw("s_sleep 2")
    g.raw("s_memrealtime s[100:101]")
    g.raw("s_waitcnt lgkmcnt(0)")
    g.salu("s_sub_u32", sT2, sT1, S(100))
    g.salu("s_cmp_gt_i32", None, sT2, 0)
    g.raw(f"s_cbranch_scc1 hh_amp_loop{n}")
    g.label(f"hh_amp_skip{n}")


def bf16_round(g, dst, src):
    g.valu("v_cvt_pk_bf16_f32", dst, src, src)
    g.valu("v_lshlrev_b32", dst, 16, dst)


def gen_k1():
    name = "hh_k1_kernel"
    CURK[0] = "k1"
    g = Gen()
    out = []
    sKarg, sWG = S(0, 2), S(2)
    sX, sWqkv, sWphi, sWo, sW1, sW2, sWs = S(4, 2), S(6, 2), S(8, 2), S(10, 2), S(12, 2), S(14, 2), S(16, 2)
    srdX, srdW, srdWs, srdAux, srdAux2, srdPhi = S(20, 4), S(24, 4), S(28, 4), S(32, 4), S(36, 4), S(40, 4)
    sW, sI, sJ, sMt, sNt, sType, sXcd, sIdx = (S(44 + k) for k in range(8))
    sT0, sT1, sT2, sT3 = S(52), S(53), S(54), S(55)
    sKA, sKB, sAm0, sBm0, sOnes, sGw = S(56), S(57), S(58), S(59), S(60), S(61)
    sMask = S(62, 2)
    sF1, sF2, sF1d, sF2d = S(64), S(65), S(66), S(67)
    sOut = S(68)
    sPhiOff = S(69)
    sRm0 = S(18)

    g.label(name)
    g.salu("s_cmp_ge_u32", None, sWG, 256)
    g.raw("s_cbranch_scc1 hh_k1_exit")
    stamp(g, 0)
    stamp(g, 12, True)
    g.sload(S(4, 4), sKarg, 0)
    g.sload(S(8, 4), sKarg, 16)
    g.sload(S(12, 4), sKarg, 40)
    g.sload(S(16, 2), sKarg, 72)
    vTid = V(0)
    vLane, vT = V(1), V(2)
    g.valu("v_lshrrev_b32", vT, 6, vTid)
    g.valu("v_and_b32", vLane, 63, vTid)
    g.valu("v_readfirstlane_b32", sW, vT)
    g.salu("s_and_b32", sXcd, sWG, 7)
    g.salu("s_lshr_b32", sIdx, sWG, 3)
    if CPF:
        sPc = S(70, 2)
        g.raw(f"s_getpc_b64 {sPc}")
        g.label("hh_k1_pc")
        g.raw(f"s_sub_u32 {sPc[0]}, {sPc[0]}, hh_k1_pc-hh_k1_kernel")
        g.raw(f"s_subb_u32 {sPc[1]}, {sPc[1]}, 0")
        g.salu("s_and_b32", sT0, sIdx, 7)
        g.salu("s_lshl_b32", sT0, sT0, 13)
        g.valu("v_lshrrev_b32", V(3), 3, vTid)
        g.valu("v_lshl_add_u32", V(3), V(3), 7, sT0)
        g.raw("v_min_u32 v3, hh_code_end-hh_k1_kernel-4, v3")
        g.raw(f"global_load_dword v4, v3, {sPc}")
        g.vm.append({"regs": {("v", 4)}, "tag": "cpf"})
    g.salu("s_and_b32", sT0, sXcd, 1)
    g.salu("s_lshl_b32", sT0, sT0, 3)
    g.salu("s_and_b32", sT1, sIdx, 7)
    g.salu("s_or_b32", sMt, sT0, sT1)
    g.salu("s_lshr_b32", sType, sIdx, 4)
    g.salu("s_lshr_b32", sT0, sXcd, 1)
    g.salu("s_lshl_b32", sT0, sT0, 1)
    g.salu("s_bfe_u32", sT1, sIdx, (1 << 16) | 3)
    g.salu("s_or_b32", sNt, sT0, sT1)
    if os.environ.get("NTX"):
        g.salu("s_xor_b32", sNt, sNt, int(os.environ["NTX"]))
    g.salu("s_and_b32", sI, sW, 3)
    g.salu("s_lshr_b32", sJ, sW, 2)
    g.salu("s_lshl_b32", sT0, sWG, 3)
    g.salu("s_add_u32", sGw, sT0, sW)
    g.salu("s_mov_b32", sOnes, ONES_BF)
    sRot = S(3)
    if ROT == 1:
        g.salu("s_lshl_b32", sT0, sXcd, 2)
        g.salu("s_and_b32", sRot, sXcd, 6)
        g.salu("s_add_u32", sRot, sRot, sT0)
    elif ROT == 2:
        g.salu("s_and_b32", sRot, sXcd, 6)
    elif ROT == 3:
        g.salu("s_and_b32", sRot, sXcd, 1)
        g.salu("s_lshl_b32", sRot, sRot, 2)
    elif ROT == 4:
        g.salu("s_and_b32", sRot, sXcd, 4)
    g.salu("s_lshl_b32", sT0, sType, 1)
    g.salu("s_add_u32", sT0, sT0, sJ)
    g.salu("s_cmp_eq_u32", None, sT0, 1)
    g.raw("s_cbranch_scc1 hh_k1_r1")
    g.salu("s_cmp_eq_u32", None, sT0, 2)
    g.raw("s_cbranch_scc1 hh_k1_r2")
    g.salu("s_cmp_eq_u32", None, sT0, 3)
    g.raw("s_cbranch_scc1 hh_k1_r3")
    out.append(g.text())
    base_state = g
    maxv = 0

    for role in range(4):
        typ, j = role >> 1, role & 1
        g = base_state.fork()
        g.label(f"hh_k1_r{role}")
        va = VAlloc(5, 256)
        U = 4 if (typ == 1 and j == 0) else 3
        ldw = 3584 if typ else 3072
        nB = 4 if j == 1 else 3
        vA = [va.get() for _ in range(2)]
        vB = [va.get() for _ in range(nB)]
        t0, t1, t2, t3 = va.get(), va.get(), va.get(), va.get()
        g.valu("v_lshrrev_b32", t0, 3, vLane)
        g.valu("v_lshrrev_b32", t1, 4, vLane)
        g.valu("v_and_b32", t2, 7, vLane)
        g.salu("s_lshl_b32", sT0, sW, 4)
        for e in range(2):
            g.valu("v_add_u32", t3, sT0, t0)
            if e:
                g.valu("v_add_u32", t3, 8, t3)
            g.valu("v_lshlrev_b32", vA[e], 10, t3)
            g.valu("v_xor_b32", t3, t2, t1)
            if e:
                g.valu("v_xor_b32", t3, 4, t3)
            g.valu("v_lshl_add_u32", vA[e], t3, 4, vA[e])
        g.salu("s_add_u32", sT1, sW, 4)
        g.salu("s_and_b32", sT1, sT1, 7)
        g.salu("s_lshl_b32", sBm0, sT1, 10)
        g.salu("s_add_u32", sBm0, sBm0, B_BASE)
        g.salu("s_lshl_b32", sAm0, sW, 11)
        g.salu("s_lshl_b32", sT1, sT1, 6)
        for e in range(nB):
            g.valu("v_add_u32", t0, sT1, vLane)
            if e:
                g.valu("v_add_u32", t0, 512 * e, t0)
            g.valu("v_mul_u32_u24", t1, 2341, t0)
            g.valu("v_lshrrev_b32", t1, 16, t1)
            g.valu("v_mul_u32_u24", t2, 28, t1)
            g.valu("v_sub_u32", t2, t0, t2)
            g.valu("v_mul_u32_u24", vB[e], ldw, t1)
            if typ == 1:
                g.valu("v_lshl_add_u32", vB[e], t2, 4, vB[e])
            else:
                g.valu("v_lshrrev_b32", t3, 3, t2)
                g.valu("v_lshl_add_u32", vB[e], t3, 10, vB[e])
                g.valu("v_and_b32", t3, 7, t2)
                g.valu("v_lshl_add_u32", vB[e], t3, 4, vB[e])
                g.valu("v_cmp_le_u32", VCC, 24, t2)
                g.valu("v_mov_b32", t3, 0x80000000)
                g.valu("v_cndmask_b32", vB[e], vB[e], t3, VCC)
        g.salu("s_mov_b32", sKA, 0)
        g.salu("s_mov_b32", sKB, 0)
        g.lg = []
        g.raw("s_waitcnt lgkmcnt(0)")
        g.salu("s_lshl_b32", sT0, sMt, 17)
        make_srd(g, srdX, sX, 131072, sT0)
        if typ == 0:
            g.salu("s_lshl_b32", sT0, sNt, 7)
            if os.environ.get("WSRC") == "w2":
                make_srd(g, srdW, sW2, 512 * 3072 - 7 * 128, sT0)
            elif os.environ.get("WSRC") == "ws":
                g.salu("s_add_u32", sT0, sT0, int(os.environ.get("WOFF", "0x4000000"), 0))
                make_srd(g, srdW, sWs, 512 * 3072 - 7 * 128, sT0)
            else:
                make_srd(g, srdW, sWqkv, 512 * 3072 - 7 * 128, sT0)
        else:
            g.salu("s_mul_i32", sT0, sNt, 448)
            make_srd(g, srdW, sW1, 512 * 3584 - 7 * 448, sT0)
        make_srd(g, srdWs, sWs, WS_SIZE)

        def dma_items(stage):
            b = stage % 3
            items = []
            for e in range(2):
                def f(e=e):
                    if not ROT:
                        g.salu("s_mov_b32", sKA, stage * 128)
                    elif e == 0:
                        g.salu("s_add_u32", sKB, sRot, stage)
                        g.salu("s_and_b32", sKB, sKB, 7)
                        g.salu("s_lshl_b32", sKA, sKB, 7)
                        g.salu("s_mul_i32", sKB, sKB, 64 * ldw)
                    g.salu("s_add_u32", M0, sAm0, b * A_BUF + e * 1024)
                    g.dma(vA[e], srdX, sKA, tag=("dma", stage))
                items.append(f)
            for e in range(nB):
                def f(e=e):
                    if not ROT:
                        g.salu("s_mov_b32", sKB, stage * 64 * ldw)
                    g.salu("s_add_u32", M0, sBm0, b * B_BUF + e * 8192)
                    g.dma(vB[e], srdW, sKB, tag=("dma", stage))
                items.append(f)
            return items

        def issue_dma(stage):
            for f in dma_items(stage):
                f()

        def gtouch():
            srdT, sBy = srdAux, S(19)
            tens = [(sX, 8192, "x"), (sWqkv, 6144, "w"), (sW1, 7168, "w"), (sW2, 7168, "f")] if j == 0 else \
                   [(sWo, 2048, "f")]
            g.salu("s_mov_b32", sBy, 0)
            g.salu("s_mov_b32", srdT[0], sX[0])
            g.salu("s_mov_b32", srdT[1], sX[1])
            for i_, (bs, by, fl) in enumerate(tens):
                if fl not in GT:
                    continue
                g.salu("s_cmp_eq_u32", None, sI, i_)
                g.salu("s_cselect_b32", srdT[0], bs[0], srdT[0])
                g.salu("s_cselect_b32", srdT[1], bs[1], srdT[1])
                g.salu("s_cselect_b32", sBy, by, sBy)
            g.salu("s_lshl_b32", srdT[2], sBy, 8)
            g.salu("s_mov_b32", srdT[3], 0x20000)
            g.valu("v_lshlrev_b32", V(3), 7, vLane)
            g.valu("v_cmp_le_u32", VCC, sBy, V(3))
            g.valu("v_mov_b32", t3, 0x80000000)
            g.valu("v_cndmask_b32", V(3), V(3), t3, VCC)
            g.salu("s_mul_i32", sBy, sBy, sWG)
            g.raw(f"buffer_load_dword v4, v3, {srdT}, {sBy} offen")
            g.vm.append({"regs": set(), "tag": "touch"})

        stamp(g, 1)
        issue_dma(0)
        if GT and GP == 0:
            gtouch()
        g.barrier()
        stamp(g, 2)

        vXa = [va.get() for _ in range(4)]
        vWa = [va.get() for _ in range(4)]
        vWb = [va.get() for _ in range(4)]
        g.valu("v_and_b32", t0, 31, vLane)
        g.salu("s_lshl_b32", sT0, sI, 5)
        g.valu("v_add_u32", t0, sT0, t0)
        g.valu("v_lshlrev_b32", t0, 7, t0)
        g.valu("v_lshrrev_b32", t1, 5, vLane)
        g.valu("v_bfe_u32", t2, vLane, 1, 3)
        g.valu("v_xor_b32", t1, t1, t2)
        g.valu("v_lshl_add_u32", t0, t1, 4, t0)
        g.valu("v_lshrrev_b32", t1, 5, vLane)
        g.valu("v_bfe_u32", t2, vLane, 2, 2)
        g.valu("v_lshl_add_u32", t1, t1, 3, t2)
        g.valu("v_mul_u32_u24", t1, 448, t1)
        g.valu("v_bfe_u32", t2, vLane, 4, 1)
        g.valu("v_lshl_add_u32", t1, t2, 5, t1)
        g.valu("v_and_b32", t2, 3, vLane)
        g.valu("v_lshl_add_u32", t1, t2, 3, t1)
        g.valu("v_add_u32", t1, B_BASE + j * 64, t1)
        for t in range(4):
            g.salu("s_add_u32", sT0, sI, t + 2 * j)
            g.salu("s_and_b32", sT0, sT0, 3)
            g.salu("s_lshl_b32", sT1, sT0, 5)
            g.valu("v_xor_b32", vXa[t], sT1, t0)
            g.salu("s_mul_i32", sT1, sT0, 16 * 448)
            g.valu("v_add_u32", vWa[t], sT1, t1)
            g.valu("v_add_u32", vWb[t], 2 * B_BUF, vWa[t])

        issue_dma(1)
        if GT and GP == 1:
            gtouch()
        TCHr = TCH and j == 0
        if TCHr:
            vTo, vTd = va.get(), V(4)
            srdT, sCh = S(96, 4), S(19)
            tens = [(sX, 2048 * 1024, 8, 1024, 8192, 128),
                    (sWqkv, 512 * 3072, 6, 128, 768, 64 * 3072),
                    (sW1, 512 * 3584, 7, 128, 896, 64 * 3584)]
            g.salu("s_mov_b32", srdT[0], sX[0])
            g.salu("s_mov_b32", srdT[1], sX[1])
            g.salu("s_mov_b32", srdT[2], 0)
            g.salu("s_mov_b32", srdT[3], 0x20000)
            g.salu("s_mov_b32", sCh, 0)
            g.salu("s_mov_b32", sT0, 0)
            g.salu("s_mov_b32", sT1, 0)
            g.salu("s_mov_b32", sT2, 7)
            for i_, (bs, sz, nl, ls, pc_, ch) in enumerate(tens):
                g.salu("s_cmp_eq_u32", None, sI, i_)
                if i_:
                    g.salu("s_cselect_b32", srdT[0], bs[0], srdT[0])
                    g.salu("s_cselect_b32", srdT[1], bs[1], srdT[1])
                else:
                    g.salu("s_cselect_b32", sT2, 10, sT2)
                g.salu("s_cselect_b32", srdT[2], sz, srdT[2])
                g.salu("s_cselect_b32", sCh, ch, sCh)
                g.salu("s_cselect_b32", sT0, nl, sT0)
                g.salu("s_cselect_b32", sT1, pc_, sT1)
            g.salu("s_mul_i32", sT1, sT1, sWG)
            g.valu("v_lshlrev_b32", vTo, sT2, vLane)
            g.valu("v_add_u32", vTo, sT1, vTo)
            g.valu("v_cmp_le_u32", VCC, sT0, vLane)
            g.valu("v_mov_b32", t1, 0x80000000)
            g.valu("v_cndmask_b32", vTo, vTo, t1, VCC)

            def touch(st0):
                g.salu("s_mul_i32", sT2, sCh, st0)
                g.raw(f"buffer_load_dword {vTd}, {vTo}, {srdT}, {sT2} offen")
                g.vm.append({"regs": set(), "tag": "touch"})
            for st_, T_ in enumerate(TSCH):
                if T_ == -2:
                    touch(2 + st_)
        side = []
        side += dma_items(2)
        sched = {"n": 3 * U, "k": len(side), "i": 0}
        vRl = va.get()
        g.valu("v_lshrrev_b32", t1, 2, vLane)
        g.valu("v_and_b32", t2, 3, vLane)
        g.valu("v_lshlrev_b32", t2, 4, t2)
        g.valu("v_lshl_add_u32", vRl, t1, 10, t2)
        vL16 = va.get()
        g.valu("v_lshlrev_b32", vL16, 4, vLane)
        g.salu("s_lshr_b32", sT0, sGw, 4)
        g.salu("s_and_b32", sT1, sGw, 15)
        g.salu("s_mul_i32", sF1d, sT1, 144)
        g.salu("s_add_u32", sF1d, sF1d, sT0)
        g.salu("s_lshl_b32", sF1d, sF1d, 10)
        g.salu("s_add_u32", sF1d, sF1d, WS_WF)
        g.salu("s_add_u32", sF2d, sF1d, 128 * 1024)
        g.salu("s_cmp_lt_u32", None, sGw, 256)
        g.salu("s_cselect_b32", sF2d, sF2d, 0x7FFF0000)
        g.salu("s_cmp_ge_u32", None, sT0, 112)
        g.salu("s_cselect_b32", srdAux[0], sWo[0], sW2[0])
        g.salu("s_cselect_b32", srdAux[1], sWo[1], sW2[1])
        g.salu("s_mov_b32", sT3, 1792 * 1024)
        g.salu("s_cselect_b32", srdAux[2], 512 * 1024, sT3)
        g.salu("s_mov_b32", srdAux[3], 0x20000)
        g.salu("s_cselect_b32", sT2, 112, 0)
        g.salu("s_sub_u32", sT2, sT0, sT2)
        g.salu("s_lshl_b32", sF1, sT2, 14)
        g.salu("s_lshl_b32", sT1, sT1, 6)
        g.salu("s_add_u32", sF1, sF1, sT1)
        g.salu("s_add_u32", sT2, sT0, 16)
        g.salu("s_lshl_b32", sF2, sT2, 14)
        g.salu("s_add_u32", sF2, sF2, sT1)
        make_srd(g, srdAux2, sWo, 512 * 1024)
        g.salu("s_lshl_b32", sRm0, sW, 10)
        g.salu("s_add_u32", sRm0, sRm0, RS)
        vF = [va.get(4, 4), va.get(4, 4)]
        vFa = va.get()
        g.valu("v_lshrrev_b32", t1, 5, vLane)
        g.valu("v_bfe_u32", t2, vLane, 2, 2)
        g.valu("v_lshl_add_u32", t1, t1, 2, t2)
        g.valu("v_bfe_u32", t2, vLane, 4, 1)
        g.valu("v_and_b32", t3, 3, vLane)
        g.valu("v_lshl_add_u32", vFa, t2, 2, t3)
        g.valu("v_lshlrev_b32", vFa, 3, vFa)
        g.valu("v_lshl_add_u32", vFa, t1, 6, vFa)
        g.valu("v_add_u32", vFa, sRm0, vFa)

        def frag_dma(n_):
            g.salu("s_add_u32", M0, sRm0, 0 if n_ else RL_L - RS)
            g.dma(vRl, (srdAux, srdAux2)[n_], (sF1, sF2)[n_], tag=("aux", n_))

        def frag_rd(n_):
            g.wait_vm_tag(("aux", n_))
            for half in range(2):
                g.ds_read("ds_read_b64_tr_b16", vF[n_][2 * half:2 * half + 2], vFa, half * 512 + (0 if n_ else RL_L - RS))

        late = []
        if typ == 0:
            make_srd(g, srdPhi, sWphi, 32 * 512)
            vPa, vSign = va.get(), va.get()
            PH = [va.get(4, 4) for _ in range(2)]
            g.valu("v_lshrrev_b32", t3, 1, t3)
            g.valu("v_lshl_add_u32", vPa, t2, 1, t3)
            g.valu("v_lshlrev_b32", vPa, 3, vPa)
            g.valu("v_lshl_add_u32", vPa, t1, 5, vPa)
            g.valu("v_bfe_u32", t1, vLane, 2, 1)
            g.salu("s_mov_b32", sT0, 0x80008000)
            g.valu("v_mul_lo_u32", vSign, t1, sT0)
            g.salu("s_lshl_b32", sT0, sNt, 2)
            g.salu("s_add_u32", sT0, sT0, 2 * j)
            g.salu("s_lshl_b32", sPhiOff, sT0, 9)

            def phi_dma():
                g.salu("s_mov_b32", M0, PHI_L + j * 1024)
                g.dma(vL16, srdPhi, sPhiOff, tag=("aux", 2))

            def phi_rd():
                g.wait_vm_tag(("aux", 2))
                for hl in range(2):
                    for half in range(2):
                        g.ds_read("ds_read_b64_tr_b16", PH[hl][2 * half:2 * half + 2], vPa,
                                  PHI_L + j * 1024 + hl * 512 + half * 256 - 65536 * 2)
        at_T = {}

        def at(T_, f):
            at_T.setdefault(T_, []).append(f)
        F0 = int(os.environ.get("F0", "16"))
        assert F0 + 8 <= 27
        if "norl" not in ABL:
            at(F0, lambda: frag_dma(0))
            at(F0 + 1, lambda: frag_dma(1))
            at(F0 + 8, lambda: frag_rd(0))
            at(F0 + 9, lambda: frag_rd(1))
        if TCHr:
            for st_, T_ in enumerate(TSCH):
                if T_ >= 0:
                    at(T_, lambda st_=st_: touch(2 + st_))
        if typ == 0:
            g.valu("v_add_u32", vPa, 65536 * 2, vPa)
            at(F0 + 2, phi_dma)
            at(F0 + 10, phi_rd)

        acc = [va.get(16, 4) for _ in range(U)]
        X = [va.get(4, 4) for _ in range(2)]
        Wf = [[va.get(4, 4) for _ in range(U)] for _ in range(2)]
        vSS = va.get(2, 2)
        vSum, vSq = vSS[0], vSS[1]
        vSum2, vSq2 = va.get(), va.get()
        vCsA = [va.get(4, 4) for _ in range(U)]
        vSel = va.get(4, 4)
        vUn = [va.get() for _ in range(4)]
        g.valu("v_lshrrev_b32", t1, 4, vLane)
        g.valu("v_xor_b32", t1, t1, vLane)
        g.valu("v_and_b32", t1, 1, t1)
        g.valu("v_cmp_eq_u32", VCC, 0, t1)
        g.valu("v_mov_b32", t1, 0)
        g.valu("v_mov_b32", t2, ONES_BF)
        for q in range(4):
            g.valu("v_cndmask_b32", vSel[q], t1, t2, VCC)
        sHiMask = sOnes
        g.salu("s_mov_b32", sHiMask, 0xFFFF0000)
        for z in [vSum, vSq, vSum2, vSq2]:
            g.valu("v_mov_b32", z, 0)

        def rd_x(T):
            s, t = divmod(T, 4)
            g.ds_read("ds_read_b128", X[T & 1], vXa[t], (s % 3) * A_BUF)

        def rd_w(T, u):
            if "nords" in ABL and T > 0:
                return
            s, t = divmod(T, 4)
            b = s % 3
            base, off = (vWa[t], b * B_BUF) if b < 2 else (vWb[t], 0)
            for half in range(2):
                g.ds_read("ds_read_b64_tr_b16", Wf[T & 1][u][2 * half:2 * half + 2], base,
                          off + half * 4 * 448 + u * 128)

        def sent1():
            for q in range(4):
                g.valu("v_mov_b32", va_tmp[0][q], -1)
            g.salu("s_lshl_b32", sT0, sGw, 10)
            g.salu("s_add_u32", sT0, sT0, WS_OF)
            g.bstore("buffer_store_dwordx4", va_tmp[0], vL16, srdWs, sT0, mods=STM)

        def sent2():
            g.salu("s_lshl_b32", sT0, sGw, 10)
            g.salu("s_add_u32", sT0, sT0, WS_KV)
            g.salu("s_cmp_lt_u32", None, sGw, 64)
            g.salu("s_cselect_b32", sT0, sT0, 0x7FFF0000)
            g.bstore("buffer_store_dwordx4", va_tmp[0], vL16, srdWs, sT0, mods=STM)

        if "nosent" not in ABL:
            late.insert(0, sent1)
            late.insert(1, sent2)

        if "norl" not in ABL:
            late.append(lambda: g.bstore("buffer_store_dwordx4", vF[0], vL16, srdWs, sF1d, mods=STM))
            late.append(lambda: g.bstore("buffer_store_dwordx4", vF[1], vL16, srdWs, sF2d, mods=STM))

        va_tmp = [va.get(4, 4)]

        if TCHr:
            for st_, T_ in enumerate(TSCH):
                if T_ == -1:
                    touch(2 + st_)
        stamp(g, 3)
        g.wait_vm_tag(("dma", 0))
        g.barrier()
        stamp(g, 4)
        rd_x(0)
        for u in range(U):
            rd_w(0, u)

        for T in range(32):
            s, t = divmod(T, 4)
            cur = T & 1
            last = (T == 31)
            fill = [[] for _ in range(U)]
            if "nodot" not in ABL:
                ops = []
                for r in (2 * j, 2 * j + 1):
                    lo, hi = vUn[2 * (r & 1)], vUn[2 * (r & 1) + 1]
                    ops += [lambda r=r, lo=lo: g.valu("v_lshlrev_b32", lo, 16, X[cur][r]),
                            lambda r=r, hi=hi: g.valu("v_and_b32", hi, sHiMask, X[cur][r]),
                            lambda lo=lo: g.valu("v_add_f32", vSum, vSum, lo),
                            lambda hi=hi: g.valu("v_add_f32", vSum2, vSum2, hi),
                            lambda lo=lo: g.valu("v_fma_f32", vSq, lo, lo, vSq),
                            lambda hi=hi: g.valu("v_fma_f32", vSq2, hi, hi, vSq2)]
                per = 12 // U
                if "nors" in ABL:
                    ops = []
                for u in range(U):
                    fill[u] += ops[u * per:(u + 1) * per]
                if t < U and "nocs" not in ABL:
                    fill[t].insert(0, lambda t=t: g.mfma(vCsA[t], Wf[cur][t], vSel, vCsA[t] if s else 0,
                                                         op="v_mfma_f32_16x16x32_bf16"))
            boundary = (t == 3 and not last)
            for u in range(U):
                if "nomfma" not in ABL or T == 0:
                    g.mfma(acc[u], Wf[cur][u], X[cur], acc[u] if T else 0)
                else:
                    g._wait_for_regs(Wf[cur][u].regs() + X[cur].regs())
                if not boundary and not last:
                    if u == 0:
                        rd_x(T + 1)
                    rd_w(T + 1, u)
                if boundary and u == 1:
                    g.waitcnt(lg=0)
                    g.wait_vm_tag(("dma", s + 1))
                    g.barrier()
                    rd_x(T + 1)
                    for uu in range(U):
                        rd_w(T + 1, uu)
                if boundary and u == 1:
                    assert not side
                    if s + 3 <= 7 and "nodma" not in ABL:
                        side += dma_items(s + 3)
                        sched["n"] = (U - 2) + 3 * U
                        sched["k"] = len(side)
                        sched["i"] = 0
                elif not (boundary and u < 2):
                    did = False
                    if side:
                        i0 = sched["i"]
                        if (i0 + 1) * sched["k"] // sched["n"] > i0 * sched["k"] // sched["n"]:
                            side.pop(0)()
                            did = True
                        sched["i"] += 1
                    if not did and late and T >= LATE_T:
                        f_ = late.pop(0)
                        if f_:
                            f_()
                if u == 0 and T in at_T:
                    for f in at_T[T]:
                        f()
                for f in fill[u]:
                    f()
            if T in (7, 15, 23, 31):
                stamp(g, 5 + T // 8)
        assert not side
        while late:
            f_ = late.pop(0)
            if f_:
                f_()
        vRa, vCa, vRr, vCr = va.get(), va.get(), va.get(), va.get()
        g.valu("v_and_b32", t0, 31, vLane)
        g.valu("v_lshrrev_b32", t2, 5, vLane)
        g.salu("s_lshl_b32", sT0, sI, 5)
        g.valu("v_add_u32", t1, sT0, t0)
        g.valu("v_lshlrev_b32", vRr, 5, t1)
        g.valu("v_add_u32", vRr, RS, vRr)
        g.valu("v_lshl_add_u32", vRa, t2, 3, vRr)
        g.valu("v_lshlrev_b32", vCr, 2, t0)
        g.valu("v_add_u32", vCr, CS + j * 512, vCr)
        g.valu("v_and_b32", t1, 1, vLane)
        g.valu("v_lshlrev_b32", t1, 6, t1)
        g.valu("v_lshrrev_b32", t2, 4, vLane)
        g.valu("v_lshl_add_u32", vCa, t2, 4, t1)
        g.salu("s_lshl_b32", sT0, sI, 7)
        g.salu("s_add_u32", sT0, sT0, CS + j * 512)
        g.valu("v_add_u32", vCa, sT0, vCa)
        g.valu("v_add_f32", vSum, vSum, vSum2)
        g.valu("v_add_f32", vSq, vSq, vSq2)
        g.ds_write("ds_write_b64", vRa, vSS, j * 16)
        g.salu("s_mov_b32", EXEC[0], 0x00030003)
        g.salu("s_mov_b32", EXEC[1], 0x00030003)
        for u in range(U):
            g.ds_write("ds_write_b128", vCa, vCsA[u], u * 1024)
        g.salu("s_mov_b64", EXEC, -1)
        g.waitcnt(lg=0)
        g.barrier()
        stamp(g, 9)
        csr = [va.get(16, 4) for _ in range(2)]
        rsr = csr[0][0:8]
        g.ds_read("ds_read_b128", rsr[0:4], vRr)
        g.ds_read("ds_read_b128", rsr[4:8], vRr, 16)
        cpt = [csr[1][4 * u:4 * u + 4] for u in range(U)]
        for u in range(U):
            for i_ in range(4):
                g.ds_read("ds_read_b32", cpt[u][i_], vCr, u * 1024 + i_ * 128)
        vMean, vVar, vRinv, vNr2 = va.get(), va.get(), va.get(), va.get()
        g.valu("v_add_f32", rsr[0], rsr[0], rsr[2])
        g.valu("v_add_f32", rsr[1], rsr[1], rsr[3])
        g.valu("v_add_f32", rsr[4], rsr[4], rsr[6])
        g.valu("v_add_f32", rsr[5], rsr[5], rsr[7])
        g.valu("v_add_f32", rsr[0], rsr[0], rsr[4])
        g.valu("v_add_f32", rsr[1], rsr[1], rsr[5])
        g.valu("v_mul_f32", vMean, 1.0 / 512, rsr[0])
        g.valu("v_mul_f32", vVar, 1.0 / 512, rsr[1])
        g.valu("v_fma_f32", vVar, Neg(vMean), vMean, vVar)
        MB = X[0]
        g.valu("v_cvt_pk_bf16_f32", MB[0], Neg(vMean), Neg(vMean))
        g.valu("v_cmp_gt_u32", VCC, 32, vLane)
        g.valu("v_mov_b32", MB[2], 0)
        g.valu("v_mov_b32", MB[3], 0)
        g.valu("v_cndmask_b32", MB[0], MB[2], MB[0], VCC)
        g.valu("v_and_b32", MB[1], 0xFFFF, MB[0])
        bf16_round(g, vVar, vVar)
        g.valu("v_add_f32", vVar, 1e-5, vVar)
        bf16_round(g, vVar, vVar)
        g.valu("v_sqrt_f32", vVar, vVar)
        bf16_round(g, vVar, vVar)
        g.valu("v_rcp_f32", vRinv, vVar)
        g.salu("s_mov_b32", sT3, 0x07060302)
        CA = [Wf[0][u] for u in range(U)]
        for u in range(U):
            c = cpt[u]
            g.valu("v_add_f32", c[0], c[0], c[1])
            g.valu("v_add_f32", c[2], c[2], c[3])
            g.valu("v_add_f32", c[0], c[0], c[2])
            g.valu("v_and_b32", c[1], sHiMask, c[0])
            g.valu("v_sub_f32", c[1], c[0], c[1])
            g.valu("v_and_b32", c[2], sHiMask, c[1])
            g.valu("v_sub_f32", c[2], c[1], c[2])
            g.valu("v_perm_b32", CA[u][0], c[1], c[0], sT3)
            g.valu("v_lshrrev_b32", CA[u][1], 16, c[2])
            g.valu("v_mov_b32", CA[u][2], 0)
            g.valu("v_mov_b32", CA[u][3], 0)
            g.mfma(acc[u], CA[u], MB, acc[u])
        g.valu("v_mul_f32", vNr2, -LOG2E, vRinv)

        if typ == 1:
            g.salu("s_lshl_b32", sT0, sMt, 2)
            g.salu("s_add_u32", sT0, sT0, sI)
            g.salu("s_mul_i32", sT0, sT0, 112)
            g.salu("s_mul_i32", sT1, sNt, 14)
            g.salu("s_add_u32", sT0, sT0, sT1)
            g.salu("s_add_u32", sT0, sT0, 2 * j)
            g.salu("s_lshl_b32", sOut, sT0, 10)
            e = [va.get() for _ in range(8)]
            pk = [va.get(4, 4) for _ in range(2)]
            g.salu("s_mov_b32", sT2, -LOG2E)
            for u in range(U):
                for m in range(2):
                    rr = range(8 * m, 8 * m + 8)
                    for r in rr:
                        g.valu("v_mul_f32", acc[u][r], vNr2, acc[u][r])
                    for r in rr:
                        g.valu("v_exp_f32", e[r & 7], acc[u][r])
                    for r in rr:
                        g.valu("v_fma_f32", e[r & 7], e[r & 7], sT2, sT2)
                    for r in rr:
                        g.valu("v_rcp_f32", e[r & 7], e[r & 7])
                    for r in rr:
                        g.valu("v_mul_f32", acc[u][r], acc[u][r], e[r & 7])
                    for q in range(4):
                        g.valu("v_cvt_pk_bf16_f32", pk[m][q], acc[u][8 * m + 2 * q], acc[u][8 * m + 2 * q + 1])
                    g.bstore("buffer_store_dwordx4", pk[m], vL16, srdWs, sOut, m * 1024, mods=STM)
                if u + 1 < U:
                    g.salu("s_add_u32", sOut, sOut, 4096)
        else:
            for hl in range(2):
                for q in range(4):
                    g.valu("v_xor_b32", PH[hl][q], vSign, PH[hl][q])
            for u in (2, 1, 0):
                for r in range(16):
                    g.valu("v_mul_f32", acc[u][r], vRinv, acc[u][r])
            vIm = va.get()
            g.valu("v_and_b32", t0, 31, vLane)
            g.salu("s_lshl_b32", sT0, sI, 5)
            g.valu("v_add_u32", t0, sT0, t0)
            g.valu("v_lshlrev_b32", t0, 6, t0)
            g.valu("v_lshrrev_b32", t1, 5, vLane)
            g.valu("v_lshl_add_u32", vIm, t1, 3, t0)
            assert Wf[1][2].i == Wf[1][1].i + 4
            pk8 = V(Wf[1][1].i, 8)
            D2 = csr
            QF = X
            vMx, vSm = va.get(), va.get()
            for q in range(8):
                g.valu("v_cvt_pk_bf16_f32", pk8[q], acc[2][2 * q], acc[2][2 * q + 1])
            for q in range(4):
                g.ds_write("ds_write_b64", vIm, pk8[2 * q:2 * q + 2], V_IMG + j * 8192 + q * 16)

            def phi(u):
                for hl in range(2):
                    for q in range(4):
                        g.valu("v_cvt_pk_bf16_f32", QF[hl][q], acc[u][8 * hl + 2 * q], acc[u][8 * hl + 2 * q + 1])
                for hl in range(2):
                    g.mfma(D2[hl], PH[hl], QF[hl], 0)

            def softmax(hl):
                D = D2[hl]
                g.valu("v_max3_f32", vMx, D[0], D[1], D[2])
                for r in range(3, 15, 2):
                    g.valu("v_max3_f32", vMx, vMx, D[r], D[r + 1])
                g.valu("v_max_f32", vMx, vMx, D[15])
                g.valu("v_mul_f32", vMx, -LOG2E, vMx)
                for r in range(16):
                    g.valu("v_fma_f32", D[r], D[r], sLog2e, vMx)
                for r in range(16):
                    g.valu("v_exp_f32", D[r], D[r])
                g.valu("v_add_f32", vSm, D[0], D[1])
                for r in range(2, 16):
                    g.valu("v_add_f32", vSm, vSm, D[r])
                g.valu("v_rcp_f32", vSm, vSm)
                for r in range(16):
                    g.valu("v_mul_f32", D[r], vSm, D[r])
                for q in range(8):
                    g.valu("v_cvt_pk_bf16_f32", pk8[q], D[2 * q], D[2 * q + 1])

            sLog2e = sT3
            g.salu("s_mov_b32", sLog2e, LOG2E)
            phi(1)
            for hl in range(2):
                softmax(hl)
                for q in range(4):
                    g.ds_write("ds_write_b64", vIm, pk8[2 * q:2 * q + 2], PHK_IMG + (2 * j + hl) * 8192 + q * 16)
            g.waitcnt(lg=0)
            g.barrier()
            phi(0)
            g.salu("s_lshl_b32", sT0, sMt, 2)
            g.salu("s_add_u32", sT0, sT0, sI)
            g.salu("s_lshl_b32", sT0, sT0, 5)
            g.salu("s_lshl_b32", sT1, sNt, 2)
            g.salu("s_add_u32", sT0, sT0, sT1)
            g.salu("s_add_u32", sT0, sT0, 2 * j)
            g.salu("s_lshl_b32", sOut, sT0, 11)
            g.salu("s_add_u32", sOut, sOut, WS_PQ)
            for hl in range(2):
                softmax(hl)
                for m in range(2):
                    g.bstore("buffer_store_dwordx4", pk8[4 * m:4 * m + 4], vL16, srdWs, sOut, (hl * 2 + m) * 1024, mods=STM)
            if j == 0:
                vKa, vVa, vOne = va.get(), va.get(), va.get()
                g.valu("v_lshrrev_b32", t1, 5, vLane)
                g.valu("v_bfe_u32", t2, vLane, 2, 2)
                g.valu("v_lshl_add_u32", t1, t1, 3, t2)
                g.valu("v_lshlrev_b32", t1, 6, t1)
                g.valu("v_and_b32", t2, 3, vLane)
                g.valu("v_lshl_add_u32", t1, t2, 3, t1)
                g.valu("v_bfe_u32", t2, vLane, 4, 1)
                g.valu("v_lshl_add_u32", t2, t2, 5, t1)
                g.salu("s_lshl_b32", sT0, sI, 13)
                g.valu("v_add_u32", vKa, sT0, t2)
                g.salu("s_lshr_b32", sT0, sI, 1)
                g.salu("s_lshl_b32", sT0, sT0, 13)
                g.salu("s_and_b32", sT1, sI, 1)
                g.salu("s_lshl_b32", sT1, sT1, 5)
                g.salu("s_add_u32", sT0, sT0, sT1)
                g.salu("s_add_u32", sT0, sT0, V_IMG)
                g.valu("v_add_u32", vVa, sT0, t1)
                g.valu("v_mov_b32", vOne, ONES_BF)
                g.salu("s_mov_b32", sMask[0], 0xFFFF0000)
                g.salu("s_mov_b32", sMask[1], 0xFFFF0000)
                KA = [Wf[0][0], Wf[0][1]]
                KB = [Wf[0][2], Wf[1][0]]
                D3 = D2[0]

                def rd_kv(ks):
                    for half in range(2):
                        g.ds_read("ds_read_b64_tr_b16", KA[ks & 1][2 * half:2 * half + 2], vKa, ks * 1024 + half * 256)
                    for half in range(2):
                        g.ds_read("ds_read_b64_tr_b16", KB[ks & 1][2 * half:2 * half + 2], vVa, ks * 1024 + half * 256)

                rd_kv(0)
                for ks in range(8):
                    if ks + 1 < 8:
                        rd_kv(ks + 1)
                    for r in range(4):
                        g.valu("v_cndmask_b32_e64", KB[ks & 1][r], KB[ks & 1][r], vOne, sMask)
                    g.mfma(D3, KA[ks & 1], KB[ks & 1], D3 if ks else 0)
                g.salu("s_lshl_b32", sT0, sMt, 5)
                g.salu("s_lshl_b32", sT1, sNt, 2)
                g.salu("s_add_u32", sT0, sT0, sT1)
                g.salu("s_add_u32", sT0, sT0, sI)
                g.salu("s_lshl_b32", sOut, sT0, 12)
                g.salu("s_add_u32", sOut, sOut, WS_PART)
                for q in range(4):
                    g.bstore("buffer_store_dwordx4", D3[4 * q:4 * q + 4], vL16, srdWs, sOut, q * 1024, mods=STM)
        stamp(g, 10)
        g.waitcnt(vm=0)
        stamp(g, 11)
        stamp(g, 13, True)
        stamp_flush(g, 14, srdWs, sGw, sT0, t0, t1)
        amp(g, sGw, sT0, sT1, sT2)
        g.raw("s_endpgm")
        maxv = max(maxv, va.hi)
        out.append(g.text())
    out.append("hh_k1_exit:\n    s_endpgm\n")
    return name, "".join(out), maxv


def gen_kr():
    name = "hh_kr_kernel"
    CURK[0] = "kr"
    g = Gen()
    sKarg, sWG = S(0, 2), S(2)
    sWs, srdWs = S(4, 2), S(8, 4)
    sW, sT0, sT1, sOff = S(12), S(13), S(14), S(15)
    g.label(name)
    g.salu("s_cmp_ge_u32", None, sWG, 32)
    g.raw("s_cbranch_scc1 hh_kr_exit")
    g.sload(sWs, sKarg, 72)
    vLane, vT, vL16, vL8 = V(1), V(2), V(3), V(4)
    g.valu("v_lshrrev_b32", vT, 6, V(0))
    g.valu("v_and_b32", vLane, 63, V(0))
    g.valu("v_readfirstlane_b32", sW, vT)
    g.valu("v_lshlrev_b32", vL16, 4, vLane)
    g.lg = []
    g.raw("s_waitcnt lgkmcnt(0)")
    make_srd(g, srdWs, sWs, WS_SIZE)
    g.salu("s_lshl_b32", sT0, sWG, 2)
    g.salu("s_add_u32", sT0, sT0, sW)
    g.salu("s_lshl_b32", sOff, sT0, 10)
    g.salu("s_add_u32", sOff, sOff, WS_PART)
    P = [V(8 + 4 * m, 4) for m in range(16)]
    for m in range(16):
        g.bload("buffer_load_dwordx4", P[m], vL16, srdWs, sOff)
        if m < 15:
            g.salu("s_add_u32", sOff, sOff, 32 * 4096)
    for m in range(1, 16):
        for r in range(4):
            g.valu("v_add_f32", P[0][r], P[0][r], P[m][r])
    pk = V(6, 2)
    g.valu("v_cvt_pk_bf16_f32", pk[0], P[0][0], P[0][1])
    g.valu("v_cvt_pk_bf16_f32", pk[1], P[0][2], P[0][3])
    g.salu("s_lshl_b32", sT0, sWG, 11)
    g.salu("s_lshr_b32", sT1, sW, 1)
    g.salu("s_lshl_b32", sT1, sT1, 10)
    g.salu("s_add_u32", sT0, sT0, sT1)
    g.salu("s_and_b32", sT1, sW, 1)
    g.salu("s_lshl_b32", sT1, sT1, 3)
    g.salu("s_add_u32", sT0, sT0, sT1)
    g.salu("s_add_u32", sOff, sT0, WS_KV)
    g.bstore("buffer_store_dwordx2", pk, vL16, srdWs, sOff)
    g.raw("s_endpgm")
    return name, g.text() + "hh_kr_exit:\n    s_endpgm\n", 72


K2_LDS = 48 * 1024


def gen_k2(NS=int(os.environ.get("NS", "28"))):
    name = "hh_k2_kernel"
    CURK[0] = "k2"
    g = Gen()
    out = []
    LIMIT = 0x1000
    K2ABL = os.environ.get("K2ABL", "")
    OM = os.environ.get("OM", "")
    sKarg, sWG = S(0, 2), S(2)
    sX, sWs, sOutp, sDbg = S(4, 2), S(6, 2), S(8, 2), S(10, 2)
    srdX, srdO, srdWs = S(12, 4), S(16, 4), S(20, 4)
    sW, sMt, sNt, sT0, sT1, sT2 = (S(24 + k) for k in range(6))
    g.label(name)
    g.salu("s_cmp_ge_u32", None, sWG, 256)
    g.raw("s_cbranch_scc1 hh_k2_exit")
    stamp(g, 0)
    stamp(g, 12, True)
    g.sload(sWs, sKarg, 72)
    g.sload(sX, sKarg, 0)
    g.sload(S(8, 4), sKarg, 56)
    va = VAlloc(1, 256)
    vLane, vT, vL16 = va.get(), va.get(), va.get()
    g.valu("v_lshrrev_b32", vT, 6, V(0))
    g.valu("v_and_b32", vLane, 63, V(0))
    g.valu("v_readfirstlane_b32", sW, vT)
    g.valu("v_lshlrev_b32", vL16, 4, vLane)
    g.salu("s_and_b32", sT0, sWG, 7)
    g.salu("s_lshl_b32", sT0, sT0, 2)
    g.salu("s_bfe_u32", sT1, sWG, (2 << 16) | 3)
    g.salu("s_or_b32", sMt, sT0, sT1)
    g.salu("s_lshr_b32", sNt, sWG, 5)
    sMtL, sNtL = sMt, sNt
    FK = os.environ.get("K2FAKE", "")
    if FK:
        sMtL, sNtL = S(48), S(49)
        g.salu("s_mov_b32", sMtL, 0 if "m" in FK else sMt)
        g.salu("s_mov_b32", sNtL, 0 if "n" in FK else sNt)
    g.salu("s_cmp_ge_u32", None, sW, 4)
    g.raw("s_cbranch_scc1 hh_k2_aux")
    base_state = g
    out.append(g.text())

    def sentinel_check(g, t, regs):
        regs = list(regs)
        g.valu("v_max3_u32", t, regs[0], regs[1], regs[2])
        i = 3
        while i < len(regs):
            if i + 1 < len(regs):
                g.valu("v_max3_u32", t, t, regs[i], regs[i + 1])
                i += 2
            else:
                g.valu("v_max_u32", t, t, regs[i])
                i += 1
        g.valu("v_cmp_eq_u32", VCC, -1, t)

    g = base_state.fork()
    sH = [S(32), S(33)]
    sWn = [S(34), S(35)]
    sO = [S(36), S(37)]
    sWoN = [S(38), S(39)]
    sOb = [S(40), S(41)]
    sCnt = S(42)
    g.salu("s_mul_i32", sT2, sW, 28)
    for sb in range(2):
        g.salu("s_lshl_b32", sT0, sMtL, 1)
        if sb:
            g.salu("s_add_u32", sT0, sT0, sb)
        g.salu("s_mul_i32", sT1, sT0, 112)
        g.salu("s_add_u32", sT1, sT1, sT2)
        g.salu("s_lshl_b32", sH[sb], sT1, 10)
    for nb in range(2):
        g.salu("s_lshl_b32", sT0, sNtL, 1)
        if nb:
            g.salu("s_add_u32", sT0, sT0, nb)
        g.salu("s_mul_i32", sT0, sT0, 144)
        g.salu("s_add_u32", sT1, sT0, sT2)
        g.salu("s_lshl_b32", sT1, sT1, 10)
        g.salu("s_add_u32", sWn[nb], sT1, WS_WF)
    g.lg = []
    g.raw("s_waitcnt lgkmcnt(0)")
    make_srd(g, srdWs, sWs, WS_SIZE)
    win = {}

    def ld(dst, sreg, off, mods=""):
        w0 = win.get(sreg.i, 0)
        if not (w0 <= off < w0 + 4096):
            g.salu("s_add_u32", sreg, sreg, off - w0)
            win[sreg.i] = w0 = off
        g.bload("buffer_load_dwordx4", dst, vL16, srdWs, sreg, off - w0, mods=mods)

    acc = [[va.get(16, 4) for sb in range(2)] for nb in range(2)]
    vRc, vChk, vXo = va.get(), va.get(), va.get()
    XR = va.get(8, 4)
    slots = [va.get(4, 4) for _ in range(NS)]
    reqs = []
    for k in range(28):
        reqs += [(sWn[0], k * 1024), (sH[0], k * 1024), (sH[1], k * 1024), (sWn[1], k * 1024)]
    for h in range(8):
        reqs += [(sWoN[0], h * 1024), (sO[0], h * 1024, OM), (sO[1], h * 1024, OM), (sWoN[1], h * 1024)]
    issued = [0]

    def slot(q):
        return slots[q % NS]

    def issue_upto(n):
        n = min(n, len(reqs))
        while issued[0] < n:
            q = issued[0]
            ld(slot(q), *reqs[q])
            issued[0] += 1

    stamp(g, 1)
    issue_upto(NS)
    stamp(g, 2)
    make_srd(g, srdX, sX, 2048 * 1024)
    make_srd(g, srdO, sOutp, 2048 * 1024)
    for sb in range(2):
        g.salu("s_lshl_b32", sT0, sMt, 1)
        if sb:
            g.salu("s_add_u32", sT0, sT0, sb)
        g.salu("s_lshl_b32", sT1, sT0, 5)
        g.salu("s_lshl_b32", sT2, sW, 3)
        g.salu("s_add_u32", sT1, sT1, sT2)
        g.salu("s_lshl_b32", sT1, sT1, 10)
        g.salu("s_add_u32", sO[sb], sT1, WS_OF)
        g.salu("s_mov_b32", sOb[sb], sO[sb])
    for nb in range(2):
        g.salu("s_lshl_b32", sT0, sNt, 1)
        if nb:
            g.salu("s_add_u32", sT0, sT0, nb)
        g.salu("s_mul_i32", sT0, sT0, 144)
        g.salu("s_lshl_b32", sT2, sW, 3)
        g.salu("s_add_u32", sT1, sT0, sT2)
        g.salu("s_add_u32", sT1, sT1, 112)
        g.salu("s_lshl_b32", sT1, sT1, 10)
        g.salu("s_add_u32", sWoN[nb], sT1, WS_WF)
    t0, t1 = vRc, vChk
    g.salu("s_and_b32", sT0, sW, 1)
    g.salu("s_lshl_b32", sT0, sT0, 5)
    g.salu("s_lshl_b32", sT1, sMt, 6)
    g.salu("s_add_u32", sT0, sT0, sT1)
    g.valu("v_and_b32", t0, 31, vLane)
    g.valu("v_add_u32", t0, sT0, t0)
    g.valu("v_lshlrev_b32", vXo, 10, t0)
    g.salu("s_lshr_b32", sT0, sW, 1)
    g.salu("s_lshl_b32", sT0, sT0, 6)
    g.salu("s_lshl_b32", sT1, sNt, 7)
    g.salu("s_add_u32", sT0, sT0, sT1)
    g.valu("v_add_u32", vXo, sT0, vXo)
    g.valu("v_lshrrev_b32", t1, 5, vLane)
    g.valu("v_lshl_add_u32", vXo, t1, 3, vXo)

    slow = []
    for k in range(36):
        b = 4 * k
        Wn0, H0, H1, Wn1 = (slot(b + i) for i in range(4))
        if k >= 28 and "noaux" not in K2ABL:
            sentinel_check(g, vChk, [H0[i] for i in range(4)] + [H1[i] for i in range(4)])
            g.salu("s_cmp_eq_u64", None, VCC, 0)
            g.raw(f"s_cbranch_scc0 hh_k2_slow{k}")
            g.label(f"hh_k2_back{k}")
            h = k - 28
            gs = Gen()
            gs.label(f"hh_k2_slow{k}")
            gs.salu("s_mov_b32", sCnt, 0)
            gs.salu("s_add_u32", sT0, sOb[0], h * 1024)
            gs.salu("s_add_u32", sT1, sOb[1], h * 1024)
            gs.label(f"hh_k2_spin{k}")
            gs.raw("s_sleep 4")
            gs.bload("buffer_load_dwordx4", H0, vL16, srdWs, sT0, mods="sc1")
            gs.bload("buffer_load_dwordx4", H1, vL16, srdWs, sT1, mods="sc1")
            gs.salu("s_add_u32", sCnt, sCnt, 1)
            gs.raw("s_waitcnt vmcnt(0)")
            gs.vm = []
            sentinel_check(gs, vChk, [H0[i] for i in range(4)] + [H1[i] for i in range(4)])
            gs.salu("s_cmp_ge_u32", None, sCnt, LIMIT)
            gs.raw(f"s_cbranch_scc1 hh_k2_back{k}")
            gs.salu("s_cmp_eq_u64", None, VCC, 0)
            gs.raw(f"s_cbranch_scc0 hh_k2_spin{k}")
            gs.raw(f"s_branch hh_k2_back{k}")
            slow.append(gs.text())
        def mf(d, a_, b_):
            if "nomfma" in K2ABL and k:
                g._wait_for_regs(a_.regs() + b_.regs())
            else:
                g.mfma(d, a_, b_, d if k else 0)
        mf(acc[0][0], Wn0, H0)
        mf(acc[0][1], Wn0, H1)
        issue_upto(b + 1 + NS)
        mf(acc[1][0], Wn1, H0)
        issue_upto(b + 2 + NS)
        mf(acc[1][1], Wn1, H1)
        issue_upto(b + 4 + NS)
        if k == 29:
            for q in range(4):
                g.bload("buffer_load_dwordx2", XR[2 * q:2 * q + 2], vXo, srdX, 0, q * 16)
        if k in (0, 6, 13, 20, 27, 31, 35):
            stamp(g, 3 + (0, 6, 13, 20, 27, 31, 35).index(k))
    g.waitcnt(vm=0)
    for w in range(1, 4):
        g.salu("s_cmp_eq_u32", None, sW, w)
        g.raw(f"s_cbranch_scc1 hh_k2_ep{w}")
    out.append(g.text())
    ep_state = g
    assert NS >= 20
    for w in range(4):
        g = ep_state.fork()
        g.label(f"hh_k2_ep{w}")
        quads = [(0, 0), (0, 1), (1, 0), (1, 1)]
        for Q in range(4):
            if Q == w:
                continue
            k_ = (w - Q - 1) % 4
            nb, sb = quads[Q]
            for q in range(4):
                g.ds_write("ds_write_b128", vL16, acc[nb][sb][4 * q:4 * q + 4], (Q * 3 + k_) * 4096 + q * 1024)
        own = acc[quads[w][0]][quads[w][1]]
        g.nop(8)
        tx = V(slots[12].i, 16)
        for r in range(16):
            src = XR[r >> 1]
            if r & 1:
                g.valu("v_and_b32", tx[r], 0xFFFF0000, src)
            else:
                g.valu("v_lshlrev_b32", tx[r], 16, src)
        for r in range(16):
            g.valu("v_add_f32", own[r], own[r], tx[r])
        g.waitcnt(lg=0)
        g.barrier()
        RD = [V(slots[4 * k_].i, 16) for k_ in range(3)]
        for k_ in range(3):
            for q in range(4):
                g.ds_read("ds_read_b128", RD[k_][4 * q:4 * q + 4], vL16, (w * 3 + k_) * 4096 + q * 1024)
        for r in range(16):
            g.valu("v_add_f32", own[r], own[r], RD[0][r])
        for r in range(16):
            g.valu("v_add_f32", RD[1][r], RD[1][r], RD[2][r])
        for r in range(16):
            g.valu("v_add_f32", own[r], own[r], RD[1][r])
        po = V(slots[16].i, 8)
        for q in range(8):
            g.valu("v_cvt_pk_bf16_f32", po[q], own[2 * q], own[2 * q + 1])
        for i_ in range(2):
            g.valu("v_permlane32_swap_b32", [po[i_], po[2 + i_]])
            g.valu("v_permlane32_swap_b32", [po[4 + i_], po[6 + i_]])
        g.valu("v_lshrrev_b32", vRc, 5, vLane)
        g.valu("v_lshl_add_u32", vXo, vRc, 3, vXo)
        g.bstore("buffer_store_dwordx4", po[0:4], vXo, srdO, 0)
        g.bstore("buffer_store_dwordx4", po[4:8], vXo, srdO, 0, 32)
        stamp(g, 10)
        if STAMPS == "k2":
            g.waitcnt(vm=0)
        stamp(g, 11)
        stamp(g, 13, True)
        g.salu("s_lshl_b32", sT2, sWG, 3)
        g.salu("s_add_u32", sT2, sT2, sW)
        stamp_flush(g, 14, srdWs, sT2, sT0, vRc, vChk)
        amp(g, sT2, sT0, sT1, S(43))
        g.raw("s_endpgm")
        out.append(g.text())
    out += slow

    g = base_state.fork()
    g.label("hh_k2_aux")
    if "noaux" in K2ABL:
        g.raw("s_endpgm")
    g.raw("s_setprio 3")
    sOff, sHd, sKVh, sCnt = S(32), S(33), S(34), S(35)
    sPQ = [S(36), S(37)]
    sOo = [S(38), S(39)]
    vA, vPr, vP, vRc = V(4), V(5), V(6), V(7)
    P = [V(8 + 4 * m, 4) for m in range(8)]
    PQ = [[V(40 + 8 * sb + 4 * m, 4) for m in range(2)] for sb in range(2)]
    KV = [V(56, 4), V(60, 4)]
    D = [V(64, 16), V(80, 16)]
    O = [V(96, 4), V(100, 4)]
    pk, pc = V(104, 4), V(108, 4)
    g.salu("s_lshl_b32", sHd, sNt, 2)
    g.salu("s_add_u32", sHd, sHd, sW)
    g.salu("s_sub_u32", sHd, sHd, 4)
    for sb in range(2):
        g.salu("s_lshl_b32", sT0, sMt, 1)
        if sb:
            g.salu("s_add_u32", sT0, sT0, sb)
        g.salu("s_lshl_b32", sT0, sT0, 5)
        g.salu("s_add_u32", sT0, sT0, sHd)
        g.salu("s_lshl_b32", sT1, sT0, 11)
        g.salu("s_add_u32", sPQ[sb], sT1, WS_PQ)
        g.salu("s_lshl_b32", sT1, sT0, 10)
        g.salu("s_add_u32", sOo[sb], sT1, WS_OF)
    g.salu("s_lshl_b32", sKVh, sHd, 11)
    g.salu("s_add_u32", sKVh, sKVh, WS_KV)
    g.valu("v_lshlrev_b32", vPr, 8, vLane)
    g.valu("v_and_b32", vA, 15, vLane)
    g.valu("v_lshlrev_b32", vA, 4, vA)
    g.valu("v_bfe_u32", vT, vLane, 4, 1)
    g.valu("v_lshl_add_u32", vP, vT, 10, vA)
    g.valu("v_lshrrev_b32", vT, 5, vLane)
    g.valu("v_lshl_add_u32", vP, vT, 17, vP)
    g.salu("s_lshr_b32", sT0, sWG, 2)
    g.salu("s_lshl_b32", sOff, sT0, 11)
    g.salu("s_and_b32", sT1, sWG, 3)
    g.salu("s_lshl_b32", sT1, sT1, 8)
    g.salu("s_add_u32", sOff, sOff, sT1)
    g.salu("s_add_u32", sOff, sOff, WS_PART)
    g.lg = []
    g.raw("s_waitcnt lgkmcnt(0)")
    make_srd(g, srdWs, sWs, WS_SIZE)
    for sb in range(2):
        for m in range(2):
            g.bload("buffer_load_dwordx4", PQ[sb][m], vL16, srdWs, sPQ[sb], m * 1024)
    g.salu("s_cmp_lg_u32", None, sW, 4)
    g.raw("s_cbranch_scc1 hh_k2_await")
    for m in range(8):
        g.bload("buffer_load_dwordx4", P[m], vP, srdWs, sOff)
        if m < 7:
            g.salu("s_add_u32", sOff, sOff, 2 * 32 * 4096)
    stamp(g, 1)
    for st in (1, 2, 4):
        for m in range(0, 8, 2 * st):
            for r in range(4):
                g.valu("v_add_f32", P[m][r], P[m][r], P[m + st][r])
    for r in range(4):
        g.valu("v_mov_b32", pc[r], P[0][r])
    for r in range(4):
        g.valu("v_permlane32_swap_b32", [P[0][r], pc[r]])
    for r in range(4):
        g.valu("v_add_f32", P[0][r], P[0][r], pc[r])
    g.valu("v_cvt_pk_bf16_f32", pk[0], P[0][0], P[0][1])
    g.valu("v_cvt_pk_bf16_f32", pk[1], P[0][2], P[0][3])
    g.valu("v_mov_b32", pk[2], pk[0])
    g.valu("v_mov_b32", pk[3], pk[1])
    g.valu("v_mov_b32", pc[0], pk[0])
    g.valu("v_mov_b32", pc[1], pk[1])
    g.valu("v_permlane16_swap_b32", [pc[0], pk[2]])
    g.valu("v_permlane16_swap_b32", [pc[1], pk[3]])
    g.salu("s_lshl_b32", sOff, sWG, 8)
    g.salu("s_add_u32", sOff, sOff, WS_KV)
    g.salu("s_mov_b64", EXEC, 0xFFFF)
    g.bstore("buffer_store_dwordx4", pk, vA, srdWs, sOff, mods="sc1")
    g.salu("s_mov_b64", EXEC, -1)
    stamp(g, 2)
    g.raw(f"s_sleep {os.environ.get('ISL0', '32')}")
    g.label("hh_k2_ojob")
    g.nop(4)
    stamp(g, 3)
    g.salu("s_mov_b32", sCnt, 0)
    for m in range(2):
        g.bload("buffer_load_dwordx4", KV[m], vL16, srdWs, sKVh, m * 1024, mods=os.environ.get("KVM", ""))
    g.label("hh_k2_kvchk")
    g.salu("s_add_u32", sCnt, sCnt, 1)
    g.raw("s_waitcnt vmcnt(0)")
    g.vm = []
    sentinel_check(g, vP, [KV[0][i] for i in range(4)] + [KV[1][i] for i in range(4)])
    g.salu("s_cmp_ge_u32", None, sCnt, LIMIT)
    g.raw("s_cbranch_scc1 hh_k2_kvok")
    g.salu("s_cmp_eq_u64", None, VCC, 0)
    g.raw("s_cbranch_scc1 hh_k2_kvok")
    g.raw(f"s_sleep {os.environ.get('PSL', '8')}")
    for m in range(2):
        g.bload("buffer_load_dwordx4", KV[m], vL16, srdWs, sKVh, m * 1024, mods="sc1")
    g.raw("s_branch hh_k2_kvchk")
    g.vm = []
    g.label("hh_k2_kvok")
    stamp(g, 4)
    for sb in range(2):
        g.mfma(D[sb], KV[0], PQ[sb][0], 0)
    for sb in range(2):
        g.mfma(D[sb], KV[1], PQ[sb][1], D[sb])
    for sb in range(2):
        g.valu("v_add_f32", vRc, 1e-6, D[sb][8])
        g.valu("v_rcp_f32", vRc, vRc)
        for r in range(8):
            g.valu("v_mul_f32", D[sb][r], vRc, D[sb][r])
        for q in range(4):
            g.valu("v_cvt_pk_bf16_f32", O[sb][q], D[sb][2 * q], D[sb][2 * q + 1])
        g.bstore("buffer_store_dwordx4", O[sb], vL16, srdWs, sOo[sb], mods="sc1")
    if STAMPS == "k2":
        stamp(g, 5)
        g.waitcnt(vm=0)
        for i_ in range(6, 12):
            stamp(g, i_)
        stamp(g, 13, True)
        g.raw("s_waitcnt lgkmcnt(0)")
        g.salu("s_add_u32", S(72 + 14), S(72), sCnt)
        g.salu("s_lshl_b32", sT2, sWG, 3)
        g.salu("s_add_u32", sT2, sT2, sW)
        stamp_flush(g, 14, srdWs, sT2, sT0, V(6), V(7))
    g.raw("s_endpgm")
    g.label("hh_k2_await")
    g.raw(f"s_sleep {os.environ.get('ISL', '96')}")
    g.raw("s_branch hh_k2_ojob")
    out.append(g.text())
    return name, "".join(out) + "hh_k2_exit:\n    s_endpgm\n", max(va.hi, 112)


def descriptor(name, nv):
    nv4 = (nv + 3) // 4 * 4
    return f""".amdhsa_kernel {name}
  .amdhsa_next_free_vgpr {nv4}
  .amdhsa_next_free_sgpr 102
  .amdhsa_accum_offset {nv4}
  .amdhsa_group_segment_fixed_size 0
  .amdhsa_kernarg_size 80
  .amdhsa_user_sgpr_count 2
  .amdhsa_user_sgpr_kernarg_segment_ptr 1
  .amdhsa_system_sgpr_workgroup_id_x 1
.end_amdhsa_kernel
"""


def main(path):
    ks = [gen_k1(), gen_k2()]
    launches = [
        f"; @launch kernel=hh_k1_kernel grid=(256,1,1) block=(512,1,1) lds={K1_LDS}",
        f"; @launch kernel=hh_k2_kernel grid=(256,1,1) block=(512,1,1) lds={K2_LDS}",
    ]
    if KR:
        ks.append(gen_kr())
        launches.insert(1, "; @launch kernel=hh_kr_kernel grid=(32,1,1) block=(256,1,1) lds=0")
    s = "; hedgehog linear attention + SiLU FFN parallel block (generated by my own generator script)\n"
    s += "\n".join(launches) + "\n"
    s += '.amdgcn_target "amdgcn-amd-amdhsa--gfx950"\n.text\n'
    for name, txt, nv in ks:
        s += f".globl {name}\n.p2align 8\n.type {name},@function\n" + txt
    s += "hh_code_end:\n"
    s += '.section .rodata,"a"\n'
    for name, txt, nv in ks:
        s += ".p2align 6\n" + descriptor(name, nv)
        print(name, "vgprs", nv, "lines", txt.count("\n"), file=sys.stderr)
    open(path, "w").write(s)


if __name__ == "__main__":
    if len(sys.argv) > 2 and sys.argv[2].startswith("stamps"):
        STAMPS = sys.argv[2][6:] or "k1"
    ABL.update(sys.argv[3:])
    main(sys.argv[1] if len(sys.argv) > 1 else
         "parallel_sum__linear_kernel_hedgehog__dense_activation_silu__prompt.s")
```
